```python
import torch

def _softmax(x, axis=-1):
    return torch.softmax(x, dim=axis)
def _gelu(x):
    return torch.nn.functional.gelu(x, approximate="tanh")
def _silu(x):
    return torch.nn.functional.silu(x)
def _sigmoid(x):
    return torch.sigmoid(x)
def _layernorm(x, axis=-1, eps=1e-5):
    m = x.mean(dim=axis, keepdim=True)
    v = x.var(dim=axis, keepdim=True, unbiased=False)
    return (x - m) / torch.sqrt(v + eps)
def _scatter_add(tgt, idx, src, axis=0):
    return tgt.clone().index_add_(axis, idx, src)
def _segment_sum(src, seg, n):
    out = torch.zeros((n,) + src.shape[1:], dtype=src.dtype)
    return out.index_add_(0, seg, src)
def _pad(x, pw):
    flat = tuple(v for pair in reversed(pw) for v in pair)
    return torch.nn.functional.pad(x, flat)

kernel_name = 'gated_mix__grouped_kv_mqa__linear_attn_block__prompt'

def setup_inputs():

    _w = (lambda a: (lambda t: t.to(torch.bfloat16) if t.is_floating_point() else t)(torch.as_tensor(a)))
    def _A_setup():
        B, S, D, H = 1, 2048, 512, 32
        Dh = D // H
        return {
            "x": _w((lambda *s: torch.randn(*s, dtype=torch.bfloat16) * 0.05)(B, S, D)),
            "wq": _w((lambda *s: torch.randn(*s, dtype=torch.bfloat16) * 3.2)(D, H * Dh)),
            "wk": _w((lambda *s: torch.randn(*s, dtype=torch.bfloat16) * 3.2)(D, Dh)),
            "wv": _w((lambda *s: torch.randn(*s, dtype=torch.bfloat16) * 0.1)(D, Dh)),
            "wo": _w((lambda *s: torch.randn(*s, dtype=torch.bfloat16) * 0.1)(H * Dh, D)),
        }
    _A_in = _A_setup()

    def _B_setup():
        B, S, D = 1, 2048, 512
        return {
            "x": _w((lambda *s: torch.randn(*s, dtype=torch.bfloat16) * 0.05)(B, S, D)),
            "wqkv": _w((lambda *s: torch.randn(*s, dtype=torch.bfloat16) * 1.6)(D, 3 * D)),
            "wo": _w((lambda *s: torch.randn(*s, dtype=torch.bfloat16) * 0.4)(D, D)),
        }
    _B_in = _B_setup()

    return {
        "A_x": _A_in["x"],
        "A_wq": _A_in["wq"],
        "A_wk": _A_in["wk"],
        "A_wv": _A_in["wv"],
        "A_wo": _A_in["wo"],
        "B_x": _B_in["x"],
        "B_wqkv": _B_in["wqkv"],
        "B_wo": _B_in["wo"],
        "gate_w": _w((lambda *s: torch.randn(*s, dtype=torch.bfloat16) * 0.05)(512) * 16.0),
    }

def reference(A_x, A_wq, A_wk, A_wv, A_wo, B_x, B_wqkv, B_wo, gate_w):
    def _A_ref(x, wq, wk, wv, wo):
        B, S, D = x.shape
        H = 32
        Dh = D // H
        q = (lambda x, *d: x.permute(*d))((x @ wq).reshape(B, S, H, Dh), 0, 2, 1, 3)
        k = x @ wk
        v = x @ wv
        scores = torch.einsum("bhqd,bkd->bhqk", q, k) * (Dh ** -0.5)
        p = _softmax(scores, axis=-1)
        o = torch.einsum("bhqk,bkd->bhqd", p, v)
        return (lambda x, *d: x.permute(*d))(o, 0, 2, 1, 3).reshape(B, S, H * Dh) @ wo

    def _B_ref(x, wqkv, wo):
        B, S, D = x.shape
        H = 32; Dh = D // H
        qkv = (lambda x, *d: x.permute(*d))((x @ wqkv).reshape(B, S, 3, H, Dh), 2, 0, 3, 1, 4)
        q, k, v = qkv[0], qkv[1], qkv[2]
        phi = lambda t: torch.where(t > 0, t + 1, torch.exp(t)) + 1e-6
        pq, pk = phi(q), phi(k)
        kv = torch.einsum("bhsd,bhse->bhde", pk, v)
        z = torch.einsum("bhsd->bhd", pk)
        num = torch.einsum("bhqd,bhde->bhqe", pq, kv)
        den = torch.einsum("bhqd,bhd->bhq", pq, z)[..., None] + 1e-6
        o = num / den
        return (lambda x, *d: x.permute(*d))(o, 0, 2, 1, 3).reshape(B, S, D) @ wo

    x = A_x
    g = _sigmoid((x * gate_w).sum(-1, keepdims=True))
    a = _A_ref(x, A_wq, A_wk, A_wv, A_wo)
    b = _B_ref(x, B_wqkv, B_wo)
    return g * a + (1 - g) * b
```

```python
import re


def v(i, n=1):
    return f"v{i}" if n == 1 else f"v[{i}:{i+n-1}]"


def s(i, n=1):
    return f"s{i}" if n == 1 else f"s[{i}:{i+n-1}]"


class Asm:
    def __init__(self):
        self.lines = []

    def __call__(self, text):
        for ln in text.split("\n"):
            ln = ln.strip()
            if ln:
                self.lines.append(ln)

    def label(self, name):
        self.lines.append(name + ":")

    def c(self, text):
        self.lines.append("; " + text)

    def text(self):
        out = []
        for ln in self.lines:
            if ln.endswith(":") or ln.startswith("."):
                out.append(ln)
            else:
                out.append("    " + ln)
        return "\n".join(out) + "\n"


_REG = re.compile(r"^-?\|?(?:abs\()?([vs])(?:(\d+)|\[(\d+):(\d+)\])\)?\|?$")


def regs(tok):
    tok = tok.strip()
    if tok in ("vcc", "vcc_lo", "vcc_hi"):
        return {("s", 106), ("s", 107)}
    if tok in ("exec", "exec_lo", "exec_hi"):
        return {("s", 126), ("s", 127)}
    if tok == "m0":
        return {("s", 124)}
    m = _REG.match(tok)
    if not m:
        return set()
    f = m.group(1)
    if m.group(2) is not None:
        return {(f, int(m.group(2)))}
    return {(f, i) for i in range(int(m.group(3)), int(m.group(4)) + 1)}


TRANS = ("v_exp_", "v_log_", "v_rcp_", "v_rsq_", "v_sqrt_", "v_sin_", "v_cos_")


def passes(op):
    if "32x32" in op:
        return 8
    if "16x16" in op:
        return 4
    raise ValueError(op)


class Ins:
    def __init__(self, ln):
        self.ln = ln
        body = ln.split(";")[0].strip()
        parts = body.split(None, 1)
        self.op = parts[0]
        rest = parts[1] if len(parts) > 1 else ""
        rest = re.sub(r"\s+(op_sel|op_sel_hi|neg_lo|neg_hi):\[[^\]]*\]", "", rest)
        toks = [t.strip() for t in rest.split(",")] if rest else []
        self.mods = ""
        if toks:
            last = toks[-1].split()
            toks[-1] = last[0] if last else ""
            self.mods = " ".join(last[1:])
        self.toks = toks
        op = self.op
        self.mfma = op.startswith("v_mfma") or op.startswith("v_smfmac")
        self.valu = op.startswith("v_") and not self.mfma
        self.trans = op.startswith(TRANS)
        self.vmem = op.startswith(("buffer_", "global_"))
        self.ds = op.startswith("ds_")
        self.salu = op.startswith("s_")
        R = [regs(t) for t in toks]
        self.w = set()
        self.r = set()
        self.srcc = set()
        self.ab = set()
        self.storedata = set()
        if self.mfma:
            self.w = R[0]
            self.ab = R[1] | R[2]
            if op.startswith("v_smfmac"):
                self.srcc = R[0]
                self.ab |= R[3]
            else:
                self.srcc = R[3]
            self.r = self.ab | self.srcc
        elif self.valu:
            if "swap" in op:
                self.w = R[0] | R[1]
                self.r = R[0] | R[1]
            else:
                nd = 1
                if op.startswith(("v_add_co", "v_sub_co", "v_addc_co")):
                    nd = 2
                for x in R[:nd]:
                    self.w |= x
                for x in R[nd:]:
                    self.r |= x
                if op.startswith(("v_fmac", "v_writelane", "v_dot2c")):
                    self.r |= R[0]
        elif self.vmem:
            lds = "lds" in self.mods.split() or "_lds_" in op
            if "load" in op and not lds:
                self.w = R[0]
                for x in R[1:]:
                    self.r |= x
            else:
                for x in R:
                    self.r |= x
                if lds:
                    self.r |= {("s", 124)}
                if "store" in op and ("x4" in op or "x3" in op):
                    self.storedata = R[0] if op.startswith("buffer_") else R[1]
                if "atomic" in op and "sc0" in self.mods.split():
                    self.w = R[0]
            self.lds = lds
        elif self.ds:
            if "read" in op or "rtn" in op:
                self.w = R[0]
                for x in R[1:]:
                    self.r |= x
            else:
                for x in R:
                    self.r |= x
        elif self.salu:
            if op.startswith(("s_cmp", "s_cbranch", "s_branch", "s_waitcnt", "s_nop", "s_barrier", "s_setprio", "s_sleep", "s_endpgm")):
                for x in R:
                    self.r |= x
                if op.startswith("s_cbranch_vcc"):
                    self.r |= regs("vcc")
            else:
                if R:
                    self.w = R[0]
                for x in R[1:]:
                    self.r |= x
                if "saveexec" in op:
                    self.w |= regs("exec")
        self.states = 1
        if op == "s_nop":
            self.states = int(toks[0], 0) + 1


def need(p, c):
    n = 0
    pv = {x for x in p.w if x[0] == "v"}
    ps = {x for x in p.w if x[0] == "s"}
    if p.valu:
        if c.mfma and (pv & c.r):
            n = max(n, 2)
        if p.trans and (c.valu) and (pv & c.r) and not c.trans:
            n = max(n, 1)
        if p.trans and (c.valu) and (pv & c.r) and c.trans:
            n = max(n, 1)
        if p.trans and (c.vmem or c.ds) and (pv & c.r):
            n = max(n, 1)
        if "permlane" in c.op and (pv & c.r):
            n = max(n, 2)
        if "dpp" in c.ln or "row_" in c.mods or "quad_perm" in c.mods:
            if pv & c.r:
                n = max(n, 2)
        if c.op.startswith(("v_readlane", "v_readfirstlane")) and (pv & c.r):
            n = max(n, 1)
        if ps:
            if c.vmem and (ps & c.r):
                n = max(n, 5)
            if c.valu and (ps & c.r):
                n = max(n, 2)
            if c.valu and c.op.startswith("v_cndmask") and len(c.toks) == 4 and (ps & regs(c.toks[3])):
                n = max(n, 2)
            if c.salu and (ps & c.r):
                n = max(n, 1)
    if p.mfma:
        ps_ = passes(p.op)
        t_valu = {4: 8, 8: 12}[ps_]
        t_ov = {4: 6, 8: 10}[ps_]
        if c.mfma:
            if p.w & c.ab:
                n = max(n, t_valu)
            if p.w & c.srcc:
                same = (p.w == c.srcc) and passes(c.op) == ps_
                if not same:
                    n = max(n, t_ov)
            elif p.w & c.w:
                n = max(n, t_ov)
        else:
            if p.w & (c.r | c.w):
                n = max(n, t_valu)
            if c.valu and (p.srcc & c.w):
                n = max(n, {4: 3, 8: 7}[ps_])
    if p.storedata and (p.storedata & c.w):
        n = max(n, 2)
    if p.salu and ("s", 124) in p.w and c.vmem and getattr(c, "lds", False):
        n = max(n, 1)
    return n


def check(lines):
    ins = []
    for ln in lines:
        if ln.endswith(":") or ln.startswith((".", ";")):
            continue
        ins.append(Ins(ln))
    bad = []
    for i, c in enumerate(ins):
        dist = 0
        j = i - 1
        while j >= 0 and dist < 20:
            p = ins[j]
            if p.op in ("s_branch", "s_endpgm"):
                break
            n = need(p, c)
            if n > dist:
                bad.append((n, dist, p.ln, c.ln))
            dist += p.states
            j -= 1
    return bad
```

```python
import sys, struct
sys.path.insert(0, 'gen')
from asmlib import *

NAME = 'gated_mix__grouped_kv_mqa__linear_attn_block__prompt'


def f2u(x):
    return struct.unpack('<I', struct.pack('<f', x))[0]


def H(x):
    return f"0x{x & 0xffffffff:08x}"


WS_KV = 0
WS_G = 0x20000
WS_KVP = 0x28000
WS_OA = 0x100000
WS_OB = 0x300000
WS_SIZE = 0x500000
WS_DIAG = 0x500000
MISC = 131072
L_WKV = MISC
L_PART = MISC + 16384
L_GP = MISC + 24576
L_SCR = MISC
L_KVS = MISC + 28672
LDS_BYTES = 163840
sW = 3
pX, pWQ, pWK, pWV, pWO, pBX, pWQKV, pBWO, pGATE, pOUT, pDBG, pWS = 4, 6, 8, 10, 12, 14, 16, 18, 20, 22, 24, 26
rX, rW1, rWKV, rGATE, rWS, rDBG, rOUT, rWO, rBWO = 28, 32, 36, 40, 44, 48, 52, 56, 60
sTB, sHP, sCH, sWSTEP, sOX, sOW, sW2K = 64, 65, 66, 67, 68, 69, 70
sT0, sT1, sT2, sT3, sKVT, sT5, sT6, sSTR, sT8 = 71, 72, 73, 74, 75, 76, 77, 78, 79
sVM = 80
sCNT = 82
sOOFF = 83
sOB_, sOC = 84, 85
sSV = 86
sST = 88
sH, sTQ = 90, 91
sT9, sT10 = 92, 93
vL16, vL16H, vIDX, vGT = 1, 2, 3, 4
vQ, vPQ = 16, 20
vNM, vO = 24, 40
vS = [56, 72]
vK = [88, 92]
vVa = [96, 104]
vVb = [100, 108]
vST = 15
aQA, aQB, aKB, aVB = [24, 28], [32, 36], [40, 44], [48, 52]
vEPS = 56
SET = [128, 176]
vX0, vX1, vW0, vW1 = 224, 225, 226, 227
vXR = [228, 229, 230, 231]
vWR = [232, 233]
vR, vG = 7, 8

LOG2E = 1.4426950408889634
QSCALE = 0.25 * LOG2E
EPS = 1e-6
MARGIN = 60.0
SPIN = 1 << 15


def gen(diag=False, opts=None):
    o = dict(pub=7, poll=1, first=2)
    if opts:
        o.update(opts)
    a = Asm()
    nst = [0]

    def stamp(name, cyc=False):
        if not diag:
            return
        k = nst[0]
        nst[0] += 1
        a.c(f"stamp {k} {name}")
        a(f"{'s_memtime' if cyc else 's_memrealtime'} {s(sST,2)}")
        a("s_waitcnt lgkmcnt(0)")
        a(f"v_writelane_b32 {v(vST)}, {s(sST)}, {k}")

    def srd(r, p, n):
        a(f"s_mov_b32 {s(r)}, {s(p)}\ns_mov_b32 {s(r+1)}, {s(p+1)}")

    def srdc(r, n):
        a(f"s_mov_b32 {s(r+2)}, {n}\ns_mov_b32 {s(r+3)}, 0x20000")

    def mf16(d, A, B, C):
        C = C if isinstance(C, str) else v(C, 4)
        return f"v_mfma_f32_16x16x32_bf16 {v(d,4)}, {v(A,4)}, {v(B,4)}, {C}"

    def mf32(d, A, B, C):
        C = C if isinstance(C, str) else v(C, 16)
        return f"v_mfma_f32_32x32x16_bf16 {v(d,16)}, {v(A,4)}, {v(B,4)}, {C}"

    def smf(A, B):
        return f"v_smfmac_f32_32x32x32_bf16 {v(vO,16)}, {v(A,4)}, {v(B,8)}, {v(vIDX)}"

    a(f"""
    s_cmp_ge_u32 s2, 256
    s_cbranch_scc1 L_end
    s_load_dwordx16 s[4:19], s[0:1], 0
    s_load_dwordx8 s[20:27], s[0:1], 64
    v_lshrrev_b32 v5, 6, v0
    v_and_b32 v6, 63, v0
    v_readfirstlane_b32 {s(sW)}, v5
    v_lshlrev_b32 {v(vL16)}, 4, v6
    s_and_b32 {s(sT0)}, s2, 7
    s_lshr_b32 {s(sT1)}, s2, 3
    s_lshr_b32 {s(sT2)}, s2, 6
    s_and_b32 {s(sT3)}, {s(sT1)}, 7
    s_lshr_b32 {s(sTB)}, {s(sT0)}, 1
    s_lshl2_add_u32 {s(sTB)}, {s(sTB)}, {s(sT2)}
    s_and_b32 {s(sHP)}, {s(sT0)}, 1
    s_lshl3_add_u32 {s(sHP)}, {s(sHP)}, {s(sT3)}
    s_lshl1_add_u32 {s(sCH)}, {s(sT2)}, {s(sT3)}
    s_and_b32 {s(sCH)}, {s(sCH)}, 7
    s_lshl2_add_u32 {s(sOB_)}, {s(sT0)}, {s(sT2)}
    s_mov_b32 {s(sOC)}, {s(sT3)}
    v_and_b32 {v(vR)}, 15, v0
    v_lshrrev_b32 {v(vG)}, 4, v6
    s_lshr_b32 {s(sKVT)}, {s(sHP)}, 1
    s_lshl3_add_u32 {s(sKVT)}, {s(sTB)}, {s(sKVT)}
    s_lshl_b32 {s(sKVT)}, {s(sKVT)}, 4
    s_lshl_b32 {s(sT6)}, {s(sW)}, 7
    s_lshl_b32 {s(sT5)}, {s(sKVT)}, 10
    s_add_u32 {s(sT5)}, {s(sT5)}, {s(sT6)}
    s_lshl_b32 {s(sW2K)}, {s(sW)}, 11
    v_lshlrev_b32 v9, 4, {v(vG)}
    v_lshl_add_u32 v10, {v(vR)}, 10, v9
    s_add_u32 m0, {s(sW2K)}, {L_WKV}
    """)
    if diag:
        a(f"v_mov_b32 {v(vST)}, 0")
    srdc(rX, 2097152)
    srdc(rWKV, 16384)
    srdc(rGATE, 1024)
    a(f"""
    v_and_b32 v11, 7, v6
    v_xor_b32 v11, v11, {v(vG)}
    v_lshlrev_b32 v11, 4, v11
    v_lshrrev_b32 v12, 3, v6
    v_lshl_add_u32 v11, v12, 10, v11
    s_lshl3_add_u32 {s(sT8)}, {s(sTB)}, {s(sW)}
    s_lshl_b32 {s(sT8)}, {s(sT8)}, 14
    v_add_u32 {v(vX0)}, {s(sT8)}, v11
    v_xor_b32 {v(vX1)}, 64, {v(vX0)}
    v_add_u32 {v(vX1)}, 7168, {v(vX1)}
    s_and_b32 {s(sT8)}, {s(sHP)}, 1
    s_waitcnt lgkmcnt(0)
    """)
    stamp("start")
    a(f"""
    s_cmp_eq_u32 {s(sT8)}, 0
    s_cselect_b32 {s(rWKV)}, {s(pWK)}, {s(pWV)}
    s_cselect_b32 {s(rWKV+1)}, {s(pWK+1)}, {s(pWV+1)}
    """)
    srd(rX, pX, 0)
    srd(rGATE, pGATE, 0)
    xk = [60, 64]
    gk = [68, 72]
    wk = [76, 80]
    dk, dg = 84, 88
    a(f"""
    buffer_load_dwordx4 {v(vL16)}, {s(rWKV,4)}, {s(sW2K)} offen lds
    buffer_load_dwordx4 {v(vL16)}, {s(rWKV,4)}, {s(sW2K)} offen offset:1024 lds
    buffer_load_dwordx4 {v(xk[0],4)}, v10, {s(rX,4)}, {s(sT5)} offen
    buffer_load_dwordx4 {v(xk[1],4)}, v10, {s(rX,4)}, {s(sT5)} offen offset:64
    buffer_load_dwordx4 {v(gk[0],4)}, v9, {s(rGATE,4)}, {s(sT6)} offen
    buffer_load_dwordx4 {v(gk[1],4)}, v9, {s(rGATE,4)}, {s(sT6)} offen offset:64
    """)
    a(f"""
    s_lshr_b32 {s(sT0)}, {s(sW)}, 1
    s_cmp_eq_u32 {s(sT0)}, 0
    s_cselect_b32 {s(rW1)}, {s(pWQ)}, {s(pWQKV)}
    s_cselect_b32 {s(rW1+1)}, {s(pWQ+1)}, {s(pWQKV+1)}
    s_cselect_b32 {s(sSTR)}, 1, 3
    s_lshl_b32 {s(rW1+2)}, {s(sSTR)}, 19
    s_lshl_b32 {s(sSTR)}, {s(sSTR)}, 10
    s_mov_b32 {s(rW1+3)}, 0x20000
    s_max_u32 {s(sT0)}, {s(sT0)}, 1
    s_sub_u32 {s(sT0)}, {s(sT0)}, 1
    s_lshl_b32 {s(sT0)}, {s(sT0)}, 10
    s_lshl_b32 {s(sT1)}, {s(sHP)}, 6
    s_add_u32 {s(sT0)}, {s(sT0)}, {s(sT1)}
    s_and_b32 {s(sT1)}, {s(sW)}, 1
    s_lshl_b32 {s(sT1)}, {s(sT1)}, 5
    s_mul_i32 {s(sT1)}, {s(sT1)}, {s(sSTR)}
    s_add_u32 {s(sT0)}, {s(sT0)}, {s(sT1)}
    s_lshl_b32 {s(sWSTEP)}, {s(sSTR)}, 6
    v_lshrrev_b32 v11, 5, v6
    v_lshlrev_b32 v11, 1, v11
    v_and_b32 v12, 3, v6
    v_xor_b32 v11, v11, v12
    v_lshlrev_b32 v11, 4, v11
    v_lshrrev_b32 v12, 2, v6
    v_mad_u32_u24 v11, v12, {s(sSTR)}, v11
    v_add_u32 {v(vW0)}, {s(sT0)}, v11
    s_lshl_b32 {s(sT1)}, {s(sSTR)}, 4
    s_sub_u32 {s(sT1)}, {s(sT1)}, 1024
    v_add_u32 {v(vW1)}, {s(sT1)}, {v(vW0)}
    """)

    def dma_chunk(it):
        slot = it % 4
        a(f"""
        s_lshl_b32 {s(sOX)}, {s(sCH)}, 7
        s_add_u32 m0, {s(sW2K)}, {slot*32768}
        s_mul_i32 {s(sOW)}, {s(sCH)}, {s(sWSTEP)}
        buffer_load_dwordx4 {v(vX0)}, {s(rX,4)}, {s(sOX)} offen lds
        buffer_load_dwordx4 {v(vX1)}, {s(rX,4)}, {s(sOX)} offen offset:1024 lds
        s_add_u32 m0, {s(sW2K)}, {slot*32768+16384}
        s_add_u32 {s(sCH)}, {s(sCH)}, 1
        buffer_load_dwordx4 {v(vW0)}, {s(rW1,4)}, {s(sOW)} offen lds
        buffer_load_dwordx4 {v(vW1)}, {s(rW1,4)}, {s(sOW)} offen offset:1024 lds
        s_and_b32 {s(sCH)}, {s(sCH)}, 7
        """)

    first = o['first']
    for it in range(first):
        dma_chunk(it)
    srd(rWS, pWS, 0)
    srdc(rWS, WS_SIZE + (0x100000 if diag else 0))
    srd(rDBG, pDBG, 0)
    srdc(rDBG, 256)
    srd(rOUT, pOUT, 0)
    srdc(rOUT, 2097152)
    srd(rWO, pWO, 0)
    srdc(rWO, 524288)
    srd(rBWO, pBWO, 0)
    srdc(rBWO, 524288)
    a(f"""
    s_lshr_b32 {s(sH)}, {s(sW)}, 2
    s_and_b32 {s(sTQ)}, {s(sW)}, 3
    v_add_u32 {v(vL16H)}, 0x10000, {v(vL16)}
    v_mov_b32 {v(vIDX)}, 0xdddddddd
    s_mov_b32 {s(sVM)}, 0xffff
    s_mov_b32 {s(sVM+1)}, 0xffff
    v_lshrrev_b32 v11, 1, {v(vR)}
    v_xor_b32 v11, v11, {v(vG)}
    v_lshlrev_b32 v11, 4, v11
    v_lshl_add_u32 v11, {v(vR)}, 7, v11
    s_lshl_b32 {s(sT0)}, {s(sTQ)}, 12
    v_add_u32 {v(vXR[0])}, {s(sT0)}, v11
    v_xor_b32 {v(vXR[1])}, 64, {v(vXR[0])}
    v_add_u32 {v(vXR[2])}, 0x10000, {v(vXR[0])}
    v_add_u32 {v(vXR[3])}, 0x10000, {v(vXR[1])}
    v_bfe_u32 v11, v6, 2, 2
    v_lshl_add_u32 v11, {v(vG)}, 3, v11
    v_and_b32 v12, 3, v6
    v_lshlrev_b32 v12, 3, v12
    v_lshl_add_u32 v13, v11, 5, v12
    v_lshl_add_u32 v11, v11, 6, v12
    v_and_b32 v12, 1, {v(vG)}
    v_xor_b32 v12, {s(sH)}, v12
    v_lshl_add_u32 v11, v12, 5, v11
    v_add_u32 {v(vWR[0])}, 16384, v11
    v_add_u32 {v(vWR[1])}, 0x14000, v11
    s_add_u32 {s(sT0)}, {s(sW2K)}, {L_WKV}
    v_add_u32 v13, {s(sT0)}, v13
    s_lshl2_add_u32 {s(sT0)}, {s(sTB)}, {s(sTQ)}
    s_lshl_b32 {s(sT0)}, {s(sT0)}, 5
    s_lshl1_add_u32 {s(sT1)}, {s(sHP)}, {s(sH)}
    s_add_u32 {s(sT0)}, {s(sT0)}, {s(sT1)}
    s_lshl_b32 {s(sOOFF)}, {s(sT0)}, 10
    """)
    for i in range(4):
        a(f"v_mov_b32 {v(vEPS+i)}, {H(f2u(EPS))}")
    a(f"s_waitcnt vmcnt({4*first})")
    stamp("kvloads")
    a(f"""
    ds_read_b64_tr_b16 {v(wk[0],2)}, v13
    ds_read_b64_tr_b16 {v(wk[0]+2,2)}, v13 offset:128
    ds_read_b64_tr_b16 {v(wk[1],2)}, v13 offset:1024
    ds_read_b64_tr_b16 {v(wk[1]+2,2)}, v13 offset:1152
    {mf16(dg, gk[0], xk[0], '0')}
    {mf16(dg, gk[1], xk[1], dg)}
    s_lshl_b32 {s(sT0)}, {s(sW)}, 10
    s_add_u32 {s(sT0)}, {s(sT0)}, {L_PART}
    v_add_u32 v11, {s(sT0)}, {v(vL16)}
    s_lshl_b32 {s(sT0)}, {s(sW)}, 8
    s_add_u32 {s(sT0)}, {s(sT0)}, {L_GP}
    v_lshl_add_u32 v12, v6, 2, {s(sT0)}
    s_and_b32 {s(sT8)}, {s(sHP)}, 1
    s_cmp_eq_u32 {s(sT8)}, 0
    s_waitcnt lgkmcnt(0)
    s_cbranch_scc0 L_isV
    {mf16(dk, wk[0], xk[0], '0')}
    {mf16(dk, wk[1], xk[1], dk)}
    s_branch L_kvj
    """)
    a.label("L_isV")
    a(f"""
    {mf16(dk, xk[0], wk[0], '0')}
    {mf16(dk, xk[1], wk[1], dk)}
    """)
    a.label("L_kvj")
    for it in range(first, 4):
        dma_chunk(it)
    if first == 4:
        a("s_nop 7")
    a(f"""
    ds_write_b128 v11, {v(dk,4)}
    ds_write_b32 v12, {v(dg)}
    s_waitcnt vmcnt(12) lgkmcnt(0)
    s_barrier
    """)
    stamp("B0")

    def reads(it):
        slot = it % 4
        hi = slot // 2
        base = (slot % 2) * 32768
        st = SET[it % 2]
        L = []
        for ks in range(2):
            b = st + 24 * ks
            L.append(f"ds_read_b128 {v(b,4)}, {v(vXR[ks+2*hi])} offset:{base}")
            for mt in range(4):
                for u in range(2):
                    L.append(f"ds_read_b64_tr_b16 {v(b+8+4*mt+2*u,2)}, {v(vWR[hi])} offset:{base+mt*4096+ks*2048+u*256}")
                if mt == 0:
                    L.append(f"ds_read_b128 {v(b+4,4)}, {v(vXR[ks+2*hi])} offset:{base+2048}")
        return L

    def mfmas(it, ks):
        b = SET[it % 2] + 24 * ks
        x = [b, b + 4]
        W = [b + 8 + 4 * m for m in range(4)]
        f = (it == 0 and ks == 0)
        L = []
        for sub in range(2):
            L.append(mf16(aQA[sub], W[0], x[sub], '0' if f else aQA[sub]))
        for sub in range(2):
            L.append(mf16(aQB[sub], W[1], x[sub], vEPS if f else aQB[sub]))
        for sub in range(2):
            L.append(mf16(aKB[sub], x[sub], W[2], vEPS if f else aKB[sub]))
        for sub in range(2):
            L.append(mf16(aVB[sub], x[sub], W[3], '0' if f else aVB[sub]))
        return L

    for ln in reads(0):
        a(ln)
    P = 60
    a(f"s_cmp_eq_u32 {s(sW)}, {o['pub']}\ns_cbranch_scc0 L_nopub")
    a(f"v_add_u32 v11, {L_PART}, {v(vL16)}\nv_lshlrev_b32 v12, 2, v6\nv_add_u32 v12, {L_GP}, v12")
    for i in range(8):
        a(f"ds_read_b128 {v(P+4*i,4)}, v11 offset:{1024*i}")
    for i in range(8):
        a(f"ds_read_b32 {v(96+i)}, v12 offset:{256*i}")
    a(f"""
    v_lshrrev_b32 v11, 1, {v(vG)}
    v_lshlrev_b32 v11, 9, v11
    v_lshl_add_u32 v11, {v(vR)}, 4, v11
    v_and_b32 v12, 1, {v(vG)}
    v_lshl_add_u32 v11, v12, 3, v11
    s_lshr_b32 {s(sT0)}, {s(sKVT)}, 5
    s_lshl_b32 {s(sT0)}, {s(sT0)}, 11
    s_and_b32 {s(sT1)}, {s(sKVT)}, 16
    s_lshl_b32 {s(sT1)}, {s(sT1)}, 4
    s_add_u32 {s(sT0)}, {s(sT0)}, {s(sT1)}
    s_lshl_b32 {s(sT1)}, {s(sT8)}, 10
    s_add_u32 {s(sT0)}, {s(sT0)}, {s(sT1)}
    s_lshl_b32 {s(sT1)}, {s(sKVT)}, 2
    s_add_u32 {s(sT1)}, {s(sT1)}, {WS_G}
    v_lshlrev_b32 v12, 2, {v(vR)}
    s_waitcnt lgkmcnt(0)
    """)
    for st_ in (4, 8, 16):
        for i in range(0, 32, 2 * st_):
            a(f"v_pk_add_f32 {v(P+i,2)}, {v(P+i,2)}, {v(P+i+st_,2)}")
            a(f"v_pk_add_f32 {v(P+i+2,2)}, {v(P+i+2,2)}, {v(P+i+st_+2,2)}")
    a(f"""
    v_cvt_pk_bf16_f32 {v(P)}, {v(P)}, {v(P+1)}
    v_cvt_pk_bf16_f32 {v(P+1)}, {v(P+2)}, {v(P+3)}
    buffer_store_dwordx2 {v(P,2)}, v11, {s(rWS,4)}, {s(sT0)} offen sc1
    v_pk_add_f32 v[96:97], v[96:97], v[98:99]
    v_pk_add_f32 v[100:101], v[100:101], v[102:103]
    v_pk_add_f32 v[96:97], v[96:97], v[100:101]
    v_add_f32 v96, v96, v97
    v_mul_f32 v96, {H(f2u(-LOG2E))}, v96
    v_exp_f32 v96, v96
    s_nop 0
    v_add_f32 v96, 1.0, v96
    v_rcp_f32 v96, v96
    s_mov_b64 exec, 0xffff
    buffer_store_dword v96, v12, {s(rWS,4)}, {s(sT1)} offen sc1
    s_mov_b64 exec, -1
    """)
    a.label("L_nopub")

    vPL = 14
    for it in range(8):
        a("s_waitcnt lgkmcnt(10)")
        for ln in mfmas(it, 0):
            a(ln)
        if it < 7:
            n = {0: 8, 1: 8, 2: 8, 3: 8, 4: 8, 5: 4, 6: 0}[it]
            a(f"s_waitcnt vmcnt({n}) lgkmcnt(0)")
            if it == 2:
                a(f"""
                s_cmp_eq_u32 {s(sW)}, {o['pub']}
                s_cbranch_scc0 L_nosig1
                s_and_b32 {s(sT0)}, s2, 0x18
                s_lshl_b32 {s(sT0)}, {s(sT0)}, 3
                v_mov_b32 v11, 0
                v_mov_b32 v12, 1
                s_mov_b64 exec, 1
                buffer_atomic_add v12, v11, {s(rDBG,4)}, {s(sT0)} offen sc1
                s_mov_b64 exec, -1
                """)
                a.label("L_nosig1")
            if it == 6:
                a(f"""
                s_cmp_eq_u32 {s(sW)}, {o['poll']}
                s_cbranch_scc0 L_sync1
                s_mov_b32 {s(sCNT)}, {SPIN}
                """)
                a.label("L_poll1")
                a(f"""
                v_cmp_ne_u32 vcc, 64, {v(vPL)}
                s_nop 0
                s_cbranch_vccz L_sync1
                buffer_load_dword {v(vPL)}, v13, {s(rDBG,4)}, 0 offen sc1
                s_sub_u32 {s(sCNT)}, {s(sCNT)}, 1
                s_cmp_eq_u32 {s(sCNT)}, 0
                s_waitcnt vmcnt(0)
                s_cbranch_scc0 L_poll1
                """)
                a.label("L_sync1")
            a("s_barrier")
            stamp(f"B{it+1}")
            if it + 4 < 8:
                dma_chunk(it + 4)
            if it == 5:
                a(f"""
                s_cmp_eq_u32 {s(sW)}, {o['poll']}
                s_cbranch_scc0 L_nopoll1
                v_and_b32 v13, 3, v0
                v_lshlrev_b32 v13, 6, v13
                buffer_load_dword {v(vPL)}, v13, {s(rDBG,4)}, 0 offen sc1
                """)
                a.label("L_nopoll1")
            if it == 6:
                a(f"""
                s_lshl_b32 {s(sT0)}, {s(sW)}, 12
                s_mov_b32 m0, {s(sT0)}
                s_lshl2_add_u32 {s(sT1)}, {s(sTB)}, {s(sTQ)}
                s_lshl_b32 {s(sT1)}, {s(sT1)}, 7
                s_add_u32 {s(sT1)}, {s(sT1)}, {WS_G}
                v_and_b32 v11, 31, v0
                v_lshlrev_b32 v11, 2, v11
                """)
                for q in range(3):
                    if q:
                        a(f"s_add_u32 {s(sT0)}, {s(sT0)}, 32768\ns_mov_b32 m0, {s(sT0)}\ns_nop 0")
                    for i in range(4):
                        a(f"buffer_load_dwordx4 {v(vL16)}, {s(rWS,4)}, {s(sT0)} offen offset:{1024*i} sc1 lds")
                    if q == 0:
                        a(f"buffer_load_dword {v(vGT)}, v11, {s(rWS,4)}, {s(sT1)} offen sc1")
            R_ = reads(it + 1)
            M_ = mfmas(it, 1)
            for i, m_ in enumerate(M_):
                a(m_)
                for ln in R_[i * len(R_) // 8:(i + 1) * len(R_) // 8]:
                    a(ln)
        else:
            a("s_waitcnt lgkmcnt(0)")
            for ln in mfmas(it, 1):
                a(ln)
    stamp("gemm1")

    cL, cE, cQ = 60, 62, 64
    a(f"""
    v_mov_b32 v{cL}, {H(f2u(LOG2E))}
    v_mov_b32 v{cL+1}, {H(f2u(LOG2E))}
    v_mov_b32 v{cE}, {H(f2u(-EPS*LOG2E))}
    v_mov_b32 v{cE+1}, {H(f2u(-EPS*LOG2E))}
    v_mov_b32 v{cQ}, {H(f2u(QSCALE))}
    v_mov_b32 v{cQ+1}, {H(f2u(QSCALE))}
    """)
    ONE = 68
    for i in range(4):
        a(f"v_mov_b32 {v(ONE+i)}, 0x3f803f80")
    for i in range(0, 8, 2):
        a(f"v_pk_mul_f32 {v(aQA[0]+i,2)}, {v(aQA[0]+i,2)}, {v(cQ,2)}")
    for i in range(4):
        a(f"v_cvt_pk_bf16_f32 {v(vQ+i)}, {v(aQA[0]+2*i)}, {v(aQA[0]+2*i+1)}")

    def phi(src, dst, tmp):
        for i in range(0, 8, 2):
            a(f"v_pk_fma_f32 {v(tmp+i,2)}, {v(src+i,2)}, {v(cL,2)}, {v(cE,2)}")
        for i in range(8):
            a(f"v_exp_f32 {v(tmp+i)}, {v(tmp+i)} clamp")
        for i in range(8):
            a(f"v_max_f32 {v(src+i)}, {v(src+i)}, {v(vEPS)}")
        for i in range(0, 8, 2):
            a(f"v_pk_add_f32 {v(src+i,2)}, {v(src+i,2)}, {v(tmp+i,2)}")
        for i in range(4):
            a(f"v_cvt_pk_bf16_f32 {v(dst+i)}, {v(src+2*i)}, {v(src+2*i+1)}")

    PK, VF, TM = 72, 76, 80
    phi(aKB[0], PK, TM)
    for i in range(4):
        a(f"v_cvt_pk_bf16_f32 {v(VF+i)}, {v(aVB[0]+2*i)}, {v(aVB[0]+2*i+1)}")
    a(f"""
    v_permlane16_swap_b32 {v(vQ)}, {v(vQ+2)}
    v_permlane16_swap_b32 {v(vQ+1)}, {v(vQ+3)}
    """)
    DKV, DZ = 88, 92
    a(mf16(DKV, PK, VF, '0'))
    a(mf16(DZ, PK, ONE, '0'))
    phi(aQB[0], vPQ, TM)
    a(f"""
    v_lshrrev_b32 v11, 1, {v(vG)}
    v_mul_u32_u24 v11, 17, v11
    v_add_u32 v11, v11, {v(vR)}
    v_and_b32 v12, 1, {v(vG)}
    v_lshlrev_b32 v12, 4, v12
    v_lshl_add_u32 v11, v11, 5, v12
    s_mul_i32 {s(sT0)}, {s(sTQ)}, 2176
    s_mul_i32 {s(sT1)}, {s(sH)}, 1088
    s_add_u32 {s(sT0)}, {s(sT0)}, {s(sT1)}
    s_add_u32 {s(sT0)}, {s(sT0)}, {L_SCR}
    v_add_u32 v11, {s(sT0)}, v11
    v_permlane16_swap_b32 {v(vPQ)}, {v(vPQ+2)}
    v_permlane16_swap_b32 {v(vPQ+1)}, {v(vPQ+3)}
    ds_write_b128 v11, {v(DKV,4)}
    s_mov_b32 exec_lo, 0x00010001
    s_mov_b32 exec_hi, 0x00010001
    ds_write_b128 v11, {v(DZ,4)} offset:512
    s_mov_b64 exec, -1
    """)
    for i in range(0, 16, 2):
        a(f"v_mov_b64 {v(vVa[0]+i,2)}, 0")
    for i in range(0, 16, 2):
        a(f"v_mov_b64 {v(vO+i,2)}, 0")
    a("s_mov_b32 exec_lo, 0x00110000\ns_mov_b32 exec_hi, 0x00110000")
    for i in range(0, 16, 2):
        a(f"v_mov_b64 {v(vVa[0]+i,2)}, {v(ONE,2)}")
    a("s_mov_b64 exec, -1")
    a("s_waitcnt vmcnt(8) lgkmcnt(0)\ns_barrier")
    stamp("X1")

    def tadr(t, off):
        byte = t * 2048 + off
        return (vL16, byte) if byte < 65536 else (vL16H, byte - 65536)

    def rdK(r, t):
        b, off = tadr(t, 0)
        return f"ds_read_b128 {v(r,4)}, {v(b)} offset:{off}"

    def rdV(r, t, blk):
        b, off = tadr(t, 1024 + 256 * blk)
        return f"ds_read_b128 {v(r,4)}, {v(b)} offset:{off}"

    KT = 112
    a(rdK(KT, 0))
    a(rdK(vK[0], 1))
    a(rdK(vK[1], 2))
    a(f"s_mov_b64 exec, {s(sVM,2)}")
    a(rdV(vVa[0], 0, 0))
    a(rdV(vVb[1], 0, 1))
    a(rdV(vVa[1], 1, 0))
    a("s_mov_b64 exec, -1")
    a(f"""
    s_lshl_b32 {s(sT0)}, {s(sW)}, 12
    s_add_u32 {s(sT0)}, {s(sT0)}, {3*32768}
    s_mov_b32 m0, {s(sT0)}
    v_mov_b64 v[116:117], -1
    v_mov_b64 v[118:119], -1
    """)
    for i in range(4):
        a(f"buffer_load_dwordx4 {v(vL16)}, {s(rWS,4)}, {s(sT0)} offen offset:{1024*i} sc1 lds")
    a(f"""
    s_add_u32 {s(sT0)}, {s(sOOFF)}, {WS_OA}
    s_add_u32 {s(sT1)}, {s(sOOFF)}, {WS_OB}
    buffer_store_dwordx4 v[116:119], {v(vL16)}, {s(rWS,4)}, {s(sT0)} offen sc1
    buffer_store_dwordx4 v[116:119], {v(vL16)}, {s(rWS,4)}, {s(sT1)} offen sc1
    s_waitcnt lgkmcnt(5)
    {mf32(vS[0], KT, vQ, '0')}
    """)
    a(f"""
    s_cmp_gt_u32 {s(sW)}, 4
    s_cbranch_scc1 L_nokvp
    v_cmp_gt_u32 vcc, 272, v0
    v_lshlrev_b32 v11, 3, v0
    s_and_saveexec_b64 {s(sSV,2)}, vcc
    v_add_u32 v12, {L_SCR}, v11
    ds_read_b64 v[120:121], v12
    ds_read_b64 v[122:123], v12 offset:2176
    ds_read_b64 v[124:125], v12 offset:4352
    ds_read_b64 v[126:127], v12 offset:6528
    s_lshl4_add_u32 {s(sT0)}, {s(sHP)}, {s(sTB)}
    s_mul_i32 {s(sT0)}, {s(sT0)}, 2176
    s_add_u32 {s(sT0)}, {s(sT0)}, {WS_KVP}
    s_waitcnt lgkmcnt(0)
    v_pk_add_f32 v[120:121], v[120:121], v[122:123]
    v_pk_add_f32 v[124:125], v[124:125], v[126:127]
    v_pk_add_f32 v[120:121], v[120:121], v[124:125]
    buffer_store_dwordx2 v[120:121], v11, {s(rWS,4)}, {s(sT0)} offen sc1
    s_mov_b64 exec, -1
    """)
    a.label("L_nokvp")
    a("s_nop 11")

    def rowmax(S, dst, first_):
        if first_:
            a(f"v_max3_f32 {v(dst)}, {v(S)}, {v(S+1)}, {v(S+2)}")
            a(f"v_max3_f32 {v(dst+1)}, {v(S+3)}, {v(S+4)}, {v(S+5)}")
            rest = list(range(6, 16))
        else:
            rest = list(range(16))
        for n, i in enumerate(rest[::2]):
            d = dst + (n % 2)
            a(f"v_max3_f32 {v(d)}, {v(d)}, {v(S+i)}, {v(S+i+1)}")

    def finish_max(dst, margin):
        a(f"""
        v_max_f32 {v(dst)}, {v(dst)}, {v(dst+1)}
        v_mov_b32 {v(dst+1)}, {v(dst)}
        s_nop 1
        v_permlane32_swap_b32 {v(dst)}, {v(dst+1)}
        v_max_f32 {v(dst)}, {v(dst)}, {v(dst+1)}
        v_sub_f32 {v(vNM)}, {H(f2u(-margin))}, {v(dst)}
        v_mov_b32 {v(vNM+1)}, {v(vNM)}
        """)
        for i in range(2, 16, 2):
            a(f"v_mov_b64 {v(vNM+i,2)}, {v(vNM,2)}")

    rowmax(vS[0], 10, True)
    finish_max(10, MARGIN)
    a("s_nop 1")
    a(mf32(vS[0], KT, vQ, vNM))
    a("s_waitcnt lgkmcnt(0)")
    stamp("attn0")
    stamp("attn0c", cyc=True)
    a("s_nop 10")

    def ex(r):
        return f"v_exp_f32 {v(r)}, {v(r)}"

    def block(t, prio):
        b = t % 2
        S, Pn = vS[b], vS[1 - b]
        L = [ex(S)]
        if prio:
            L.append("s_setprio 1")
        L.append(ex(S + 1))
        if t > 0:
            L.append(smf(vVb[b], Pn + 8))
        L += [ex(S + i) for i in range(2, 5)]
        if t < 63:
            L.append(mf32(Pn, vK[b], vQ, vNM))
        L += [ex(S + i) for i in range(5, 10)]
        L.append(smf(vVa[b], S))
        L += [ex(S + i) for i in range(10, 16)]
        return L

    PL = 128
    DB = 160
    KF = 176
    OBF = 128
    vOWD = 12

    def wbase(st_):
        return 8192 * st_ if st_ <= 12 else MISC + 8192 * (st_ - 13)

    def dma_w(st_):
        r = rBWO if st_ < 8 else rWO
        a(f"""
        s_add_u32 m0, {s(sT9)}, {wbase(st_)}
        s_mov_b32 {s(sT0)}, {(st_ % 8) * 16384}
        buffer_load_dwordx4 {v(vOWD)}, {s(r,4)}, {s(sT0)} offen lds
        """)

    def poll2_issue():
        a(f"""
        s_cmp_gt_u32 {s(sW)}, 4
        s_cbranch_scc1 L_m1
        buffer_load_dword {v(vPL)}, v13, {s(rDBG,4)}, 0 offen offset:4 sc1
        """)
        a.label("L_m1")

    def poll2_check():
        a(f"""
        s_cmp_gt_u32 {s(sW)}, 4
        s_cbranch_scc1 L_m2
        s_mov_b32 {s(sCNT)}, {SPIN}
        s_waitcnt vmcnt(0)
        """)
        a.label("L_poll2")
        a(f"""
        v_cmp_ne_u32 vcc, 64, {v(vPL)}
        s_nop 0
        s_cbranch_vccz L_sync2
        buffer_load_dword {v(vPL)}, v13, {s(rDBG,4)}, 0 offen offset:4 sc1
        s_sub_u32 {s(sCNT)}, {s(sCNT)}, 1
        s_cmp_eq_u32 {s(sCNT)}, 0
        s_waitcnt vmcnt(0)
        s_cbranch_scc0 L_poll2
        """)
        a.label("L_sync2")
        a(f"""
        v_cmp_gt_u32 vcc, 272, v0
        s_mul_i32 {s(sT0)}, {s(sHP)}, {16*2176}
        s_add_u32 {s(sT0)}, {s(sT0)}, {WS_KVP}
        s_and_saveexec_b64 {s(sSV,2)}, vcc
        """)
        for p in range(16):
            if p and p % 2 == 0:
                a(f"s_add_u32 {s(sT0)}, {s(sT0)}, 4352")
            a(f"buffer_load_dwordx2 {v(PL+2*p,2)}, v11, {s(rWS,4)}, {s(sT0)} offen offset:{2176*(p%2)} sc1")
        a("s_mov_b64 exec, -1")
        a.label("L_m2")

    def kv_sum():
        a(f"""
        s_cmp_gt_u32 {s(sW)}, 4
        s_cbranch_scc1 L_m3
        s_waitcnt vmcnt(0)
        """)
        for st_ in (2, 4, 8, 16):
            for i in range(0, 32, 2 * st_):
                a(f"v_pk_add_f32 {v(PL+i,2)}, {v(PL+i,2)}, {v(PL+i+st_,2)}")
        a(f"""
        v_cmp_gt_u32 vcc, 272, v0
        v_cvt_pk_bf16_f32 {v(PL)}, {v(PL)}, {v(PL+1)}
        v_lshlrev_b32 v10, 2, v0
        v_add_u32 v10, {L_KVS}, v10
        s_and_saveexec_b64 {s(sSV,2)}, vcc
        ds_write_b32 v10, {v(PL)}
        s_mov_b64 exec, -1
        """)
        a.label("L_m3")

    def ob_finish():
        a(f"""
        v_add_f32 v10, {H(f2u(EPS))}, {v(DB+8)}
        v_rcp_f32 v10, v10
        v_sub_f32 v9, 1.0, {v(vGT)}
        v_mul_f32 v10, v10, v9
        v_mov_b32 v11, v10
        """)
        for i in range(0, 8, 2):
            a(f"v_pk_mul_f32 {v(DB+i,2)}, {v(DB+i,2)}, v[10:11]")
        for i in range(4):
            a(f"v_cvt_pk_bf16_f32 {v(DB+8+i)}, {v(DB+2*i)}, {v(DB+2*i+1)}")
        a(f"""
        s_add_u32 {s(sT0)}, {s(sOOFF)}, {WS_OB}
        buffer_store_dwordx4 {v(DB+8,4)}, {v(vL16)}, {s(rWS,4)}, {s(sT0)} offen sc1
        """)

    def load_o(dst, base):
        a(f"s_add_u32 {s(sT0)}, {s(sT10)}, {base}\ns_add_u32 {s(sT1)}, {s(sT0)}, 4096")
        for i in range(8):
            a(f"buffer_load_dwordx4 {v(dst+4*i,4)}, {v(vL16)}, {s(rWS,4)}, {s(sT0 if i < 4 else sT1)} offen offset:{1024*(i%4)} sc1")

    for t in range(0, 64, 2):
        for ln in block(t, True) + block(t + 1, False):
            a(ln)
        if t == 12:
            a(f"""
            v_and_b32 v13, 3, v0
            v_lshlrev_b32 v13, 6, v13
            v_lshlrev_b32 v11, 3, v0
            v_mov_b32 v9, 0
            v_mov_b32 v10, 1
            v_bfe_u32 v5, v0, 3, 3
            v_bfe_u32 v6, v0, 4, 1
            v_lshlrev_b32 v6, 2, v6
            v_and_b32 {v(vOWD)}, 7, v0
            v_xor_b32 {v(vOWD)}, {v(vOWD)}, v6
            v_lshlrev_b32 {v(vOWD)}, 4, {v(vOWD)}
            v_lshl_add_u32 {v(vOWD)}, v5, 10, {v(vOWD)}
            s_lshr_b32 {s(sT0)}, {s(sW)}, 1
            s_lshl_b32 {s(sT0)}, {s(sT0)}, 17
            s_and_b32 {s(sT1)}, {s(sW)}, 1
            s_lshl_b32 {s(sT1)}, {s(sT1)}, 13
            s_add_u32 {s(sT0)}, {s(sT0)}, {s(sT1)}
            s_lshl_b32 {s(sT1)}, {s(sOC)}, 7
            s_add_u32 {s(sT0)}, {s(sT0)}, {s(sT1)}
            v_add_u32 {v(vOWD)}, {s(sT0)}, {v(vOWD)}
            """)
        if t == 36:
            poll2_check()
        if t == 42:
            kv_sum()
        if t == 48:
            a(f"""
            v_and_b32 v9, 31, v0
            v_min_u32 v9, 16, v9
            v_bfe_u32 v10, v0, 5, 1
            v_mad_u32_u24 v9, v10, 17, v9
            s_mul_i32 {s(sT0)}, {s(sH)}, 544
            s_add_u32 {s(sT0)}, {s(sT0)}, {L_KVS}
            v_lshl_add_u32 v9, v9, 4, {s(sT0)}
            """)
        if t == 52:
            a(mf32(DB, KF, vPQ, '0'))
        if t == 54:
            ob_finish()
        a("s_setprio 0")
        if t == 12:
            a(f"""
            s_waitcnt vmcnt(0)
            s_barrier
            s_lshl_b32 {s(sT9)}, {s(sW)}, 10
            s_lshl1_add_u32 {s(sT10)}, {s(sOB_)}, {s(sH)}
            s_lshl2_add_u32 {s(sT10)}, {s(sT10)}, {s(sTQ)}
            s_lshl_b32 {s(sT10)}, {s(sT10)}, 13
            s_cmp_eq_u32 {s(sW)}, {o['pub']}
            s_cbranch_scc0 L_nosig2
            s_and_b32 {s(sT0)}, s2, 0x18
            s_lshl_b32 {s(sT0)}, {s(sT0)}, 3
            s_mov_b64 exec, 1
            buffer_atomic_add v10, v9, {s(rDBG,4)}, {s(sT0)} offen offset:4 sc1
            s_mov_b64 exec, -1
            """)
            a.label("L_nosig2")
            stamp("X3")
        if t < 62:
            a(f"s_mov_b64 exec, {s(sVM,2)}")
            a(rdV(vVb[0], t + 1, 1))
            a(rdV(vVa[0], t + 2, 0))
            a(rdV(vVb[1], t + 2, 1))
            a(rdV(vVa[1], t + 3, 0))
            a("s_mov_b64 exec, -1")
            a(rdK(vK[0], t + 3))
            if t + 4 < 64:
                a(rdK(vK[1], t + 4))
        else:
            a(f"s_mov_b64 exec, {s(sVM,2)}")
            a(rdV(vVb[0], 63, 1))
            a("s_mov_b64 exec, -1")
        if t == 14:
            for st_ in (13, 14, 15):
                dma_w(st_)
        if t == 32:
            poll2_issue()
        if t == 60:
            load_o(OBF, WS_OB)
        a("s_waitcnt lgkmcnt(0)")
        if t == 50:
            a("s_barrier")
            stamp("X4")
            a(f"ds_read_b128 {v(KF,4)}, v9")
            for st_ in range(13):
                dma_w(st_)
            a("s_waitcnt lgkmcnt(0)")
    a(smf(vVb[0], vS[1] + 8))
    stamp("attn1c", cyc=True)
    stamp("attn1")
    vOW = [5, 6]
    a(f"""
    v_bfe_u32 v7, v0, 2, 2
    v_bfe_u32 v8, v0, 5, 1
    v_lshl_add_u32 v9, v8, 2, v7
    v_lshlrev_b32 v9, 7, v9
    v_bfe_u32 v10, v0, 3, 1
    v_lshl_add_u32 v9, v10, 6, v9
    v_bfe_u32 v10, v0, 4, 1
    v_lshl_add_u32 v9, v10, 5, v9
    v_and_b32 v10, 3, v0
    v_lshl_add_u32 v9, v10, 3, v9
    s_lshl_b32 {s(sT0)}, {s(sTQ)}, 11
    v_add_u32 {v(vOW[0])}, {s(sT0)}, v9
    v_xor_b32 {v(vOW[1])}, 64, {v(vOW[0])}
    """)
    a(f"""
    v_add_f32 v9, |{v(vO)}|, |{v(vO+1)}|
    v_add_f32 v10, |{v(vO+2)}|, |{v(vO+3)}|
    v_add_f32 v9, v9, |{v(vO+4)}|
    v_add_f32 v10, v10, |{v(vO+5)}|
    v_add_f32 v9, v9, |{v(vO+6)}|
    v_add_f32 v10, v10, |{v(vO+7)}|
    v_add_f32 v9, v9, {v(vO+8)}
    v_add_f32 v9, v9, v10
    v_cmp_ngt_f32 vcc, {H(f2u(2.0**115))}, v9
    s_nop 0
    s_cbranch_vccnz L_fallback
    """)
    a.label("L_norm")
    a(f"""
    v_rcp_f32 v10, {v(vO+8)}
    s_add_u32 {s(sT0)}, {s(sOOFF)}, {WS_OA}
    v_mul_f32 v10, v10, {v(vGT)}
    v_mov_b32 v11, v10
    """)
    for i in range(0, 8, 2):
        a(f"v_pk_mul_f32 {v(vO+i,2)}, {v(vO+i,2)}, v[10:11]")
    for i in range(4):
        a(f"v_cvt_pk_bf16_f32 {v(vQ+i)}, {v(vO+2*i)}, {v(vO+2*i+1)}")
    a(f"buffer_store_dwordx4 {v(vQ,4)}, {v(vL16)}, {s(rWS,4)}, {s(sT0)} offen sc1")
    a("s_waitcnt vmcnt(1)\ns_barrier")
    stamp("X5")

    accB = [56, 72]
    acc = [224, 240]
    WB = 88
    WA = 160
    OAF = 24
    vOWh = [7, 8]
    vOWm = [9, 10]
    a(f"""
    v_add_u32 {v(vOWh[0])}, 0x10000, {v(vOW[0])}
    v_add_u32 {v(vOWh[1])}, 0x10000, {v(vOW[1])}
    v_add_u32 {v(vOWm[0])}, 0x20000, {v(vOW[0])}
    v_add_u32 {v(vOWm[1])}, 0x20000, {v(vOW[1])}
    """)

    def rdW(dst, st_):
        L = []
        b = wbase(st_)
        regs_ = [vOW, vOWh, vOWm][b >> 16]
        for ct in range(2):
            for u in range(2):
                L.append(f"ds_read_b64_tr_b16 {v(dst+4*ct+2*u,2)}, {v(regs_[ct])} offset:{(b & 0xffff) + 1024*u}")
        return L

    def poison_any(F, lab_ok):
        a(f"v_max3_u32 v11, {v(F)}, {v(F+1)}, {v(F+2)}")
        a(f"v_max_u32 v11, v11, {v(F+3)}")
        for i in range(4, 32, 2):
            a(f"v_max3_u32 v11, v11, {v(F+i)}, {v(F+i+1)}")
        a(f"v_cmp_eq_u32 vcc, -1, v11\ns_nop 0\ns_cbranch_vccz {lab_ok}")

    a(f"s_mov_b32 {s(sCNT)}, {SPIN}")
    a.label("L_chkB")
    poison_any(OBF, "L_okB")
    load_o(OBF, WS_OB)
    a(f"""
    s_sub_u32 {s(sCNT)}, {s(sCNT)}, 1
    s_cmp_eq_u32 {s(sCNT)}, 0
    s_waitcnt vmcnt(0)
    s_cbranch_scc0 L_chkB
    """)
    a.label("L_okB")
    for st_ in range(3):
        for ln in rdW(WB + 8 * st_, st_):
            a(ln)
    for st_ in range(8):
        nxt = st_ + 3
        if nxt < 8:
            R_ = rdW(WB + 8 * (nxt % 4), nxt)
        else:
            R_ = rdW(WA + 8 * (nxt - 8), nxt)
        for ln in R_:
            a(ln)
        a("s_waitcnt lgkmcnt(12)")
        for ct in range(2):
            a(mf32(accB[ct], WB + 8 * (st_ % 4) + 4 * ct, OBF + 4 * st_, '0' if st_ == 0 else accB[ct]))
        if st_ == o.get('oa_at', 5):
            load_o(OAF, WS_OA)
    for st_ in range(11, 16):
        for ln in rdW(WA + 8 * (st_ - 8), st_):
            a(ln)
    a(f"""
    v_and_b32 v12, 31, v0
    s_lshl_b32 {s(sT0)}, {s(sH)}, 5
    s_lshl_b32 {s(sT1)}, {s(sTQ)}, 6
    s_add_u32 {s(sT0)}, {s(sT0)}, {s(sT1)}
    v_add_u32 v12, {s(sT0)}, v12
    v_mul_u32_u24 v12, 272, v12
    v_bfe_u32 v13, v0, 5, 1
    v_lshl_add_u32 v12, v13, 7, v12
    v_lshrrev_b32 v13, 3, v0
    v_and_b32 v14, 7, v0
    v_lshlrev_b32 v14, 4, v14
    v_lshl_add_u32 v5, v13, 10, v14
    v_mul_u32_u24 v13, 272, v13
    v_add_u32 v13, v13, v14
    s_mov_b32 {s(sCNT)}, {SPIN}
    s_waitcnt lgkmcnt(0)
    s_barrier
    """)
    stamp("X6")
    a.label("L_tryA")
    for st_ in range(8):
        a(f"""
        s_waitcnt vmcnt({7-st_})
        v_cmp_eq_u32 vcc, -1, {v(OAF+4*st_)}
        s_nop 0
        s_cbranch_vccnz L_retryA
        """)
        for ct in range(2):
            a(mf32(acc[ct], WA + 8 * st_ + 4 * ct, OAF + 4 * st_, accB[ct] if st_ == 0 else acc[ct]))
    a(f"""
    s_nop 11
    v_cmp_u_f32 vcc, {v(acc[1])}, {v(acc[1])}
    s_nop 0
    s_cbranch_vccnz L_nanA
    """)
    a.label("L_okA")
    stamp("outmm")
    for ct in range(2):
        for qd in range(4):
            a(f"ds_write_b128 v12, {v(acc[ct]+4*qd,4)} offset:{(4*ct+qd)*16}")
    a(f"""
    s_lshl_b32 {s(sT0)}, {s(sOB_)}, 16
    s_lshl_b32 {s(sT1)}, {s(sOC)}, 7
    s_add_u32 {s(sT0)}, {s(sT0)}, {s(sT1)}
    s_waitcnt lgkmcnt(0)
    s_barrier
    """)
    RD = 24
    for kq in range(4):
        for hf in range(2):
            a(f"ds_read_b128 {v(RD+8*kq+4*hf,4)}, v13 offset:{kq*64*272+128*hf}")
    a("s_waitcnt lgkmcnt(4)")
    for i in range(0, 8, 2):
        a(f"v_pk_add_f32 {v(RD+i,2)}, {v(RD+i,2)}, {v(RD+8+i,2)}")
    a("s_waitcnt lgkmcnt(0)")
    for i in range(0, 8, 2):
        a(f"v_pk_add_f32 {v(RD+16+i,2)}, {v(RD+16+i,2)}, {v(RD+24+i,2)}")
    for i in range(0, 8, 2):
        a(f"v_pk_add_f32 {v(RD+i,2)}, {v(RD+i,2)}, {v(RD+16+i,2)}")
    for i in range(4):
        a(f"v_cvt_pk_bf16_f32 {v(RD+8+i)}, {v(RD+2*i)}, {v(RD+2*i+1)}")
    a(f"buffer_store_dwordx4 {v(RD+8,4)}, v5, {s(rOUT,4)}, {s(sT0)} offen")
    if diag:
        a("s_waitcnt vmcnt(0)")
        stamp("end")
        a(f"""
        v_writelane_b32 {v(vST)}, {s(sCNT)}, 31
        s_lshl3_add_u32 {s(sT0)}, s2, {s(sW)}
        s_lshl_b32 {s(sT0)}, {s(sT0)}, 8
        s_add_u32 {s(sT0)}, {s(sT0)}, {WS_DIAG}
        v_lshrrev_b32 v5, 2, {v(vL16)}
        buffer_store_dword {v(vST)}, v5, {s(rWS,4)}, {s(sT0)} offen
        """)
    a.label("L_end")
    a("s_endpgm")

    a.label("L_nanA")
    poison_any(OAF, "L_okA")
    a.label("L_retryA")
    a(f"""
    s_sub_u32 {s(sCNT)}, {s(sCNT)}, 1
    s_cmp_eq_u32 {s(sCNT)}, 0
    s_waitcnt vmcnt(0)
    s_nop 15
    s_cbranch_scc1 L_okA
    """)
    load_o(OAF, WS_OA)
    a("s_branch L_tryA")

    a.label("L_fallback")
    a.c("true row max, then the same accumulation, K/V read from the global image")
    a(f"""
    v_mov_b32 v10, 0xff800000
    v_mov_b32 v11, 0xff800000
    s_mov_b32 {s(sT0)}, 0
    """)
    a.label("L_fb1")
    a(f"""
    buffer_load_dwordx4 {v(vK[0],4)}, {v(vL16)}, {s(rWS,4)}, {s(sT0)} offen sc1
    s_waitcnt vmcnt(0)
    {mf32(vS[0], vK[0], vQ, '0')}
    s_nop 11
    """)
    rowmax(vS[0], 10, False)
    a(f"""
    s_add_u32 {s(sT0)}, {s(sT0)}, 2048
    s_cmp_lt_u32 {s(sT0)}, 131072
    s_cbranch_scc1 L_fb1
    """)
    finish_max(10, 0.0)
    for i in range(0, 16, 2):
        a(f"v_mov_b64 {v(vO+i,2)}, 0")
    a(f"s_mov_b32 {s(sT0)}, 0")
    a.label("L_fb2")
    a(f"""
    buffer_load_dwordx4 {v(vK[0],4)}, {v(vL16)}, {s(rWS,4)}, {s(sT0)} offen sc1
    s_mov_b64 exec, {s(sVM,2)}
    buffer_load_dwordx4 {v(vVa[0],4)}, {v(vL16)}, {s(rWS,4)}, {s(sT0)} offen offset:1024 sc1
    buffer_load_dwordx4 {v(vVb[0],4)}, {v(vL16)}, {s(rWS,4)}, {s(sT0)} offen offset:1280 sc1
    s_mov_b64 exec, -1
    s_waitcnt vmcnt(0)
    {mf32(vS[0], vK[0], vQ, vNM)}
    s_nop 11
    """)
    for i in range(16):
        a(ex(vS[0] + i))
    a(f"""
    s_nop 1
    {smf(vVa[0], vS[0])}
    {smf(vVb[0], vS[0]+8)}
    s_add_u32 {s(sT0)}, {s(sT0)}, 2048
    s_cmp_lt_u32 {s(sT0)}, 131072
    s_nop 7
    s_cbranch_scc1 L_fb2
    s_nop 15
    s_branch L_norm
    """)
    return a


HEADER = open('cdna_kernels/' + NAME + '.s.ref').read().split('; Override launch geometry')[0]


def wrap(a):
    k = NAME + '_kernel'
    return (HEADER + f"; @launch grid=(256,1,1) block=(512,1,1) lds={LDS_BYTES}\n"
            + f""".amdgcn_target "amdgcn-amd-amdhsa--gfx950"
.text
.globl {k}
.p2align 8
.type {k},@function
{k}:
""" + a.text() + f""".section .rodata,"a"
.p2align 6
.amdhsa_kernel {k}
  .amdhsa_next_free_vgpr 256
  .amdhsa_next_free_sgpr 96
  .amdhsa_accum_offset 256
  .amdhsa_group_segment_fixed_size 0
  .amdhsa_kernarg_size 96
  .amdhsa_user_sgpr_count 2
  .amdhsa_user_sgpr_kernarg_segment_ptr 1
  .amdhsa_system_sgpr_workgroup_id_x 1
.end_amdhsa_kernel
""")


if __name__ == '__main__':
    import argparse, json
    ap = argparse.ArgumentParser()
    ap.add_argument('out')
    ap.add_argument('--diag', action='store_true')
    ap.add_argument('--opts', default='{}')
    args = ap.parse_args()
    a = gen(args.diag, json.loads(args.opts))
    bad = check(a.lines)
    for b in bad:
        print("HAZARD need", b[0], "have", b[1], "|", b[2], "->", b[3])
    open(args.out, 'w').write(wrap(a))
    print("written", args.out, len(a.lines), "lines")
```

```python
import sys, struct
sys.path.insert(0, 'gen')
from asmlib import *

NAME = 'gated_mix__grouped_kv_mqa__linear_attn_block__prompt'


def f2u(x):
    return struct.unpack('<I', struct.pack('<f', x))[0]


def H(x):
    return f"0x{x & 0xffffffff:08x}"


WS_KV = 0
WS_G = 0x20000
WS_KVP = 0x28000
WS_OA = 0x100000
WS_OB = 0x300000
WS_SIZE = 0x500000
WS_DIAG = 0x500000
MISC = 131072
L_WKV = MISC
L_PART = MISC + 16384
L_GP = MISC + 24576
L_SCR = MISC
L_KVS = MISC + 28672
LDS_BYTES = 163840
sW = 3
pX, pWQ, pWK, pWV, pWO, pBX, pWQKV, pBWO, pGATE, pOUT, pDBG, pWS = 4, 6, 8, 10, 12, 14, 16, 18, 20, 22, 24, 26
rX, rW1, rWKV, rGATE, rWS, rDBG, rOUT, rWO, rBWO = 28, 32, 36, 40, 44, 48, 52, 56, 60
sTB, sHP, sCH, sWSTEP, sOX, sOW, sW2K = 64, 65, 66, 67, 68, 69, 70
sT0, sT1, sT2, sT3, sKVT, sT5, sT6, sSTR, sT8 = 71, 72, 73, 74, 75, 76, 77, 78, 79
sVM = 80
sCNT = 82
sOOFF = 83
sOB_, sOC = 84, 85
sSV = 86
sST = 88
sH, sTQ = 90, 91
sT9, sT10 = 92, 93
vL16, vL16H, vIDX, vGT = 1, 2, 3, 4
vQ, vPQ = 16, 20
vNM, vO = 24, 40
vS = [56, 72]
vK = [88, 92]
vVa = [96, 104]
vVb = [100, 108]
vST = 15
aQA, aQB, aKB, aVB = [24, 28], [32, 36], [40, 44], [48, 52]
vEPS = 56
SET = [128, 176]
vX0, vX1, vW0, vW1 = 224, 225, 226, 227
vXR = [228, 229, 230, 231]
vWR = [232, 233]
vR, vG = 7, 8

LOG2E = 1.4426950408889634
QSCALE = 0.25 * LOG2E
EPS = 1e-6
MARGIN = 60.0
SPIN = 1 << 15


def gen(diag=False, opts=None):
    o = dict(pub=7, poll=1, first=2)
    if opts:
        o.update(opts)
    a = Asm()
    nst = [0]

    def stamp(name, cyc=False):
        if o.get('probe') == name:
            a(f"s_memrealtime {s(sST,2)}\ns_waitcnt lgkmcnt(0)\ns_mov_b32 s95, {s(sST)}")
        if not diag:
            return
        k = nst[0]
        nst[0] += 1
        a.c(f"stamp {k} {name}")
        a(f"{'s_memtime' if cyc else 's_memrealtime'} {s(sST,2)}")
        a("s_waitcnt lgkmcnt(0)")
        a(f"v_writelane_b32 {v(vST)}, {s(sST)}, {k}")

    def srd(r, p, n):
        a(f"s_mov_b32 {s(r)}, {s(p)}\ns_mov_b32 {s(r+1)}, {s(p+1)}")

    def srdc(r, n):
        a(f"s_mov_b32 {s(r+2)}, {n}\ns_mov_b32 {s(r+3)}, 0x20000")

    def mf16(d, A, B, C):
        C = C if isinstance(C, str) else v(C, 4)
        return f"v_mfma_f32_16x16x32_bf16 {v(d,4)}, {v(A,4)}, {v(B,4)}, {C}"

    def mf32(d, A, B, C):
        C = C if isinstance(C, str) else v(C, 16)
        return f"v_mfma_f32_32x32x16_bf16 {v(d,16)}, {v(A,4)}, {v(B,4)}, {C}"

    def smf(A, B):
        return f"v_smfmac_f32_32x32x32_bf16 {v(vO,16)}, {v(A,4)}, {v(B,8)}, {v(vIDX)}"

    a(f"""
    s_cmp_ge_u32 s2, 256
    s_cbranch_scc1 L_end
    {'s_memrealtime s[96:97]' if o.get('probe') else ''}
    s_load_dwordx16 s[4:19], s[0:1], 0
    s_load_dwordx8 s[20:27], s[0:1], 64
    v_lshrrev_b32 v5, 6, v0
    v_and_b32 v6, 63, v0
    v_readfirstlane_b32 {s(sW)}, v5
    v_lshlrev_b32 {v(vL16)}, 4, v6
    s_and_b32 {s(sT0)}, s2, 7
    s_lshr_b32 {s(sT1)}, s2, 3
    s_lshr_b32 {s(sT2)}, s2, 6
    s_and_b32 {s(sT3)}, {s(sT1)}, 7
    s_lshr_b32 {s(sTB)}, {s(sT0)}, 1
    s_lshl2_add_u32 {s(sTB)}, {s(sTB)}, {s(sT2)}
    s_and_b32 {s(sHP)}, {s(sT0)}, 1
    s_lshl3_add_u32 {s(sHP)}, {s(sHP)}, {s(sT3)}
    s_lshl1_add_u32 {s(sCH)}, {s(sT2)}, {s(sT3)}
    s_and_b32 {s(sCH)}, {s(sCH)}, 7
    s_lshl2_add_u32 {s(sOB_)}, {s(sT0)}, {s(sT2)}
    s_mov_b32 {s(sOC)}, {s(sT3)}
    v_and_b32 {v(vR)}, 15, v0
    v_lshrrev_b32 {v(vG)}, 4, v6
    s_lshr_b32 {s(sKVT)}, {s(sHP)}, 1
    s_lshl3_add_u32 {s(sKVT)}, {s(sTB)}, {s(sKVT)}
    s_lshl_b32 {s(sKVT)}, {s(sKVT)}, 4
    s_lshl_b32 {s(sT6)}, {s(sW)}, 7
    s_lshl_b32 {s(sT5)}, {s(sKVT)}, 10
    s_add_u32 {s(sT5)}, {s(sT5)}, {s(sT6)}
    s_lshl_b32 {s(sW2K)}, {s(sW)}, 11
    v_lshlrev_b32 v9, 4, {v(vG)}
    v_lshl_add_u32 v10, {v(vR)}, 10, v9
    s_add_u32 m0, {s(sW2K)}, {L_WKV}
    """)
    if diag:
        a(f"v_mov_b32 {v(vST)}, 0")
    srdc(rX, 2097152)
    srdc(rWKV, 16384)
    srdc(rGATE, 1024)
    a(f"""
    v_and_b32 v11, 7, v6
    v_xor_b32 v11, v11, {v(vG)}
    v_lshlrev_b32 v11, 4, v11
    v_lshrrev_b32 v12, 3, v6
    v_lshl_add_u32 v11, v12, 10, v11
    s_lshl3_add_u32 {s(sT8)}, {s(sTB)}, {s(sW)}
    s_lshl_b32 {s(sT8)}, {s(sT8)}, 14
    v_add_u32 {v(vX0)}, {s(sT8)}, v11
    v_xor_b32 {v(vX1)}, 64, {v(vX0)}
    v_add_u32 {v(vX1)}, 7168, {v(vX1)}
    s_and_b32 {s(sT8)}, {s(sHP)}, 1
    s_waitcnt lgkmcnt(0)
    """)
    stamp("start")
    a(f"""
    s_cmp_eq_u32 {s(sT8)}, 0
    s_cselect_b32 {s(rWKV)}, {s(pWK)}, {s(pWV)}
    s_cselect_b32 {s(rWKV+1)}, {s(pWK+1)}, {s(pWV+1)}
    """)
    srd(rX, pX, 0)
    srd(rGATE, pGATE, 0)
    xk = [60, 64]
    gk = [68, 72]
    wk = [76, 80]
    dk, dg = 84, 88
    a(f"""
    buffer_load_dwordx4 {v(vL16)}, {s(rWKV,4)}, {s(sW2K)} offen lds
    buffer_load_dwordx4 {v(vL16)}, {s(rWKV,4)}, {s(sW2K)} offen offset:1024 lds
    buffer_load_dwordx4 {v(xk[0],4)}, v10, {s(rX,4)}, {s(sT5)} offen
    buffer_load_dwordx4 {v(xk[1],4)}, v10, {s(rX,4)}, {s(sT5)} offen offset:64
    buffer_load_dwordx4 {v(gk[0],4)}, v9, {s(rGATE,4)}, {s(sT6)} offen
    buffer_load_dwordx4 {v(gk[1],4)}, v9, {s(rGATE,4)}, {s(sT6)} offen offset:64
    """)
    a(f"""
    s_lshr_b32 {s(sT0)}, {s(sW)}, 1
    s_cmp_eq_u32 {s(sT0)}, 0
    s_cselect_b32 {s(rW1)}, {s(pWQ)}, {s(pWQKV)}
    s_cselect_b32 {s(rW1+1)}, {s(pWQ+1)}, {s(pWQKV+1)}
    s_cselect_b32 {s(sSTR)}, 1, 3
    s_lshl_b32 {s(rW1+2)}, {s(sSTR)}, 19
    s_lshl_b32 {s(sSTR)}, {s(sSTR)}, 10
    s_mov_b32 {s(rW1+3)}, 0x20000
    s_max_u32 {s(sT0)}, {s(sT0)}, 1
    s_sub_u32 {s(sT0)}, {s(sT0)}, 1
    s_lshl_b32 {s(sT0)}, {s(sT0)}, 10
    s_lshl_b32 {s(sT1)}, {s(sHP)}, 6
    s_add_u32 {s(sT0)}, {s(sT0)}, {s(sT1)}
    s_and_b32 {s(sT1)}, {s(sW)}, 1
    s_lshl_b32 {s(sT1)}, {s(sT1)}, 5
    s_mul_i32 {s(sT1)}, {s(sT1)}, {s(sSTR)}
    s_add_u32 {s(sT0)}, {s(sT0)}, {s(sT1)}
    s_lshl_b32 {s(sWSTEP)}, {s(sSTR)}, 6
    v_lshrrev_b32 v11, 5, v6
    v_lshlrev_b32 v11, 1, v11
    v_and_b32 v12, 3, v6
    v_xor_b32 v11, v11, v12
    v_lshlrev_b32 v11, 4, v11
    v_lshrrev_b32 v12, 2, v6
    v_mad_u32_u24 v11, v12, {s(sSTR)}, v11
    v_add_u32 {v(vW0)}, {s(sT0)}, v11
    s_lshl_b32 {s(sT1)}, {s(sSTR)}, 4
    s_sub_u32 {s(sT1)}, {s(sT1)}, 1024
    v_add_u32 {v(vW1)}, {s(sT1)}, {v(vW0)}
    """)

    def dma_chunk(it):
        slot = it % 4
        a(f"""
        s_lshl_b32 {s(sOX)}, {s(sCH)}, 7
        s_add_u32 m0, {s(sW2K)}, {slot*32768}
        s_mul_i32 {s(sOW)}, {s(sCH)}, {s(sWSTEP)}
        buffer_load_dwordx4 {v(vX0)}, {s(rX,4)}, {s(sOX)} offen lds
        buffer_load_dwordx4 {v(vX1)}, {s(rX,4)}, {s(sOX)} offen offset:1024 lds
        s_add_u32 m0, {s(sW2K)}, {slot*32768+16384}
        s_add_u32 {s(sCH)}, {s(sCH)}, 1
        buffer_load_dwordx4 {v(vW0)}, {s(rW1,4)}, {s(sOW)} offen lds
        buffer_load_dwordx4 {v(vW1)}, {s(rW1,4)}, {s(sOW)} offen offset:1024 lds
        s_and_b32 {s(sCH)}, {s(sCH)}, 7
        """)

    first = o['first']
    for it in range(first):
        dma_chunk(it)
    srd(rWS, pWS, 0)
    srdc(rWS, WS_SIZE + (0x100000 if diag else 0))
    srd(rDBG, pDBG, 0)
    srdc(rDBG, 256)
    srd(rOUT, pOUT, 0)
    srdc(rOUT, 2097152)
    srd(rWO, pWO, 0)
    srdc(rWO, 524288)
    srd(rBWO, pBWO, 0)
    srdc(rBWO, 524288)
    a(f"""
    s_lshr_b32 {s(sH)}, {s(sW)}, 2
    s_and_b32 {s(sTQ)}, {s(sW)}, 3
    v_add_u32 {v(vL16H)}, 0x10000, {v(vL16)}
    v_mov_b32 {v(vIDX)}, 0xdddddddd
    s_mov_b32 {s(sVM)}, 0xffff
    s_mov_b32 {s(sVM+1)}, 0xffff
    v_lshrrev_b32 v11, 1, {v(vR)}
    v_xor_b32 v11, v11, {v(vG)}
    v_lshlrev_b32 v11, 4, v11
    v_lshl_add_u32 v11, {v(vR)}, 7, v11
    s_lshl_b32 {s(sT0)}, {s(sTQ)}, 12
    v_add_u32 {v(vXR[0])}, {s(sT0)}, v11
    v_xor_b32 {v(vXR[1])}, 64, {v(vXR[0])}
    v_add_u32 {v(vXR[2])}, 0x10000, {v(vXR[0])}
    v_add_u32 {v(vXR[3])}, 0x10000, {v(vXR[1])}
    v_bfe_u32 v11, v6, 2, 2
    v_lshl_add_u32 v11, {v(vG)}, 3, v11
    v_and_b32 v12, 3, v6
    v_lshlrev_b32 v12, 3, v12
    v_lshl_add_u32 v13, v11, 5, v12
    v_lshl_add_u32 v11, v11, 6, v12
    v_and_b32 v12, 1, {v(vG)}
    v_xor_b32 v12, {s(sH)}, v12
    v_lshl_add_u32 v11, v12, 5, v11
    v_add_u32 {v(vWR[0])}, 16384, v11
    v_add_u32 {v(vWR[1])}, 0x14000, v11
    s_add_u32 {s(sT0)}, {s(sW2K)}, {L_WKV}
    v_add_u32 v13, {s(sT0)}, v13
    s_lshl2_add_u32 {s(sT0)}, {s(sTB)}, {s(sTQ)}
    s_lshl_b32 {s(sT0)}, {s(sT0)}, 5
    s_lshl1_add_u32 {s(sT1)}, {s(sHP)}, {s(sH)}
    s_add_u32 {s(sT0)}, {s(sT0)}, {s(sT1)}
    s_lshl_b32 {s(sOOFF)}, {s(sT0)}, 10
    """)
    for i in range(4):
        a(f"v_mov_b32 {v(vEPS+i)}, {H(f2u(EPS))}")
    a(f"s_waitcnt vmcnt({4*first})")
    stamp("kvloads")
    a(f"""
    ds_read_b64_tr_b16 {v(wk[0],2)}, v13
    ds_read_b64_tr_b16 {v(wk[0]+2,2)}, v13 offset:128
    ds_read_b64_tr_b16 {v(wk[1],2)}, v13 offset:1024
    ds_read_b64_tr_b16 {v(wk[1]+2,2)}, v13 offset:1152
    {mf16(dg, gk[0], xk[0], '0')}
    {mf16(dg, gk[1], xk[1], dg)}
    s_lshl_b32 {s(sT0)}, {s(sW)}, 10
    s_add_u32 {s(sT0)}, {s(sT0)}, {L_PART}
    v_add_u32 v11, {s(sT0)}, {v(vL16)}
    s_lshl_b32 {s(sT0)}, {s(sW)}, 8
    s_add_u32 {s(sT0)}, {s(sT0)}, {L_GP}
    v_lshl_add_u32 v12, v6, 2, {s(sT0)}
    s_and_b32 {s(sT8)}, {s(sHP)}, 1
    s_cmp_eq_u32 {s(sT8)}, 0
    s_waitcnt lgkmcnt(0)
    s_cbranch_scc0 L_isV
    {mf16(dk, wk[0], xk[0], '0')}
    {mf16(dk, wk[1], xk[1], dk)}
    s_branch L_kvj
    """)
    a.label("L_isV")
    a(f"""
    {mf16(dk, xk[0], wk[0], '0')}
    {mf16(dk, xk[1], wk[1], dk)}
    """)
    a.label("L_kvj")
    for it in range(first, 4):
        dma_chunk(it)
    if first == 4:
        a("s_nop 7")
    a(f"""
    ds_write_b128 v11, {v(dk,4)}
    ds_write_b32 v12, {v(dg)}
    s_waitcnt vmcnt(12) lgkmcnt(0)
    s_barrier
    """)
    stamp("B0")

    def reads(it):
        slot = it % 4
        hi = slot // 2
        base = (slot % 2) * 32768
        st = SET[it % 2]
        L = []
        for ks in range(2):
            b = st + 24 * ks
            L.append(f"ds_read_b128 {v(b,4)}, {v(vXR[ks+2*hi])} offset:{base}")
            for mt in range(4):
                for u in range(2):
                    L.append(f"ds_read_b64_tr_b16 {v(b+8+4*mt+2*u,2)}, {v(vWR[hi])} offset:{base+mt*4096+ks*2048+u*256}")
                if mt == 0:
                    L.append(f"ds_read_b128 {v(b+4,4)}, {v(vXR[ks+2*hi])} offset:{base+2048}")
        return L

    def mfmas(it, ks):
        b = SET[it % 2] + 24 * ks
        x = [b, b + 4]
        W = [b + 8 + 4 * m for m in range(4)]
        f = (it == 0 and ks == 0)
        L = []
        for sub in range(2):
            L.append(mf16(aQA[sub], W[0], x[sub], '0' if f else aQA[sub]))
        for sub in range(2):
            L.append(mf16(aQB[sub], W[1], x[sub], vEPS if f else aQB[sub]))
        for sub in range(2):
            L.append(mf16(aKB[sub], x[sub], W[2], vEPS if f else aKB[sub]))
        for sub in range(2):
            L.append(mf16(aVB[sub], x[sub], W[3], '0' if f else aVB[sub]))
        return L

    for ln in reads(0):
        a(ln)
    P = 60
    a(f"s_cmp_eq_u32 {s(sW)}, {o['pub']}\ns_cbranch_scc0 L_nopub")
    a(f"v_add_u32 v11, {L_PART}, {v(vL16)}\nv_lshlrev_b32 v12, 2, v6\nv_add_u32 v12, {L_GP}, v12")
    for i in range(8):
        a(f"ds_read_b128 {v(P+4*i,4)}, v11 offset:{1024*i}")
    for i in range(8):
        a(f"ds_read_b32 {v(96+i)}, v12 offset:{256*i}")
    a(f"""
    v_lshrrev_b32 v11, 1, {v(vG)}
    v_lshlrev_b32 v11, 9, v11
    v_lshl_add_u32 v11, {v(vR)}, 4, v11
    v_and_b32 v12, 1, {v(vG)}
    v_lshl_add_u32 v11, v12, 3, v11
    s_lshr_b32 {s(sT0)}, {s(sKVT)}, 5
    s_lshl_b32 {s(sT0)}, {s(sT0)}, 11
    s_and_b32 {s(sT1)}, {s(sKVT)}, 16
    s_lshl_b32 {s(sT1)}, {s(sT1)}, 4
    s_add_u32 {s(sT0)}, {s(sT0)}, {s(sT1)}
    s_lshl_b32 {s(sT1)}, {s(sT8)}, 10
    s_add_u32 {s(sT0)}, {s(sT0)}, {s(sT1)}
    s_lshl_b32 {s(sT1)}, {s(sKVT)}, 2
    s_add_u32 {s(sT1)}, {s(sT1)}, {WS_G}
    v_lshlrev_b32 v12, 2, {v(vR)}
    s_waitcnt lgkmcnt(0)
    """)
    for st_ in (4, 8, 16):
        for i in range(0, 32, 2 * st_):
            a(f"v_pk_add_f32 {v(P+i,2)}, {v(P+i,2)}, {v(P+i+st_,2)}")
            a(f"v_pk_add_f32 {v(P+i+2,2)}, {v(P+i+2,2)}, {v(P+i+st_+2,2)}")
    a(f"""
    v_cvt_pk_bf16_f32 {v(P)}, {v(P)}, {v(P+1)}
    v_cvt_pk_bf16_f32 {v(P+1)}, {v(P+2)}, {v(P+3)}
    buffer_store_dwordx2 {v(P,2)}, v11, {s(rWS,4)}, {s(sT0)} offen sc1
    v_pk_add_f32 v[96:97], v[96:97], v[98:99]
    v_pk_add_f32 v[100:101], v[100:101], v[102:103]
    v_pk_add_f32 v[96:97], v[96:97], v[100:101]
    v_add_f32 v96, v96, v97
    v_mul_f32 v96, {H(f2u(-LOG2E))}, v96
    v_exp_f32 v96, v96
    s_nop 0
    v_add_f32 v96, 1.0, v96
    v_rcp_f32 v96, v96
    s_mov_b64 exec, 0xffff
    buffer_store_dword v96, v12, {s(rWS,4)}, {s(sT1)} offen sc1
    s_mov_b64 exec, -1
    """)
    a.label("L_nopub")

    vPL = 14
    for it in range(8):
        a("s_waitcnt lgkmcnt(10)")
        for ln in mfmas(it, 0):
            a(ln)
        if it < 7:
            n = {0: 8, 1: 8, 2: 8, 3: 8, 4: 8, 5: 4, 6: 0}[it]
            a(f"s_waitcnt vmcnt({n}) lgkmcnt(0)")
            if it == 2:
                a(f"""
                s_cmp_eq_u32 {s(sW)}, {o['pub']}
                s_cbranch_scc0 L_nosig1
                s_and_b32 {s(sT0)}, s2, 0x18
                s_lshl_b32 {s(sT0)}, {s(sT0)}, 3
                v_mov_b32 v11, 0
                v_mov_b32 v12, 1
                s_mov_b64 exec, 1
                buffer_atomic_add v12, v11, {s(rDBG,4)}, {s(sT0)} offen sc1
                s_mov_b64 exec, -1
                """)
                a.label("L_nosig1")
            if it == 6:
                a(f"""
                s_cmp_eq_u32 {s(sW)}, {o['poll']}
                s_cbranch_scc0 L_sync1
                s_mov_b32 {s(sCNT)}, {SPIN}
                """)
                a.label("L_poll1")
                a(f"""
                v_cmp_gt_u32 vcc, 64, {v(vPL)}
                s_nop 0
                s_cbranch_vccz L_sync1
                buffer_load_dword {v(vPL)}, v13, {s(rDBG,4)}, 0 offen sc1
                s_sub_u32 {s(sCNT)}, {s(sCNT)}, 1
                s_cmp_eq_u32 {s(sCNT)}, 0
                s_waitcnt vmcnt(0)
                s_cbranch_scc0 L_poll1
                """)
                a.label("L_sync1")
            a("s_barrier")
            stamp(f"B{it+1}")
            if it + 4 < 8:
                dma_chunk(it + 4)
            if it == 5:
                a(f"""
                s_cmp_eq_u32 {s(sW)}, {o['poll']}
                s_cbranch_scc0 L_nopoll1
                v_and_b32 v13, 3, v0
                v_lshlrev_b32 v13, 6, v13
                buffer_load_dword {v(vPL)}, v13, {s(rDBG,4)}, 0 offen sc1
                """)
                a.label("L_nopoll1")
            if it == 6:
                a(f"""
                s_lshl_b32 {s(sT0)}, {s(sW)}, 12
                s_mov_b32 m0, {s(sT0)}
                s_lshl2_add_u32 {s(sT1)}, {s(sTB)}, {s(sTQ)}
                s_lshl_b32 {s(sT1)}, {s(sT1)}, 7
                s_add_u32 {s(sT1)}, {s(sT1)}, {WS_G}
                v_and_b32 v11, 31, v0
                v_lshlrev_b32 v11, 2, v11
                """)
                for q in range(3):
                    if q:
                        a(f"s_add_u32 {s(sT0)}, {s(sT0)}, 32768\ns_mov_b32 m0, {s(sT0)}\ns_nop 0")
                    for i in range(4):
                        a(f"buffer_load_dwordx4 {v(vL16)}, {s(rWS,4)}, {s(sT0)} offen offset:{1024*i} sc1 lds")
                    if q == 0:
                        a(f"buffer_load_dword {v(vGT)}, v11, {s(rWS,4)}, {s(sT1)} offen sc1")
            R_ = reads(it + 1)
            M_ = mfmas(it, 1)
            for i, m_ in enumerate(M_):
                a(m_)
                for ln in R_[i * len(R_) // 8:(i + 1) * len(R_) // 8]:
                    a(ln)
        else:
            a("s_waitcnt lgkmcnt(0)")
            for ln in mfmas(it, 1):
                a(ln)
    stamp("gemm1")

    cL, cE, cQ = 60, 62, 64
    a(f"""
    v_mov_b32 v{cL}, {H(f2u(LOG2E))}
    v_mov_b32 v{cL+1}, {H(f2u(LOG2E))}
    v_mov_b32 v{cE}, {H(f2u(-EPS*LOG2E))}
    v_mov_b32 v{cE+1}, {H(f2u(-EPS*LOG2E))}
    v_mov_b32 v{cQ}, {H(f2u(QSCALE))}
    v_mov_b32 v{cQ+1}, {H(f2u(QSCALE))}
    """)
    ONE = 68
    for i in range(4):
        a(f"v_mov_b32 {v(ONE+i)}, 0x3f803f80")
    for i in range(0, 8, 2):
        a(f"v_pk_mul_f32 {v(aQA[0]+i,2)}, {v(aQA[0]+i,2)}, {v(cQ,2)}")
    for i in range(4):
        a(f"v_cvt_pk_bf16_f32 {v(vQ+i)}, {v(aQA[0]+2*i)}, {v(aQA[0]+2*i+1)}")

    def phi(src, dst, tmp):
        for i in range(0, 8, 2):
            a(f"v_pk_fma_f32 {v(tmp+i,2)}, {v(src+i,2)}, {v(cL,2)}, {v(cE,2)}")
        for i in range(8):
            a(f"v_exp_f32 {v(tmp+i)}, {v(tmp+i)} clamp")
        for i in range(8):
            a(f"v_max_f32 {v(src+i)}, {v(src+i)}, {v(vEPS)}")
        for i in range(0, 8, 2):
            a(f"v_pk_add_f32 {v(src+i,2)}, {v(src+i,2)}, {v(tmp+i,2)}")
        for i in range(4):
            a(f"v_cvt_pk_bf16_f32 {v(dst+i)}, {v(src+2*i)}, {v(src+2*i+1)}")

    PK, VF, TM = 72, 76, 80
    phi(aKB[0], PK, TM)
    for i in range(4):
        a(f"v_cvt_pk_bf16_f32 {v(VF+i)}, {v(aVB[0]+2*i)}, {v(aVB[0]+2*i+1)}")
    a(f"""
    v_permlane16_swap_b32 {v(vQ)}, {v(vQ+2)}
    v_permlane16_swap_b32 {v(vQ+1)}, {v(vQ+3)}
    """)
    DKV, DZ = 88, 92
    a(mf16(DKV, PK, VF, '0'))
    a(mf16(DZ, PK, ONE, '0'))
    phi(aQB[0], vPQ, TM)
    a(f"""
    v_lshrrev_b32 v11, 1, {v(vG)}
    v_mul_u32_u24 v11, 17, v11
    v_add_u32 v11, v11, {v(vR)}
    v_and_b32 v12, 1, {v(vG)}
    v_lshlrev_b32 v12, 4, v12
    v_lshl_add_u32 v11, v11, 5, v12
    s_mul_i32 {s(sT0)}, {s(sTQ)}, 2176
    s_mul_i32 {s(sT1)}, {s(sH)}, 1088
    s_add_u32 {s(sT0)}, {s(sT0)}, {s(sT1)}
    s_add_u32 {s(sT0)}, {s(sT0)}, {L_SCR}
    v_add_u32 v11, {s(sT0)}, v11
    v_permlane16_swap_b32 {v(vPQ)}, {v(vPQ+2)}
    v_permlane16_swap_b32 {v(vPQ+1)}, {v(vPQ+3)}
    ds_write_b128 v11, {v(DKV,4)}
    s_mov_b32 exec_lo, 0x00010001
    s_mov_b32 exec_hi, 0x00010001
    ds_write_b128 v11, {v(DZ,4)} offset:512
    s_mov_b64 exec, -1
    """)
    for i in range(0, 16, 2):
        a(f"v_mov_b64 {v(vVa[0]+i,2)}, 0")
    for i in range(0, 16, 2):
        a(f"v_mov_b64 {v(vO+i,2)}, 0")
    a("s_mov_b32 exec_lo, 0x00110000\ns_mov_b32 exec_hi, 0x00110000")
    for i in range(0, 16, 2):
        a(f"v_mov_b64 {v(vVa[0]+i,2)}, {v(ONE,2)}")
    a("s_mov_b64 exec, -1")
    a("s_waitcnt vmcnt(8) lgkmcnt(0)\ns_barrier")
    stamp("X1")

    def tadr(t, off):
        byte = t * 2048 + off
        return (vL16, byte) if byte < 65536 else (vL16H, byte - 65536)

    def rdK(r, t):
        b, off = tadr(t, 0)
        return f"ds_read_b128 {v(r,4)}, {v(b)} offset:{off}"

    def rdV(r, t, blk):
        b, off = tadr(t, 1024 + 256 * blk)
        return f"ds_read_b128 {v(r,4)}, {v(b)} offset:{off}"

    KT = 112
    a(rdK(KT, 0))
    a(rdK(vK[0], 1))
    a(rdK(vK[1], 2))
    a(f"s_mov_b64 exec, {s(sVM,2)}")
    a(rdV(vVa[0], 0, 0))
    a(rdV(vVb[1], 0, 1))
    a(rdV(vVa[1], 1, 0))
    a("s_mov_b64 exec, -1")
    a(f"""
    s_lshl_b32 {s(sT0)}, {s(sW)}, 12
    s_add_u32 {s(sT0)}, {s(sT0)}, {3*32768}
    s_mov_b32 m0, {s(sT0)}
    v_mov_b64 v[116:117], -1
    v_mov_b64 v[118:119], -1
    """)
    for i in range(4):
        a(f"buffer_load_dwordx4 {v(vL16)}, {s(rWS,4)}, {s(sT0)} offen offset:{1024*i} sc1 lds")
    a(f"""
    s_add_u32 {s(sT0)}, {s(sOOFF)}, {WS_OA}
    s_add_u32 {s(sT1)}, {s(sOOFF)}, {WS_OB}
    buffer_store_dwordx4 v[116:119], {v(vL16)}, {s(rWS,4)}, {s(sT0)} offen sc1
    buffer_store_dwordx4 v[116:119], {v(vL16)}, {s(rWS,4)}, {s(sT1)} offen sc1
    s_waitcnt lgkmcnt(5)
    {mf32(vS[0], KT, vQ, '0')}
    """)
    a(f"""
    s_cmp_gt_u32 {s(sW)}, 4
    s_cbranch_scc1 L_nokvp
    v_cmp_gt_u32 vcc, 272, v0
    v_lshlrev_b32 v11, 3, v0
    s_and_saveexec_b64 {s(sSV,2)}, vcc
    v_add_u32 v12, {L_SCR}, v11
    ds_read_b64 v[120:121], v12
    ds_read_b64 v[122:123], v12 offset:2176
    ds_read_b64 v[124:125], v12 offset:4352
    ds_read_b64 v[126:127], v12 offset:6528
    s_lshl4_add_u32 {s(sT0)}, {s(sHP)}, {s(sTB)}
    s_mul_i32 {s(sT0)}, {s(sT0)}, 2176
    s_add_u32 {s(sT0)}, {s(sT0)}, {WS_KVP}
    s_waitcnt lgkmcnt(0)
    v_pk_add_f32 v[120:121], v[120:121], v[122:123]
    v_pk_add_f32 v[124:125], v[124:125], v[126:127]
    v_pk_add_f32 v[120:121], v[120:121], v[124:125]
    buffer_store_dwordx2 v[120:121], v11, {s(rWS,4)}, {s(sT0)} offen sc1
    s_mov_b64 exec, -1
    """)
    a.label("L_nokvp")
    a("s_nop 11")

    def rowmax(S, dst, first_):
        if first_:
            a(f"v_max3_f32 {v(dst)}, {v(S)}, {v(S+1)}, {v(S+2)}")
            a(f"v_max3_f32 {v(dst+1)}, {v(S+3)}, {v(S+4)}, {v(S+5)}")
            rest = list(range(6, 16))
        else:
            rest = list(range(16))
        for n, i in enumerate(rest[::2]):
            d = dst + (n % 2)
            a(f"v_max3_f32 {v(d)}, {v(d)}, {v(S+i)}, {v(S+i+1)}")

    def finish_max(dst, margin):
        a(f"""
        v_max_f32 {v(dst)}, {v(dst)}, {v(dst+1)}
        v_mov_b32 {v(dst+1)}, {v(dst)}
        s_nop 1
        v_permlane32_swap_b32 {v(dst)}, {v(dst+1)}
        v_max_f32 {v(dst)}, {v(dst)}, {v(dst+1)}
        v_sub_f32 {v(vNM)}, {H(f2u(-margin))}, {v(dst)}
        v_mov_b32 {v(vNM+1)}, {v(vNM)}
        """)
        for i in range(2, 16, 2):
            a(f"v_mov_b64 {v(vNM+i,2)}, {v(vNM,2)}")

    rowmax(vS[0], 10, True)
    finish_max(10, MARGIN)
    a("s_nop 1")
    a(mf32(vS[0], KT, vQ, vNM))
    a("s_waitcnt lgkmcnt(0)")
    stamp("attn0")
    stamp("attn0c", cyc=True)
    a("s_nop 10")

    def ex(r):
        return f"v_exp_f32 {v(r)}, {v(r)}"

    def block(t, prio):
        b = t % 2
        S, Pn = vS[b], vS[1 - b]
        L = [ex(S)]
        if prio:
            L.append("s_setprio 1")
        L.append(ex(S + 1))
        if t > 0:
            L.append(smf(vVb[b], Pn + 8))
        L += [ex(S + i) for i in range(2, 5)]
        if t < 63:
            L.append(mf32(Pn, vK[b], vQ, vNM))
        L += [ex(S + i) for i in range(5, 10)]
        L.append(smf(vVa[b], S))
        L += [ex(S + i) for i in range(10, 16)]
        return L

    PL = 128
    DB = 160
    KF = 176
    OBF = 128
    vOWD = 12

    def wbase(st_):
        return 8192 * st_ if st_ <= 12 else MISC + 8192 * (st_ - 13)

    def dma_w(st_):
        r = rBWO if st_ < 8 else rWO
        a(f"""
        s_add_u32 m0, {s(sT9)}, {wbase(st_)}
        s_mov_b32 {s(sT0)}, {(st_ % 8) * 16384}
        buffer_load_dwordx4 {v(vOWD)}, {s(r,4)}, {s(sT0)} offen lds
        """)

    def poll2_issue():
        a(f"""
        s_cmp_gt_u32 {s(sW)}, 4
        s_cbranch_scc1 L_m1
        buffer_load_dword {v(vPL)}, v13, {s(rDBG,4)}, 0 offen offset:4 sc1
        """)
        a.label("L_m1")

    def poll2_check():
        a(f"""
        s_cmp_gt_u32 {s(sW)}, 4
        s_cbranch_scc1 L_m2
        s_mov_b32 {s(sCNT)}, {SPIN}
        s_waitcnt vmcnt(0)
        """)
        a.label("L_poll2")
        a(f"""
        v_cmp_gt_u32 vcc, 64, {v(vPL)}
        s_nop 0
        s_cbranch_vccz L_sync2
        buffer_load_dword {v(vPL)}, v13, {s(rDBG,4)}, 0 offen offset:4 sc1
        s_sub_u32 {s(sCNT)}, {s(sCNT)}, 1
        s_cmp_eq_u32 {s(sCNT)}, 0
        s_waitcnt vmcnt(0)
        s_cbranch_scc0 L_poll2
        """)
        a.label("L_sync2")
        a(f"""
        v_cmp_gt_u32 vcc, 272, v0
        s_mul_i32 {s(sT0)}, {s(sHP)}, {16*2176}
        s_add_u32 {s(sT0)}, {s(sT0)}, {WS_KVP}
        s_and_saveexec_b64 {s(sSV,2)}, vcc
        """)
        for p in range(16):
            if p and p % 2 == 0:
                a(f"s_add_u32 {s(sT0)}, {s(sT0)}, 4352")
            a(f"buffer_load_dwordx2 {v(PL+2*p,2)}, v11, {s(rWS,4)}, {s(sT0)} offen offset:{2176*(p%2)} sc1")
        a("s_mov_b64 exec, -1")
        a.label("L_m2")

    def kv_sum():
        a(f"""
        s_cmp_gt_u32 {s(sW)}, 4
        s_cbranch_scc1 L_m3
        s_waitcnt vmcnt(0)
        """)
        for st_ in (2, 4, 8, 16):
            for i in range(0, 32, 2 * st_):
                a(f"v_pk_add_f32 {v(PL+i,2)}, {v(PL+i,2)}, {v(PL+i+st_,2)}")
        a(f"""
        v_cmp_gt_u32 vcc, 272, v0
        v_cvt_pk_bf16_f32 {v(PL)}, {v(PL)}, {v(PL+1)}
        v_lshlrev_b32 v10, 2, v0
        v_add_u32 v10, {L_KVS}, v10
        s_and_saveexec_b64 {s(sSV,2)}, vcc
        ds_write_b32 v10, {v(PL)}
        s_mov_b64 exec, -1
        """)
        a.label("L_m3")

    def ob_finish():
        a(f"""
        v_add_f32 v10, {H(f2u(EPS))}, {v(DB+8)}
        v_rcp_f32 v10, v10
        v_sub_f32 v9, 1.0, {v(vGT)}
        v_mul_f32 v10, v10, v9
        v_mov_b32 v11, v10
        """)
        for i in range(0, 8, 2):
            a(f"v_pk_mul_f32 {v(DB+i,2)}, {v(DB+i,2)}, v[10:11]")
        for i in range(4):
            a(f"v_cvt_pk_bf16_f32 {v(DB+8+i)}, {v(DB+2*i)}, {v(DB+2*i+1)}")
        a(f"""
        s_add_u32 {s(sT0)}, {s(sOOFF)}, {WS_OB}
        buffer_store_dwordx4 {v(DB+8,4)}, {v(vL16)}, {s(rWS,4)}, {s(sT0)} offen sc1
        """)

    def load_o(dst, base):
        a(f"s_add_u32 {s(sT0)}, {s(sT10)}, {base}\ns_add_u32 {s(sT1)}, {s(sT0)}, 4096")
        for i in range(8):
            a(f"buffer_load_dwordx4 {v(dst+4*i,4)}, {v(vL16)}, {s(rWS,4)}, {s(sT0 if i < 4 else sT1)} offen offset:{1024*(i%4)} sc1")

    for t in range(0, 64, 2):
        for ln in block(t, True) + block(t + 1, False):
            a(ln)
        if t == 12:
            a(f"""
            v_and_b32 v13, 3, v0
            v_lshlrev_b32 v13, 6, v13
            v_lshlrev_b32 v11, 3, v0
            v_mov_b32 v9, 0
            v_mov_b32 v10, 1
            v_bfe_u32 v5, v0, 3, 3
            v_bfe_u32 v6, v0, 4, 1
            v_lshlrev_b32 v6, 2, v6
            v_and_b32 {v(vOWD)}, 7, v0
            v_xor_b32 {v(vOWD)}, {v(vOWD)}, v6
            v_lshlrev_b32 {v(vOWD)}, 4, {v(vOWD)}
            v_lshl_add_u32 {v(vOWD)}, v5, 10, {v(vOWD)}
            s_lshr_b32 {s(sT0)}, {s(sW)}, 1
            s_lshl_b32 {s(sT0)}, {s(sT0)}, 17
            s_and_b32 {s(sT1)}, {s(sW)}, 1
            s_lshl_b32 {s(sT1)}, {s(sT1)}, 13
            s_add_u32 {s(sT0)}, {s(sT0)}, {s(sT1)}
            s_lshl_b32 {s(sT1)}, {s(sOC)}, 7
            s_add_u32 {s(sT0)}, {s(sT0)}, {s(sT1)}
            v_add_u32 {v(vOWD)}, {s(sT0)}, {v(vOWD)}
            """)
        if t == 36:
            poll2_check()
        if t == 42:
            kv_sum()
        if t == 48:
            a(f"""
            v_and_b32 v9, 31, v0
            v_min_u32 v9, 16, v9
            v_bfe_u32 v10, v0, 5, 1
            v_mad_u32_u24 v9, v10, 17, v9
            s_mul_i32 {s(sT0)}, {s(sH)}, 544
            s_add_u32 {s(sT0)}, {s(sT0)}, {L_KVS}
            v_lshl_add_u32 v9, v9, 4, {s(sT0)}
            """)
        if t == 52:
            a(mf32(DB, KF, vPQ, '0'))
        if t == 54:
            ob_finish()
        a("s_setprio 0")
        if t == 12:
            a(f"""
            s_waitcnt vmcnt(0)
            s_barrier
            s_lshl_b32 {s(sT9)}, {s(sW)}, 10
            s_lshl1_add_u32 {s(sT10)}, {s(sOB_)}, {s(sH)}
            s_lshl2_add_u32 {s(sT10)}, {s(sT10)}, {s(sTQ)}
            s_lshl_b32 {s(sT10)}, {s(sT10)}, 13
            s_cmp_eq_u32 {s(sW)}, {o['pub']}
            s_cbranch_scc0 L_nosig2
            s_and_b32 {s(sT0)}, s2, 0x18
            s_lshl_b32 {s(sT0)}, {s(sT0)}, 3
            s_mov_b64 exec, 1
            buffer_atomic_add v10, v9, {s(rDBG,4)}, {s(sT0)} offen offset:4 sc1
            s_mov_b64 exec, -1
            """)
            a.label("L_nosig2")
            stamp("X3")
        if t < 62:
            a(f"s_mov_b64 exec, {s(sVM,2)}")
            a(rdV(vVb[0], t + 1, 1))
            a(rdV(vVa[0], t + 2, 0))
            a(rdV(vVb[1], t + 2, 1))
            a(rdV(vVa[1], t + 3, 0))
            a("s_mov_b64 exec, -1")
            a(rdK(vK[0], t + 3))
            if t + 4 < 64:
                a(rdK(vK[1], t + 4))
        else:
            a(f"s_mov_b64 exec, {s(sVM,2)}")
            a(rdV(vVb[0], 63, 1))
            a("s_mov_b64 exec, -1")
        if t == 14:
            for st_ in (13, 14, 15):
                dma_w(st_)
        if t == 32:
            poll2_issue()
        if t == 60:
            load_o(OBF, WS_OB)
        a("s_waitcnt lgkmcnt(0)")
        if t == 50:
            a("s_barrier")
            stamp("X4")
            a(f"ds_read_b128 {v(KF,4)}, v9")
            for st_ in range(13):
                dma_w(st_)
            a("s_waitcnt lgkmcnt(0)")
    a(smf(vVb[0], vS[1] + 8))
    stamp("attn1c", cyc=True)
    stamp("attn1")
    vOW = [5, 6]
    a(f"""
    v_bfe_u32 v7, v0, 2, 2
    v_bfe_u32 v8, v0, 5, 1
    v_lshl_add_u32 v9, v8, 2, v7
    v_lshlrev_b32 v9, 7, v9
    v_bfe_u32 v10, v0, 3, 1
    v_lshl_add_u32 v9, v10, 6, v9
    v_bfe_u32 v10, v0, 4, 1
    v_lshl_add_u32 v9, v10, 5, v9
    v_and_b32 v10, 3, v0
    v_lshl_add_u32 v9, v10, 3, v9
    s_lshl_b32 {s(sT0)}, {s(sTQ)}, 11
    v_add_u32 {v(vOW[0])}, {s(sT0)}, v9
    v_xor_b32 {v(vOW[1])}, 64, {v(vOW[0])}
    """)
    a(f"""
    v_add_f32 v9, |{v(vO)}|, |{v(vO+1)}|
    v_add_f32 v10, |{v(vO+2)}|, |{v(vO+3)}|
    v_add_f32 v9, v9, |{v(vO+4)}|
    v_add_f32 v10, v10, |{v(vO+5)}|
    v_add_f32 v9, v9, |{v(vO+6)}|
    v_add_f32 v10, v10, |{v(vO+7)}|
    v_add_f32 v9, v9, {v(vO+8)}
    v_add_f32 v9, v9, v10
    v_cmp_ngt_f32 vcc, {H(f2u(2.0**115))}, v9
    s_nop 0
    s_cbranch_vccnz L_fallback
    """)
    a.label("L_norm")
    a(f"""
    v_rcp_f32 v10, {v(vO+8)}
    s_add_u32 {s(sT0)}, {s(sOOFF)}, {WS_OA}
    v_mul_f32 v10, v10, {v(vGT)}
    v_mov_b32 v11, v10
    """)
    for i in range(0, 8, 2):
        a(f"v_pk_mul_f32 {v(vO+i,2)}, {v(vO+i,2)}, v[10:11]")
    for i in range(4):
        a(f"v_cvt_pk_bf16_f32 {v(vQ+i)}, {v(vO+2*i)}, {v(vO+2*i+1)}")
    a(f"buffer_store_dwordx4 {v(vQ,4)}, {v(vL16)}, {s(rWS,4)}, {s(sT0)} offen sc1")
    a("s_waitcnt vmcnt(1)\ns_barrier")
    stamp("X5")

    accB = [56, 72]
    acc = [224, 240]
    WB = 88
    WA = 160
    OAF = 24
    vOWh = [7, 8]
    vOWm = [9, 10]
    a(f"""
    v_add_u32 {v(vOWh[0])}, 0x10000, {v(vOW[0])}
    v_add_u32 {v(vOWh[1])}, 0x10000, {v(vOW[1])}
    v_add_u32 {v(vOWm[0])}, 0x20000, {v(vOW[0])}
    v_add_u32 {v(vOWm[1])}, 0x20000, {v(vOW[1])}
    """)

    def rdW(dst, st_):
        L = []
        b = wbase(st_)
        regs_ = [vOW, vOWh, vOWm][b >> 16]
        for ct in range(2):
            for u in range(2):
                L.append(f"ds_read_b64_tr_b16 {v(dst+4*ct+2*u,2)}, {v(regs_[ct])} offset:{(b & 0xffff) + 1024*u}")
        return L

    def poison_any(F, lab_ok):
        a(f"v_max3_u32 v11, {v(F)}, {v(F+1)}, {v(F+2)}")
        a(f"v_max_u32 v11, v11, {v(F+3)}")
        for i in range(4, 32, 2):
            a(f"v_max3_u32 v11, v11, {v(F+i)}, {v(F+i+1)}")
        a(f"v_cmp_eq_u32 vcc, -1, v11\ns_nop 0\ns_cbranch_vccz {lab_ok}")

    a(f"s_mov_b32 {s(sCNT)}, {SPIN}")
    a.label("L_chkB")
    poison_any(OBF, "L_okB")
    load_o(OBF, WS_OB)
    a(f"""
    s_sub_u32 {s(sCNT)}, {s(sCNT)}, 1
    s_cmp_eq_u32 {s(sCNT)}, 0
    s_waitcnt vmcnt(0)
    s_cbranch_scc0 L_chkB
    """)
    a.label("L_okB")
    for st_ in range(3):
        for ln in rdW(WB + 8 * st_, st_):
            a(ln)
    for st_ in range(8):
        nxt = st_ + 3
        if nxt < 8:
            R_ = rdW(WB + 8 * (nxt % 4), nxt)
        else:
            R_ = rdW(WA + 8 * (nxt - 8), nxt)
        for ln in R_:
            a(ln)
        a("s_waitcnt lgkmcnt(12)")
        for ct in range(2):
            a(mf32(accB[ct], WB + 8 * (st_ % 4) + 4 * ct, OBF + 4 * st_, '0' if st_ == 0 else accB[ct]))
        if st_ == o.get('oa_at', 5):
            load_o(OAF, WS_OA)
    for st_ in range(11, 16):
        for ln in rdW(WA + 8 * (st_ - 8), st_):
            a(ln)
    a(f"""
    v_and_b32 v12, 31, v0
    s_lshl_b32 {s(sT0)}, {s(sH)}, 5
    s_lshl_b32 {s(sT1)}, {s(sTQ)}, 6
    s_add_u32 {s(sT0)}, {s(sT0)}, {s(sT1)}
    v_add_u32 v12, {s(sT0)}, v12
    v_mul_u32_u24 v12, 272, v12
    v_bfe_u32 v13, v0, 5, 1
    v_lshl_add_u32 v12, v13, 7, v12
    v_lshrrev_b32 v13, 3, v0
    v_and_b32 v14, 7, v0
    v_lshlrev_b32 v14, 4, v14
    v_lshl_add_u32 v5, v13, 10, v14
    v_mul_u32_u24 v13, 272, v13
    v_add_u32 v13, v13, v14
    s_mov_b32 {s(sCNT)}, {SPIN}
    s_waitcnt lgkmcnt(0)
    s_barrier
    """)
    stamp("X6")
    a.label("L_tryA")
    for st_ in range(8):
        a(f"""
        s_waitcnt vmcnt({7-st_})
        v_cmp_eq_u32 vcc, -1, {v(OAF+4*st_)}
        s_nop 0
        s_cbranch_vccnz L_retryA
        """)
        for ct in range(2):
            a(mf32(acc[ct], WA + 8 * st_ + 4 * ct, OAF + 4 * st_, accB[ct] if st_ == 0 else acc[ct]))
    a(f"""
    s_nop 11
    v_cmp_u_f32 vcc, {v(acc[1])}, {v(acc[1])}
    s_nop 0
    s_cbranch_vccnz L_nanA
    """)
    a.label("L_okA")
    stamp("outmm")
    for ct in range(2):
        for qd in range(4):
            a(f"ds_write_b128 v12, {v(acc[ct]+4*qd,4)} offset:{(4*ct+qd)*16}")
    a(f"""
    s_lshl_b32 {s(sT0)}, {s(sOB_)}, 16
    s_lshl_b32 {s(sT1)}, {s(sOC)}, 7
    s_add_u32 {s(sT0)}, {s(sT0)}, {s(sT1)}
    s_waitcnt lgkmcnt(0)
    s_barrier
    """)
    RD = 24
    for kq in range(4):
        for hf in range(2):
            a(f"ds_read_b128 {v(RD+8*kq+4*hf,4)}, v13 offset:{kq*64*272+128*hf}")
    a("s_waitcnt lgkmcnt(4)")
    for i in range(0, 8, 2):
        a(f"v_pk_add_f32 {v(RD+i,2)}, {v(RD+i,2)}, {v(RD+8+i,2)}")
    a("s_waitcnt lgkmcnt(0)")
    for i in range(0, 8, 2):
        a(f"v_pk_add_f32 {v(RD+16+i,2)}, {v(RD+16+i,2)}, {v(RD+24+i,2)}")
    for i in range(0, 8, 2):
        a(f"v_pk_add_f32 {v(RD+i,2)}, {v(RD+i,2)}, {v(RD+16+i,2)}")
    for i in range(4):
        a(f"v_cvt_pk_bf16_f32 {v(RD+8+i)}, {v(RD+2*i)}, {v(RD+2*i+1)}")
    a(f"buffer_store_dwordx4 {v(RD+8,4)}, v5, {s(rOUT,4)}, {s(sT0)} offen")
    if diag:
        a("s_waitcnt vmcnt(0)")
        stamp("end")
        a(f"""
        v_writelane_b32 {v(vST)}, {s(sCNT)}, 31
        s_lshl3_add_u32 {s(sT0)}, s2, {s(sW)}
        s_lshl_b32 {s(sT0)}, {s(sT0)}, 8
        s_add_u32 {s(sT0)}, {s(sT0)}, {WS_DIAG}
        v_lshrrev_b32 v5, 2, {v(vL16)}
        buffer_store_dword {v(vST)}, v5, {s(rWS,4)}, {s(sT0)} offen
        """)
    if o.get('probe'):
        a("s_waitcnt vmcnt(0)")
        stamp("end")
        if o['probe'] == 'none':
            a("s_mov_b32 s95, s96")
        a(f"""
        s_sub_u32 s95, s95, s96
        s_mul_i32 s95, s95, {o.get('mult', 10)}
        s_add_u32 s95, s95, 6000
        """)
        a.label("L_pad")
        a(f"""
        s_memrealtime {s(sST,2)}
        s_waitcnt lgkmcnt(0)
        s_sub_u32 {s(sST)}, {s(sST)}, s96
        s_cmp_lt_u32 {s(sST)}, s95
        s_cbranch_scc1 L_pad
        """)
    a.label("L_end")
    a("s_endpgm")

    a.label("L_nanA")
    poison_any(OAF, "L_okA")
    a.label("L_retryA")
    a(f"""
    s_sub_u32 {s(sCNT)}, {s(sCNT)}, 1
    s_cmp_eq_u32 {s(sCNT)}, 0
    s_waitcnt vmcnt(0)
    s_nop 15
    s_cbranch_scc1 L_okA
    """)
    load_o(OAF, WS_OA)
    a("s_branch L_tryA")

    a.label("L_fallback")
    a.c("true row max, then the same accumulation, K/V read from the global image")
    a(f"""
    v_mov_b32 v10, 0xff800000
    v_mov_b32 v11, 0xff800000
    s_mov_b32 {s(sT0)}, 0
    """)
    a.label("L_fb1")
    a(f"""
    buffer_load_dwordx4 {v(vK[0],4)}, {v(vL16)}, {s(rWS,4)}, {s(sT0)} offen sc1
    s_waitcnt vmcnt(0)
    {mf32(vS[0], vK[0], vQ, '0')}
    s_nop 11
    """)
    rowmax(vS[0], 10, False)
    a(f"""
    s_add_u32 {s(sT0)}, {s(sT0)}, 2048
    s_cmp_lt_u32 {s(sT0)}, 131072
    s_cbranch_scc1 L_fb1
    """)
    finish_max(10, 0.0)
    for i in range(0, 16, 2):
        a(f"v_mov_b64 {v(vO+i,2)}, 0")
    a(f"s_mov_b32 {s(sT0)}, 0")
    a.label("L_fb2")
    a(f"""
    buffer_load_dwordx4 {v(vK[0],4)}, {v(vL16)}, {s(rWS,4)}, {s(sT0)} offen sc1
    s_mov_b64 exec, {s(sVM,2)}
    buffer_load_dwordx4 {v(vVa[0],4)}, {v(vL16)}, {s(rWS,4)}, {s(sT0)} offen offset:1024 sc1
    buffer_load_dwordx4 {v(vVb[0],4)}, {v(vL16)}, {s(rWS,4)}, {s(sT0)} offen offset:1280 sc1
    s_mov_b64 exec, -1
    s_waitcnt vmcnt(0)
    {mf32(vS[0], vK[0], vQ, vNM)}
    s_nop 11
    """)
    for i in range(16):
        a(ex(vS[0] + i))
    a(f"""
    s_nop 1
    {smf(vVa[0], vS[0])}
    {smf(vVb[0], vS[0]+8)}
    s_add_u32 {s(sT0)}, {s(sT0)}, 2048
    s_cmp_lt_u32 {s(sT0)}, 131072
    s_nop 7
    s_cbranch_scc1 L_fb2
    s_nop 15
    s_branch L_norm
    """)
    return a


HEADER = open('cdna_kernels/' + NAME + '.s.ref').read().split('; Override launch geometry')[0]


def wrap(a):
    k = NAME + '_kernel'
    return (HEADER + f"; @launch grid=(256,1,1) block=(512,1,1) lds={LDS_BYTES}\n"
            + f""".amdgcn_target "amdgcn-amd-amdhsa--gfx950"
.text
.globl {k}
.p2align 8
.type {k},@function
{k}:
""" + a.text() + f""".section .rodata,"a"
.p2align 6
.amdhsa_kernel {k}
  .amdhsa_next_free_vgpr 256
  .amdhsa_next_free_sgpr 100
  .amdhsa_accum_offset 256
  .amdhsa_group_segment_fixed_size 0
  .amdhsa_kernarg_size 96
  .amdhsa_user_sgpr_count 2
  .amdhsa_user_sgpr_kernarg_segment_ptr 1
  .amdhsa_system_sgpr_workgroup_id_x 1
.end_amdhsa_kernel
""")


if __name__ == '__main__':
    import argparse, json
    ap = argparse.ArgumentParser()
    ap.add_argument('out')
    ap.add_argument('--diag', action='store_true')
    ap.add_argument('--opts', default='{}')
    args = ap.parse_args()
    a = gen(args.diag, json.loads(args.opts))
    bad = check(a.lines)
    for b in bad:
        print("HAZARD need", b[0], "have", b[1], "|", b[2], "->", b[3])
    open(args.out, 'w').write(wrap(a))
    print("written", args.out, len(a.lines), "lines")
```

```python
import sys, struct
sys.path.insert(0, 'gen')
from asmlib import *

NAME = 'gated_mix__grouped_kv_mqa__linear_attn_block__prompt'


def f2u(x):
    return struct.unpack('<I', struct.pack('<f', x))[0]


def H(x):
    return f"0x{x & 0xffffffff:08x}"


WS_KV = 0
WS_G = 0x20000
WS_KVP = 0x28000
WS_OA = 0x100000
WS_OB = 0x300000
WS_SIZE = 0x500000
WS_DIAG = 0x500000
MISC = 131072
L_WKV = MISC
L_PART = MISC + 16384
L_GP = MISC + 24576
L_SCR = MISC
L_KVS = MISC + 28672
LDS_BYTES = 163840
sW = 3
pX, pWQ, pWK, pWV, pWO, pBX, pWQKV, pBWO, pGATE, pOUT, pDBG, pWS = 4, 6, 8, 10, 12, 14, 16, 18, 20, 22, 24, 26
rX, rW1, rWKV, rGATE, rWS, rDBG, rOUT, rWO, rBWO = 28, 32, 36, 40, 44, 48, 52, 56, 60
sTB, sHP, sCH, sWSTEP, sOX, sOW, sW2K = 64, 65, 66, 67, 68, 69, 70
sT0, sT1, sT2, sT3, sKVT, sT5, sT6, sSTR, sT8 = 71, 72, 73, 74, 75, 76, 77, 78, 79
sVM = 80
sCNT = 82
sOOFF = 83
sOB_, sOC = 84, 85
sSV = 86
sST = 88
sH, sTQ = 90, 91
sT9, sT10 = 92, 93
vL16, vL16H, vIDX, vGT = 1, 2, 3, 4
vQ, vPQ = 16, 20
vNM, vO = 24, 40
vS = [56, 72]
vK = [88, 92]
vVa = [96, 104]
vVb = [100, 108]
vST = 15
aQA, aQB, aKB, aVB = [24, 28], [32, 36], [40, 44], [48, 52]
vEPS = 56
SET = [128, 176]
vX0, vX1, vW0, vW1 = 224, 225, 226, 227
vXR = [228, 229, 230, 231]
vWR = [232, 233]
vR, vG = 7, 8

LOG2E = 1.4426950408889634
QSCALE = 0.25 * LOG2E
EPS = 1e-6
MARGIN = 60.0
SPIN = 1 << 15


def gen(diag=False, opts=None):
    o = dict(pub=7, poll=1, first=2)
    if opts:
        o.update(opts)
    a = Asm()
    nst = [0]

    def stamp(name, cyc=False):
        if o.get('probe') == name:
            a(f"s_memrealtime {s(sST,2)}\ns_waitcnt lgkmcnt(0)\ns_mov_b32 s95, {s(sST)}")
        if not diag:
            return
        k = nst[0]
        nst[0] += 1
        a.c(f"stamp {k} {name}")
        a(f"{'s_memtime' if cyc else 's_memrealtime'} {s(sST,2)}")
        a("s_waitcnt lgkmcnt(0)")
        a(f"v_writelane_b32 {v(vST)}, {s(sST)}, {k}")

    def srd(r, p, n):
        a(f"s_mov_b32 {s(r)}, {s(p)}\ns_mov_b32 {s(r+1)}, {s(p+1)}")

    def srdc(r, n):
        a(f"s_mov_b32 {s(r+2)}, {n}\ns_mov_b32 {s(r+3)}, 0x20000")

    def mf16(d, A, B, C):
        C = C if isinstance(C, str) else v(C, 4)
        return f"v_mfma_f32_16x16x32_bf16 {v(d,4)}, {v(A,4)}, {v(B,4)}, {C}"

    def mf32(d, A, B, C):
        C = C if isinstance(C, str) else v(C, 16)
        return f"v_mfma_f32_32x32x16_bf16 {v(d,16)}, {v(A,4)}, {v(B,4)}, {C}"

    def smf(A, B):
        return f"v_smfmac_f32_32x32x32_bf16 {v(vO,16)}, {v(A,4)}, {v(B,8)}, {v(vIDX)}"

    a(f"""
    s_cmp_ge_u32 s2, 256
    s_cbranch_scc1 L_end
    {'s_memrealtime s[96:97]' if o.get('probe') else ''}
    s_load_dwordx16 s[4:19], s[0:1], 0
    s_load_dwordx8 s[20:27], s[0:1], 64
    v_lshrrev_b32 v5, 6, v0
    v_and_b32 v6, 63, v0
    v_readfirstlane_b32 {s(sW)}, v5
    v_lshlrev_b32 {v(vL16)}, 4, v6
    s_and_b32 {s(sT0)}, s2, 7
    s_lshr_b32 {s(sT1)}, s2, 3
    s_lshr_b32 {s(sT2)}, s2, 6
    s_and_b32 {s(sT3)}, {s(sT1)}, 7
    s_lshr_b32 {s(sTB)}, {s(sT0)}, 1
    s_lshl2_add_u32 {s(sTB)}, {s(sTB)}, {s(sT2)}
    s_and_b32 {s(sHP)}, {s(sT0)}, 1
    s_lshl3_add_u32 {s(sHP)}, {s(sHP)}, {s(sT3)}
    s_lshl1_add_u32 {s(sCH)}, {s(sT2)}, {s(sT3)}
    s_and_b32 {s(sCH)}, {s(sCH)}, 7
    s_lshl2_add_u32 {s(sOB_)}, {s(sT0)}, {s(sT2)}
    s_mov_b32 {s(sOC)}, {s(sT3)}
    v_and_b32 {v(vR)}, 15, v0
    v_lshrrev_b32 {v(vG)}, 4, v6
    s_lshr_b32 {s(sKVT)}, {s(sHP)}, 1
    s_lshl3_add_u32 {s(sKVT)}, {s(sTB)}, {s(sKVT)}
    s_lshl_b32 {s(sKVT)}, {s(sKVT)}, 4
    s_lshl_b32 {s(sT6)}, {s(sW)}, 7
    s_lshl_b32 {s(sT5)}, {s(sKVT)}, 10
    s_add_u32 {s(sT5)}, {s(sT5)}, {s(sT6)}
    s_lshl_b32 {s(sW2K)}, {s(sW)}, 11
    v_lshlrev_b32 v9, 4, {v(vG)}
    v_lshl_add_u32 v10, {v(vR)}, 10, v9
    s_add_u32 m0, {s(sW2K)}, {L_WKV}
    """)
    if diag:
        a(f"v_mov_b32 {v(vST)}, 0")
    srdc(rX, 2097152)
    srdc(rWKV, 16384)
    srdc(rGATE, 1024)
    a(f"""
    v_and_b32 v11, 7, v6
    v_xor_b32 v11, v11, {v(vG)}
    v_lshlrev_b32 v11, 4, v11
    v_lshrrev_b32 v12, 3, v6
    v_lshl_add_u32 v11, v12, 10, v11
    s_lshl3_add_u32 {s(sT8)}, {s(sTB)}, {s(sW)}
    s_lshl_b32 {s(sT8)}, {s(sT8)}, 14
    v_add_u32 {v(vX0)}, {s(sT8)}, v11
    v_xor_b32 {v(vX1)}, 64, {v(vX0)}
    v_add_u32 {v(vX1)}, 7168, {v(vX1)}
    s_and_b32 {s(sT8)}, {s(sHP)}, 1
    s_waitcnt lgkmcnt(0)
    """)
    stamp("start")
    a(f"""
    s_cmp_eq_u32 {s(sT8)}, 0
    s_cselect_b32 {s(rWKV)}, {s(pWK)}, {s(pWV)}
    s_cselect_b32 {s(rWKV+1)}, {s(pWK+1)}, {s(pWV+1)}
    """)
    srd(rX, pX, 0)
    srd(rGATE, pGATE, 0)
    xk = [60, 64]
    gk = [68, 72]
    wk = [76, 80]
    dk, dg = 84, 88
    a(f"""
    buffer_load_dwordx4 {v(vL16)}, {s(rWKV,4)}, {s(sW2K)} offen lds
    buffer_load_dwordx4 {v(vL16)}, {s(rWKV,4)}, {s(sW2K)} offen offset:1024 lds
    buffer_load_dwordx4 {v(xk[0],4)}, v10, {s(rX,4)}, {s(sT5)} offen
    buffer_load_dwordx4 {v(xk[1],4)}, v10, {s(rX,4)}, {s(sT5)} offen offset:64
    buffer_load_dwordx4 {v(gk[0],4)}, v9, {s(rGATE,4)}, {s(sT6)} offen
    buffer_load_dwordx4 {v(gk[1],4)}, v9, {s(rGATE,4)}, {s(sT6)} offen offset:64
    """)
    a(f"""
    s_lshr_b32 {s(sT0)}, {s(sW)}, 1
    s_cmp_eq_u32 {s(sT0)}, 0
    s_cselect_b32 {s(rW1)}, {s(pWQ)}, {s(pWQKV)}
    s_cselect_b32 {s(rW1+1)}, {s(pWQ+1)}, {s(pWQKV+1)}
    s_cselect_b32 {s(sSTR)}, 1, 3
    s_lshl_b32 {s(rW1+2)}, {s(sSTR)}, 19
    s_lshl_b32 {s(sSTR)}, {s(sSTR)}, 10
    s_mov_b32 {s(rW1+3)}, 0x20000
    s_max_u32 {s(sT0)}, {s(sT0)}, 1
    s_sub_u32 {s(sT0)}, {s(sT0)}, 1
    s_lshl_b32 {s(sT0)}, {s(sT0)}, 10
    s_lshl_b32 {s(sT1)}, {s(sHP)}, 6
    s_add_u32 {s(sT0)}, {s(sT0)}, {s(sT1)}
    s_and_b32 {s(sT1)}, {s(sW)}, 1
    s_lshl_b32 {s(sT1)}, {s(sT1)}, 5
    s_mul_i32 {s(sT1)}, {s(sT1)}, {s(sSTR)}
    s_add_u32 {s(sT0)}, {s(sT0)}, {s(sT1)}
    s_lshl_b32 {s(sWSTEP)}, {s(sSTR)}, 6
    v_lshrrev_b32 v11, 5, v6
    v_lshlrev_b32 v11, 1, v11
    v_and_b32 v12, 3, v6
    v_xor_b32 v11, v11, v12
    v_lshlrev_b32 v11, 4, v11
    v_lshrrev_b32 v12, 2, v6
    v_mad_u32_u24 v11, v12, {s(sSTR)}, v11
    v_add_u32 {v(vW0)}, {s(sT0)}, v11
    s_lshl_b32 {s(sT1)}, {s(sSTR)}, 4
    s_sub_u32 {s(sT1)}, {s(sT1)}, 1024
    v_add_u32 {v(vW1)}, {s(sT1)}, {v(vW0)}
    """)

    def dma_chunk(it):
        slot = it % 4
        a(f"""
        s_lshl_b32 {s(sOX)}, {s(sCH)}, 7
        s_add_u32 m0, {s(sW2K)}, {slot*32768}
        s_mul_i32 {s(sOW)}, {s(sCH)}, {s(sWSTEP)}
        buffer_load_dwordx4 {v(vX0)}, {s(rX,4)}, {s(sOX)} offen lds
        buffer_load_dwordx4 {v(vX1)}, {s(rX,4)}, {s(sOX)} offen offset:1024 lds
        s_add_u32 m0, {s(sW2K)}, {slot*32768+16384}
        s_add_u32 {s(sCH)}, {s(sCH)}, 1
        buffer_load_dwordx4 {v(vW0)}, {s(rW1,4)}, {s(sOW)} offen lds
        buffer_load_dwordx4 {v(vW1)}, {s(rW1,4)}, {s(sOW)} offen offset:1024 lds
        s_and_b32 {s(sCH)}, {s(sCH)}, 7
        """)

    first = o['first']
    for it in range(first):
        dma_chunk(it)
    srd(rWS, pWS, 0)
    srdc(rWS, WS_SIZE + (0x100000 if diag else 0))
    srd(rDBG, pDBG, 0)
    srdc(rDBG, 256)
    srd(rOUT, pOUT, 0)
    srdc(rOUT, 2097152)
    srd(rWO, pWO, 0)
    srdc(rWO, 524288)
    srd(rBWO, pBWO, 0)
    srdc(rBWO, 524288)
    a(f"""
    s_lshr_b32 {s(sH)}, {s(sW)}, 2
    s_and_b32 {s(sTQ)}, {s(sW)}, 3
    v_add_u32 {v(vL16H)}, 0x10000, {v(vL16)}
    v_mov_b32 {v(vIDX)}, 0xdddddddd
    s_mov_b32 {s(sVM)}, 0xffff
    s_mov_b32 {s(sVM+1)}, 0xffff
    v_lshrrev_b32 v11, 1, {v(vR)}
    v_xor_b32 v11, v11, {v(vG)}
    v_lshlrev_b32 v11, 4, v11
    v_lshl_add_u32 v11, {v(vR)}, 7, v11
    s_lshl_b32 {s(sT0)}, {s(sTQ)}, 12
    v_add_u32 {v(vXR[0])}, {s(sT0)}, v11
    v_xor_b32 {v(vXR[1])}, 64, {v(vXR[0])}
    v_add_u32 {v(vXR[2])}, 0x10000, {v(vXR[0])}
    v_add_u32 {v(vXR[3])}, 0x10000, {v(vXR[1])}
    v_bfe_u32 v11, v6, 2, 2
    v_lshl_add_u32 v11, {v(vG)}, 3, v11
    v_and_b32 v12, 3, v6
    v_lshlrev_b32 v12, 3, v12
    v_lshl_add_u32 v13, v11, 5, v12
    v_lshl_add_u32 v11, v11, 6, v12
    v_and_b32 v12, 1, {v(vG)}
    v_xor_b32 v12, {s(sH)}, v12
    v_lshl_add_u32 v11, v12, 5, v11
    v_add_u32 {v(vWR[0])}, 16384, v11
    v_add_u32 {v(vWR[1])}, 0x14000, v11
    s_add_u32 {s(sT0)}, {s(sW2K)}, {L_WKV}
    v_add_u32 v13, {s(sT0)}, v13
    s_lshl2_add_u32 {s(sT0)}, {s(sTB)}, {s(sTQ)}
    s_lshl_b32 {s(sT0)}, {s(sT0)}, 5
    s_lshl1_add_u32 {s(sT1)}, {s(sHP)}, {s(sH)}
    s_add_u32 {s(sT0)}, {s(sT0)}, {s(sT1)}
    s_lshl_b32 {s(sOOFF)}, {s(sT0)}, 10
    """)
    for i in range(4):
        a(f"v_mov_b32 {v(vEPS+i)}, {H(f2u(EPS))}")
    if o.get('probe') == 'skew':
        a(f"""
        s_cmp_eq_u32 {s(sW)}, 0
        s_cbranch_scc0 L_nosk
        v_mov_b32 v240, s96
        v_not_b32 v241, v240
        v_mov_b32 v242, 0
        s_mov_b64 exec, 1
        buffer_atomic_umax v240, v242, {s(rDBG,4)}, 0 offen offset:8 sc1
        buffer_atomic_umax v241, v242, {s(rDBG,4)}, 0 offen offset:12 sc1
        s_mov_b64 exec, -1
        s_waitcnt vmcnt(0)
        """)
        a.label("L_nosk")
    a(f"s_waitcnt vmcnt({4*first})")
    stamp("kvloads")
    a(f"""
    ds_read_b64_tr_b16 {v(wk[0],2)}, v13
    ds_read_b64_tr_b16 {v(wk[0]+2,2)}, v13 offset:128
    ds_read_b64_tr_b16 {v(wk[1],2)}, v13 offset:1024
    ds_read_b64_tr_b16 {v(wk[1]+2,2)}, v13 offset:1152
    {mf16(dg, gk[0], xk[0], '0')}
    {mf16(dg, gk[1], xk[1], dg)}
    s_lshl_b32 {s(sT0)}, {s(sW)}, 10
    s_add_u32 {s(sT0)}, {s(sT0)}, {L_PART}
    v_add_u32 v11, {s(sT0)}, {v(vL16)}
    s_lshl_b32 {s(sT0)}, {s(sW)}, 8
    s_add_u32 {s(sT0)}, {s(sT0)}, {L_GP}
    v_lshl_add_u32 v12, v6, 2, {s(sT0)}
    s_and_b32 {s(sT8)}, {s(sHP)}, 1
    s_cmp_eq_u32 {s(sT8)}, 0
    s_waitcnt lgkmcnt(0)
    s_cbranch_scc0 L_isV
    {mf16(dk, wk[0], xk[0], '0')}
    {mf16(dk, wk[1], xk[1], dk)}
    s_branch L_kvj
    """)
    a.label("L_isV")
    a(f"""
    {mf16(dk, xk[0], wk[0], '0')}
    {mf16(dk, xk[1], wk[1], dk)}
    """)
    a.label("L_kvj")
    for it in range(first, 4):
        dma_chunk(it)
    if first == 4:
        a("s_nop 7")
    a(f"""
    ds_write_b128 v11, {v(dk,4)}
    ds_write_b32 v12, {v(dg)}
    s_waitcnt vmcnt(12) lgkmcnt(0)
    s_barrier
    """)
    stamp("B0")

    def reads(it):
        slot = it % 4
        hi = slot // 2
        base = (slot % 2) * 32768
        st = SET[it % 2]
        L = []
        for ks in range(2):
            b = st + 24 * ks
            L.append(f"ds_read_b128 {v(b,4)}, {v(vXR[ks+2*hi])} offset:{base}")
            for mt in range(4):
                for u in range(2):
                    L.append(f"ds_read_b64_tr_b16 {v(b+8+4*mt+2*u,2)}, {v(vWR[hi])} offset:{base+mt*4096+ks*2048+u*256}")
                if mt == 0:
                    L.append(f"ds_read_b128 {v(b+4,4)}, {v(vXR[ks+2*hi])} offset:{base+2048}")
        return L

    def mfmas(it, ks):
        b = SET[it % 2] + 24 * ks
        x = [b, b + 4]
        W = [b + 8 + 4 * m for m in range(4)]
        f = (it == 0 and ks == 0)
        L = []
        for sub in range(2):
            L.append(mf16(aQA[sub], W[0], x[sub], '0' if f else aQA[sub]))
        for sub in range(2):
            L.append(mf16(aQB[sub], W[1], x[sub], vEPS if f else aQB[sub]))
        for sub in range(2):
            L.append(mf16(aKB[sub], x[sub], W[2], vEPS if f else aKB[sub]))
        for sub in range(2):
            L.append(mf16(aVB[sub], x[sub], W[3], '0' if f else aVB[sub]))
        return L

    for ln in reads(0):
        a(ln)
    P = 60
    a(f"s_cmp_eq_u32 {s(sW)}, {o['pub']}\ns_cbranch_scc0 L_nopub")
    a(f"v_add_u32 v11, {L_PART}, {v(vL16)}\nv_lshlrev_b32 v12, 2, v6\nv_add_u32 v12, {L_GP}, v12")
    for i in range(8):
        a(f"ds_read_b128 {v(P+4*i,4)}, v11 offset:{1024*i}")
    for i in range(8):
        a(f"ds_read_b32 {v(96+i)}, v12 offset:{256*i}")
    a(f"""
    v_lshrrev_b32 v11, 1, {v(vG)}
    v_lshlrev_b32 v11, 9, v11
    v_lshl_add_u32 v11, {v(vR)}, 4, v11
    v_and_b32 v12, 1, {v(vG)}
    v_lshl_add_u32 v11, v12, 3, v11
    s_lshr_b32 {s(sT0)}, {s(sKVT)}, 5
    s_lshl_b32 {s(sT0)}, {s(sT0)}, 11
    s_and_b32 {s(sT1)}, {s(sKVT)}, 16
    s_lshl_b32 {s(sT1)}, {s(sT1)}, 4
    s_add_u32 {s(sT0)}, {s(sT0)}, {s(sT1)}
    s_lshl_b32 {s(sT1)}, {s(sT8)}, 10
    s_add_u32 {s(sT0)}, {s(sT0)}, {s(sT1)}
    s_lshl_b32 {s(sT1)}, {s(sKVT)}, 2
    s_add_u32 {s(sT1)}, {s(sT1)}, {WS_G}
    v_lshlrev_b32 v12, 2, {v(vR)}
    s_waitcnt lgkmcnt(0)
    """)
    for st_ in (4, 8, 16):
        for i in range(0, 32, 2 * st_):
            a(f"v_pk_add_f32 {v(P+i,2)}, {v(P+i,2)}, {v(P+i+st_,2)}")
            a(f"v_pk_add_f32 {v(P+i+2,2)}, {v(P+i+2,2)}, {v(P+i+st_+2,2)}")
    a(f"""
    v_cvt_pk_bf16_f32 {v(P)}, {v(P)}, {v(P+1)}
    v_cvt_pk_bf16_f32 {v(P+1)}, {v(P+2)}, {v(P+3)}
    buffer_store_dwordx2 {v(P,2)}, v11, {s(rWS,4)}, {s(sT0)} offen sc1
    v_pk_add_f32 v[96:97], v[96:97], v[98:99]
    v_pk_add_f32 v[100:101], v[100:101], v[102:103]
    v_pk_add_f32 v[96:97], v[96:97], v[100:101]
    v_add_f32 v96, v96, v97
    v_mul_f32 v96, {H(f2u(-LOG2E))}, v96
    v_exp_f32 v96, v96
    s_nop 0
    v_add_f32 v96, 1.0, v96
    v_rcp_f32 v96, v96
    s_mov_b64 exec, 0xffff
    buffer_store_dword v96, v12, {s(rWS,4)}, {s(sT1)} offen sc1
    s_mov_b64 exec, -1
    """)
    a.label("L_nopub")

    vPL = 14
    for it in range(8):
        a("s_waitcnt lgkmcnt(10)")
        for ln in mfmas(it, 0):
            a(ln)
        if it < 7:
            n = {0: 8, 1: 8, 2: 8, 3: 8, 4: 8, 5: 4, 6: 0}[it]
            a(f"s_waitcnt vmcnt({n}) lgkmcnt(0)")
            if it == 2:
                a(f"""
                s_cmp_eq_u32 {s(sW)}, {o['pub']}
                s_cbranch_scc0 L_nosig1
                s_and_b32 {s(sT0)}, s2, 0x18
                s_lshl_b32 {s(sT0)}, {s(sT0)}, 3
                v_mov_b32 v11, 0
                v_mov_b32 v12, 1
                s_mov_b64 exec, 1
                buffer_atomic_add v12, v11, {s(rDBG,4)}, {s(sT0)} offen sc1
                s_mov_b64 exec, -1
                """)
                a.label("L_nosig1")
            if it == 6:
                a(f"""
                s_cmp_eq_u32 {s(sW)}, {o['poll']}
                s_cbranch_scc0 L_sync1
                s_mov_b32 {s(sCNT)}, {SPIN}
                """)
                a.label("L_poll1")
                a(f"""
                v_cmp_gt_u32 vcc, 64, {v(vPL)}
                s_nop 0
                s_cbranch_vccz L_sync1
                buffer_load_dword {v(vPL)}, v13, {s(rDBG,4)}, 0 offen sc1
                s_sub_u32 {s(sCNT)}, {s(sCNT)}, 1
                s_cmp_eq_u32 {s(sCNT)}, 0
                s_waitcnt vmcnt(0)
                s_cbranch_scc0 L_poll1
                """)
                a.label("L_sync1")
            a("s_barrier")
            stamp(f"B{it+1}")
            if it + 4 < 8:
                dma_chunk(it + 4)
            if it == 5:
                a(f"""
                s_cmp_eq_u32 {s(sW)}, {o['poll']}
                s_cbranch_scc0 L_nopoll1
                v_and_b32 v13, 3, v0
                v_lshlrev_b32 v13, 6, v13
                buffer_load_dword {v(vPL)}, v13, {s(rDBG,4)}, 0 offen sc1
                """)
                a.label("L_nopoll1")
            if it == 6:
                a(f"""
                s_lshl_b32 {s(sT0)}, {s(sW)}, 12
                s_mov_b32 m0, {s(sT0)}
                s_lshl2_add_u32 {s(sT1)}, {s(sTB)}, {s(sTQ)}
                s_lshl_b32 {s(sT1)}, {s(sT1)}, 7
                s_add_u32 {s(sT1)}, {s(sT1)}, {WS_G}
                v_and_b32 v11, 31, v0
                v_lshlrev_b32 v11, 2, v11
                """)
                for q in range(3):
                    if q:
                        a(f"s_add_u32 {s(sT0)}, {s(sT0)}, 32768\ns_mov_b32 m0, {s(sT0)}\ns_nop 0")
                    for i in range(4):
                        a(f"buffer_load_dwordx4 {v(vL16)}, {s(rWS,4)}, {s(sT0)} offen offset:{1024*i} sc1 lds")
                    if q == 0:
                        a(f"buffer_load_dword {v(vGT)}, v11, {s(rWS,4)}, {s(sT1)} offen sc1")
            R_ = reads(it + 1)
            M_ = mfmas(it, 1)
            for i, m_ in enumerate(M_):
                a(m_)
                for ln in R_[i * len(R_) // 8:(i + 1) * len(R_) // 8]:
                    a(ln)
        else:
            a("s_waitcnt lgkmcnt(0)")
            for ln in mfmas(it, 1):
                a(ln)
    stamp("gemm1")

    cL, cE, cQ = 60, 62, 64
    a(f"""
    v_mov_b32 v{cL}, {H(f2u(LOG2E))}
    v_mov_b32 v{cL+1}, {H(f2u(LOG2E))}
    v_mov_b32 v{cE}, {H(f2u(-EPS*LOG2E))}
    v_mov_b32 v{cE+1}, {H(f2u(-EPS*LOG2E))}
    v_mov_b32 v{cQ}, {H(f2u(QSCALE))}
    v_mov_b32 v{cQ+1}, {H(f2u(QSCALE))}
    """)
    ONE = 68
    for i in range(4):
        a(f"v_mov_b32 {v(ONE+i)}, 0x3f803f80")
    for i in range(0, 8, 2):
        a(f"v_pk_mul_f32 {v(aQA[0]+i,2)}, {v(aQA[0]+i,2)}, {v(cQ,2)}")
    for i in range(4):
        a(f"v_cvt_pk_bf16_f32 {v(vQ+i)}, {v(aQA[0]+2*i)}, {v(aQA[0]+2*i+1)}")

    def phi(src, dst, tmp):
        for i in range(0, 8, 2):
            a(f"v_pk_fma_f32 {v(tmp+i,2)}, {v(src+i,2)}, {v(cL,2)}, {v(cE,2)}")
        for i in range(8):
            a(f"v_exp_f32 {v(tmp+i)}, {v(tmp+i)} clamp")
        for i in range(8):
            a(f"v_max_f32 {v(src+i)}, {v(src+i)}, {v(vEPS)}")
        for i in range(0, 8, 2):
            a(f"v_pk_add_f32 {v(src+i,2)}, {v(src+i,2)}, {v(tmp+i,2)}")
        for i in range(4):
            a(f"v_cvt_pk_bf16_f32 {v(dst+i)}, {v(src+2*i)}, {v(src+2*i+1)}")

    PK, VF, TM = 72, 76, 80
    phi(aKB[0], PK, TM)
    for i in range(4):
        a(f"v_cvt_pk_bf16_f32 {v(VF+i)}, {v(aVB[0]+2*i)}, {v(aVB[0]+2*i+1)}")
    a(f"""
    v_permlane16_swap_b32 {v(vQ)}, {v(vQ+2)}
    v_permlane16_swap_b32 {v(vQ+1)}, {v(vQ+3)}
    """)
    DKV, DZ = 88, 92
    a(mf16(DKV, PK, VF, '0'))
    a(mf16(DZ, PK, ONE, '0'))
    phi(aQB[0], vPQ, TM)
    a(f"""
    v_lshrrev_b32 v11, 1, {v(vG)}
    v_mul_u32_u24 v11, 17, v11
    v_add_u32 v11, v11, {v(vR)}
    v_and_b32 v12, 1, {v(vG)}
    v_lshlrev_b32 v12, 4, v12
    v_lshl_add_u32 v11, v11, 5, v12
    s_mul_i32 {s(sT0)}, {s(sTQ)}, 2176
    s_mul_i32 {s(sT1)}, {s(sH)}, 1088
    s_add_u32 {s(sT0)}, {s(sT0)}, {s(sT1)}
    s_add_u32 {s(sT0)}, {s(sT0)}, {L_SCR}
    v_add_u32 v11, {s(sT0)}, v11
    v_permlane16_swap_b32 {v(vPQ)}, {v(vPQ+2)}
    v_permlane16_swap_b32 {v(vPQ+1)}, {v(vPQ+3)}
    ds_write_b128 v11, {v(DKV,4)}
    s_mov_b32 exec_lo, 0x00010001
    s_mov_b32 exec_hi, 0x00010001
    ds_write_b128 v11, {v(DZ,4)} offset:512
    s_mov_b64 exec, -1
    """)
    for i in range(0, 16, 2):
        a(f"v_mov_b64 {v(vVa[0]+i,2)}, 0")
    for i in range(0, 16, 2):
        a(f"v_mov_b64 {v(vO+i,2)}, 0")
    a("s_mov_b32 exec_lo, 0x00110000\ns_mov_b32 exec_hi, 0x00110000")
    for i in range(0, 16, 2):
        a(f"v_mov_b64 {v(vVa[0]+i,2)}, {v(ONE,2)}")
    a("s_mov_b64 exec, -1")
    a("s_waitcnt vmcnt(8) lgkmcnt(0)\ns_barrier")
    stamp("X1")

    def tadr(t, off):
        byte = t * 2048 + off
        return (vL16, byte) if byte < 65536 else (vL16H, byte - 65536)

    def rdK(r, t):
        b, off = tadr(t, 0)
        return f"ds_read_b128 {v(r,4)}, {v(b)} offset:{off}"

    def rdV(r, t, blk):
        b, off = tadr(t, 1024 + 256 * blk)
        return f"ds_read_b128 {v(r,4)}, {v(b)} offset:{off}"

    KT = 112
    a(rdK(KT, 0))
    a(rdK(vK[0], 1))
    a(rdK(vK[1], 2))
    a(f"s_mov_b64 exec, {s(sVM,2)}")
    a(rdV(vVa[0], 0, 0))
    a(rdV(vVb[1], 0, 1))
    a(rdV(vVa[1], 1, 0))
    a("s_mov_b64 exec, -1")
    a(f"""
    s_lshl_b32 {s(sT0)}, {s(sW)}, 12
    s_add_u32 {s(sT0)}, {s(sT0)}, {3*32768}
    s_mov_b32 m0, {s(sT0)}
    v_mov_b64 v[116:117], -1
    v_mov_b64 v[118:119], -1
    """)
    for i in range(4):
        a(f"buffer_load_dwordx4 {v(vL16)}, {s(rWS,4)}, {s(sT0)} offen offset:{1024*i} sc1 lds")
    a(f"""
    s_add_u32 {s(sT0)}, {s(sOOFF)}, {WS_OA}
    s_add_u32 {s(sT1)}, {s(sOOFF)}, {WS_OB}
    buffer_store_dwordx4 v[116:119], {v(vL16)}, {s(rWS,4)}, {s(sT0)} offen sc1
    buffer_store_dwordx4 v[116:119], {v(vL16)}, {s(rWS,4)}, {s(sT1)} offen sc1
    s_waitcnt lgkmcnt(5)
    {mf32(vS[0], KT, vQ, '0')}
    """)
    a(f"""
    s_cmp_gt_u32 {s(sW)}, 4
    s_cbranch_scc1 L_nokvp
    v_cmp_gt_u32 vcc, 272, v0
    v_lshlrev_b32 v11, 3, v0
    s_and_saveexec_b64 {s(sSV,2)}, vcc
    v_add_u32 v12, {L_SCR}, v11
    ds_read_b64 v[120:121], v12
    ds_read_b64 v[122:123], v12 offset:2176
    ds_read_b64 v[124:125], v12 offset:4352
    ds_read_b64 v[126:127], v12 offset:6528
    s_lshl4_add_u32 {s(sT0)}, {s(sHP)}, {s(sTB)}
    s_mul_i32 {s(sT0)}, {s(sT0)}, 2176
    s_add_u32 {s(sT0)}, {s(sT0)}, {WS_KVP}
    s_waitcnt lgkmcnt(0)
    v_pk_add_f32 v[120:121], v[120:121], v[122:123]
    v_pk_add_f32 v[124:125], v[124:125], v[126:127]
    v_pk_add_f32 v[120:121], v[120:121], v[124:125]
    buffer_store_dwordx2 v[120:121], v11, {s(rWS,4)}, {s(sT0)} offen sc1
    s_mov_b64 exec, -1
    """)
    a.label("L_nokvp")
    a("s_nop 11")

    def rowmax(S, dst, first_):
        if first_:
            a(f"v_max3_f32 {v(dst)}, {v(S)}, {v(S+1)}, {v(S+2)}")
            a(f"v_max3_f32 {v(dst+1)}, {v(S+3)}, {v(S+4)}, {v(S+5)}")
            rest = list(range(6, 16))
        else:
            rest = list(range(16))
        for n, i in enumerate(rest[::2]):
            d = dst + (n % 2)
            a(f"v_max3_f32 {v(d)}, {v(d)}, {v(S+i)}, {v(S+i+1)}")

    def finish_max(dst, margin):
        a(f"""
        v_max_f32 {v(dst)}, {v(dst)}, {v(dst+1)}
        v_mov_b32 {v(dst+1)}, {v(dst)}
        s_nop 1
        v_permlane32_swap_b32 {v(dst)}, {v(dst+1)}
        v_max_f32 {v(dst)}, {v(dst)}, {v(dst+1)}
        v_sub_f32 {v(vNM)}, {H(f2u(-margin))}, {v(dst)}
        v_mov_b32 {v(vNM+1)}, {v(vNM)}
        """)
        for i in range(2, 16, 2):
            a(f"v_mov_b64 {v(vNM+i,2)}, {v(vNM,2)}")

    rowmax(vS[0], 10, True)
    finish_max(10, MARGIN)
    a("s_nop 1")
    a(mf32(vS[0], KT, vQ, vNM))
    a("s_waitcnt lgkmcnt(0)")
    stamp("attn0")
    stamp("attn0c", cyc=True)
    a("s_nop 10")

    def ex(r):
        return f"v_exp_f32 {v(r)}, {v(r)}"

    def block(t, prio):
        b = t % 2
        S, Pn = vS[b], vS[1 - b]
        L = [ex(S)]
        if prio:
            L.append("s_setprio 1")
        L.append(ex(S + 1))
        if t > 0:
            L.append(smf(vVb[b], Pn + 8))
        L += [ex(S + i) for i in range(2, 5)]
        if t < 63:
            L.append(mf32(Pn, vK[b], vQ, vNM))
        L += [ex(S + i) for i in range(5, 10)]
        L.append(smf(vVa[b], S))
        L += [ex(S + i) for i in range(10, 16)]
        return L

    PL = 128
    DB = 160
    KF = 176
    OBF = 128
    vOWD = 12

    def wbase(st_):
        return 8192 * st_ if st_ <= 12 else MISC + 8192 * (st_ - 13)

    def dma_w(st_):
        r = rBWO if st_ < 8 else rWO
        a(f"""
        s_add_u32 m0, {s(sT9)}, {wbase(st_)}
        s_mov_b32 {s(sT0)}, {(st_ % 8) * 16384}
        buffer_load_dwordx4 {v(vOWD)}, {s(r,4)}, {s(sT0)} offen lds
        """)

    def poll2_issue():
        a(f"""
        s_cmp_gt_u32 {s(sW)}, 4
        s_cbranch_scc1 L_m1
        buffer_load_dword {v(vPL)}, v13, {s(rDBG,4)}, 0 offen offset:4 sc1
        """)
        a.label("L_m1")

    def poll2_check():
        a(f"""
        s_cmp_gt_u32 {s(sW)}, 4
        s_cbranch_scc1 L_m2
        s_mov_b32 {s(sCNT)}, {SPIN}
        s_waitcnt vmcnt(0)
        """)
        a.label("L_poll2")
        a(f"""
        v_cmp_gt_u32 vcc, 64, {v(vPL)}
        s_nop 0
        s_cbranch_vccz L_sync2
        buffer_load_dword {v(vPL)}, v13, {s(rDBG,4)}, 0 offen offset:4 sc1
        s_sub_u32 {s(sCNT)}, {s(sCNT)}, 1
        s_cmp_eq_u32 {s(sCNT)}, 0
        s_waitcnt vmcnt(0)
        s_cbranch_scc0 L_poll2
        """)
        a.label("L_sync2")
        a(f"""
        v_cmp_gt_u32 vcc, 272, v0
        s_mul_i32 {s(sT0)}, {s(sHP)}, {16*2176}
        s_add_u32 {s(sT0)}, {s(sT0)}, {WS_KVP}
        s_and_saveexec_b64 {s(sSV,2)}, vcc
        """)
        for p in range(16):
            if p and p % 2 == 0:
                a(f"s_add_u32 {s(sT0)}, {s(sT0)}, 4352")
            a(f"buffer_load_dwordx2 {v(PL+2*p,2)}, v11, {s(rWS,4)}, {s(sT0)} offen offset:{2176*(p%2)} sc1")
        a("s_mov_b64 exec, -1")
        a.label("L_m2")

    def kv_sum():
        a(f"""
        s_cmp_gt_u32 {s(sW)}, 4
        s_cbranch_scc1 L_m3
        s_waitcnt vmcnt(0)
        """)
        for st_ in (2, 4, 8, 16):
            for i in range(0, 32, 2 * st_):
                a(f"v_pk_add_f32 {v(PL+i,2)}, {v(PL+i,2)}, {v(PL+i+st_,2)}")
        a(f"""
        v_cmp_gt_u32 vcc, 272, v0
        v_cvt_pk_bf16_f32 {v(PL)}, {v(PL)}, {v(PL+1)}
        v_lshlrev_b32 v10, 2, v0
        v_add_u32 v10, {L_KVS}, v10
        s_and_saveexec_b64 {s(sSV,2)}, vcc
        ds_write_b32 v10, {v(PL)}
        s_mov_b64 exec, -1
        """)
        a.label("L_m3")

    def ob_finish():
        a(f"""
        v_add_f32 v10, {H(f2u(EPS))}, {v(DB+8)}
        v_rcp_f32 v10, v10
        v_sub_f32 v9, 1.0, {v(vGT)}
        v_mul_f32 v10, v10, v9
        v_mov_b32 v11, v10
        """)
        for i in range(0, 8, 2):
            a(f"v_pk_mul_f32 {v(DB+i,2)}, {v(DB+i,2)}, v[10:11]")
        for i in range(4):
            a(f"v_cvt_pk_bf16_f32 {v(DB+8+i)}, {v(DB+2*i)}, {v(DB+2*i+1)}")
        a(f"""
        s_add_u32 {s(sT0)}, {s(sOOFF)}, {WS_OB}
        buffer_store_dwordx4 {v(DB+8,4)}, {v(vL16)}, {s(rWS,4)}, {s(sT0)} offen sc1
        """)

    def load_o(dst, base):
        a(f"s_add_u32 {s(sT0)}, {s(sT10)}, {base}\ns_add_u32 {s(sT1)}, {s(sT0)}, 4096")
        for i in range(8):
            a(f"buffer_load_dwordx4 {v(dst+4*i,4)}, {v(vL16)}, {s(rWS,4)}, {s(sT0 if i < 4 else sT1)} offen offset:{1024*(i%4)} sc1")

    for t in range(0, 64, 2):
        for ln in block(t, True) + block(t + 1, False):
            a(ln)
        if t == 12:
            a(f"""
            v_and_b32 v13, 3, v0
            v_lshlrev_b32 v13, 6, v13
            v_lshlrev_b32 v11, 3, v0
            v_mov_b32 v9, 0
            v_mov_b32 v10, 1
            v_bfe_u32 v5, v0, 3, 3
            v_bfe_u32 v6, v0, 4, 1
            v_lshlrev_b32 v6, 2, v6
            v_and_b32 {v(vOWD)}, 7, v0
            v_xor_b32 {v(vOWD)}, {v(vOWD)}, v6
            v_lshlrev_b32 {v(vOWD)}, 4, {v(vOWD)}
            v_lshl_add_u32 {v(vOWD)}, v5, 10, {v(vOWD)}
            s_lshr_b32 {s(sT0)}, {s(sW)}, 1
            s_lshl_b32 {s(sT0)}, {s(sT0)}, 17
            s_and_b32 {s(sT1)}, {s(sW)}, 1
            s_lshl_b32 {s(sT1)}, {s(sT1)}, 13
            s_add_u32 {s(sT0)}, {s(sT0)}, {s(sT1)}
            s_lshl_b32 {s(sT1)}, {s(sOC)}, 7
            s_add_u32 {s(sT0)}, {s(sT0)}, {s(sT1)}
            v_add_u32 {v(vOWD)}, {s(sT0)}, {v(vOWD)}
            """)
        if t == 36:
            poll2_check()
        if t == 42:
            kv_sum()
        if t == 48:
            a(f"""
            v_and_b32 v9, 31, v0
            v_min_u32 v9, 16, v9
            v_bfe_u32 v10, v0, 5, 1
            v_mad_u32_u24 v9, v10, 17, v9
            s_mul_i32 {s(sT0)}, {s(sH)}, 544
            s_add_u32 {s(sT0)}, {s(sT0)}, {L_KVS}
            v_lshl_add_u32 v9, v9, 4, {s(sT0)}
            """)
        if t == 52:
            a(mf32(DB, KF, vPQ, '0'))
        if t == 54:
            ob_finish()
        a("s_setprio 0")
        if t == 12:
            a(f"""
            s_waitcnt vmcnt(0)
            s_barrier
            s_lshl_b32 {s(sT9)}, {s(sW)}, 10
            s_lshl1_add_u32 {s(sT10)}, {s(sOB_)}, {s(sH)}
            s_lshl2_add_u32 {s(sT10)}, {s(sT10)}, {s(sTQ)}
            s_lshl_b32 {s(sT10)}, {s(sT10)}, 13
            s_cmp_eq_u32 {s(sW)}, {o['pub']}
            s_cbranch_scc0 L_nosig2
            s_and_b32 {s(sT0)}, s2, 0x18
            s_lshl_b32 {s(sT0)}, {s(sT0)}, 3
            s_mov_b64 exec, 1
            buffer_atomic_add v10, v9, {s(rDBG,4)}, {s(sT0)} offen offset:4 sc1
            s_mov_b64 exec, -1
            """)
            a.label("L_nosig2")
            stamp("X3")
        if t < 62:
            a(f"s_mov_b64 exec, {s(sVM,2)}")
            a(rdV(vVb[0], t + 1, 1))
            a(rdV(vVa[0], t + 2, 0))
            a(rdV(vVb[1], t + 2, 1))
            a(rdV(vVa[1], t + 3, 0))
            a("s_mov_b64 exec, -1")
            a(rdK(vK[0], t + 3))
            if t + 4 < 64:
                a(rdK(vK[1], t + 4))
        else:
            a(f"s_mov_b64 exec, {s(sVM,2)}")
            a(rdV(vVb[0], 63, 1))
            a("s_mov_b64 exec, -1")
        if t == 14:
            for st_ in (13, 14, 15):
                dma_w(st_)
        if t == 32:
            poll2_issue()
        if t == 60:
            load_o(OBF, WS_OB)
        a("s_waitcnt lgkmcnt(0)")
        if t == 50:
            a("s_barrier")
            stamp("X4")
            a(f"ds_read_b128 {v(KF,4)}, v9")
            for st_ in range(13):
                dma_w(st_)
            a("s_waitcnt lgkmcnt(0)")
    a(smf(vVb[0], vS[1] + 8))
    stamp("attn1c", cyc=True)
    stamp("attn1")
    vOW = [5, 6]
    a(f"""
    v_bfe_u32 v7, v0, 2, 2
    v_bfe_u32 v8, v0, 5, 1
    v_lshl_add_u32 v9, v8, 2, v7
    v_lshlrev_b32 v9, 7, v9
    v_bfe_u32 v10, v0, 3, 1
    v_lshl_add_u32 v9, v10, 6, v9
    v_bfe_u32 v10, v0, 4, 1
    v_lshl_add_u32 v9, v10, 5, v9
    v_and_b32 v10, 3, v0
    v_lshl_add_u32 v9, v10, 3, v9
    s_lshl_b32 {s(sT0)}, {s(sTQ)}, 11
    v_add_u32 {v(vOW[0])}, {s(sT0)}, v9
    v_xor_b32 {v(vOW[1])}, 64, {v(vOW[0])}
    """)
    a(f"""
    v_add_f32 v9, |{v(vO)}|, |{v(vO+1)}|
    v_add_f32 v10, |{v(vO+2)}|, |{v(vO+3)}|
    v_add_f32 v9, v9, |{v(vO+4)}|
    v_add_f32 v10, v10, |{v(vO+5)}|
    v_add_f32 v9, v9, |{v(vO+6)}|
    v_add_f32 v10, v10, |{v(vO+7)}|
    v_add_f32 v9, v9, {v(vO+8)}
    v_add_f32 v9, v9, v10
    v_cmp_ngt_f32 vcc, {H(f2u(2.0**115))}, v9
    s_nop 0
    s_cbranch_vccnz L_fallback
    """)
    a.label("L_norm")
    a(f"""
    v_rcp_f32 v10, {v(vO+8)}
    s_add_u32 {s(sT0)}, {s(sOOFF)}, {WS_OA}
    v_mul_f32 v10, v10, {v(vGT)}
    v_mov_b32 v11, v10
    """)
    for i in range(0, 8, 2):
        a(f"v_pk_mul_f32 {v(vO+i,2)}, {v(vO+i,2)}, v[10:11]")
    for i in range(4):
        a(f"v_cvt_pk_bf16_f32 {v(vQ+i)}, {v(vO+2*i)}, {v(vO+2*i+1)}")
    a(f"buffer_store_dwordx4 {v(vQ,4)}, {v(vL16)}, {s(rWS,4)}, {s(sT0)} offen sc1")
    a("s_waitcnt vmcnt(1)\ns_barrier")
    stamp("X5")

    accB = [56, 72]
    acc = [224, 240]
    WB = 88
    WA = 160
    OAF = 24
    vOWh = [7, 8]
    vOWm = [9, 10]
    a(f"""
    v_add_u32 {v(vOWh[0])}, 0x10000, {v(vOW[0])}
    v_add_u32 {v(vOWh[1])}, 0x10000, {v(vOW[1])}
    v_add_u32 {v(vOWm[0])}, 0x20000, {v(vOW[0])}
    v_add_u32 {v(vOWm[1])}, 0x20000, {v(vOW[1])}
    """)

    def rdW(dst, st_):
        L = []
        b = wbase(st_)
        regs_ = [vOW, vOWh, vOWm][b >> 16]
        for ct in range(2):
            for u in range(2):
                L.append(f"ds_read_b64_tr_b16 {v(dst+4*ct+2*u,2)}, {v(regs_[ct])} offset:{(b & 0xffff) + 1024*u}")
        return L

    def poison_any(F, lab_ok):
        a(f"v_max3_u32 v11, {v(F)}, {v(F+1)}, {v(F+2)}")
        a(f"v_max_u32 v11, v11, {v(F+3)}")
        for i in range(4, 32, 2):
            a(f"v_max3_u32 v11, v11, {v(F+i)}, {v(F+i+1)}")
        a(f"v_cmp_eq_u32 vcc, -1, v11\ns_nop 0\ns_cbranch_vccz {lab_ok}")

    a(f"s_mov_b32 {s(sCNT)}, {SPIN}")
    a.label("L_chkB")
    poison_any(OBF, "L_okB")
    load_o(OBF, WS_OB)
    a(f"""
    s_sub_u32 {s(sCNT)}, {s(sCNT)}, 1
    s_cmp_eq_u32 {s(sCNT)}, 0
    s_waitcnt vmcnt(0)
    s_cbranch_scc0 L_chkB
    """)
    a.label("L_okB")
    for st_ in range(3):
        for ln in rdW(WB + 8 * st_, st_):
            a(ln)
    for st_ in range(8):
        nxt = st_ + 3
        if nxt < 8:
            R_ = rdW(WB + 8 * (nxt % 4), nxt)
        else:
            R_ = rdW(WA + 8 * (nxt - 8), nxt)
        for ln in R_:
            a(ln)
        a("s_waitcnt lgkmcnt(12)")
        for ct in range(2):
            a(mf32(accB[ct], WB + 8 * (st_ % 4) + 4 * ct, OBF + 4 * st_, '0' if st_ == 0 else accB[ct]))
        if st_ == o.get('oa_at', 5):
            load_o(OAF, WS_OA)
    for st_ in range(11, 16):
        for ln in rdW(WA + 8 * (st_ - 8), st_):
            a(ln)
    a(f"""
    v_and_b32 v12, 31, v0
    s_lshl_b32 {s(sT0)}, {s(sH)}, 5
    s_lshl_b32 {s(sT1)}, {s(sTQ)}, 6
    s_add_u32 {s(sT0)}, {s(sT0)}, {s(sT1)}
    v_add_u32 v12, {s(sT0)}, v12
    v_mul_u32_u24 v12, 272, v12
    v_bfe_u32 v13, v0, 5, 1
    v_lshl_add_u32 v12, v13, 7, v12
    v_lshrrev_b32 v13, 3, v0
    v_and_b32 v14, 7, v0
    v_lshlrev_b32 v14, 4, v14
    v_lshl_add_u32 v5, v13, 10, v14
    v_mul_u32_u24 v13, 272, v13
    v_add_u32 v13, v13, v14
    s_mov_b32 {s(sCNT)}, {SPIN}
    s_waitcnt lgkmcnt(0)
    s_barrier
    """)
    stamp("X6")
    a.label("L_tryA")
    for st_ in range(8):
        a(f"""
        s_waitcnt vmcnt({7-st_})
        v_cmp_eq_u32 vcc, -1, {v(OAF+4*st_)}
        s_nop 0
        s_cbranch_vccnz L_retryA
        """)
        for ct in range(2):
            a(mf32(acc[ct], WA + 8 * st_ + 4 * ct, OAF + 4 * st_, accB[ct] if st_ == 0 else acc[ct]))
    a(f"""
    s_nop 11
    v_cmp_u_f32 vcc, {v(acc[1])}, {v(acc[1])}
    s_nop 0
    s_cbranch_vccnz L_nanA
    """)
    a.label("L_okA")
    stamp("outmm")
    for ct in range(2):
        for qd in range(4):
            a(f"ds_write_b128 v12, {v(acc[ct]+4*qd,4)} offset:{(4*ct+qd)*16}")
    a(f"""
    s_lshl_b32 {s(sT0)}, {s(sOB_)}, 16
    s_lshl_b32 {s(sT1)}, {s(sOC)}, 7
    s_add_u32 {s(sT0)}, {s(sT0)}, {s(sT1)}
    s_waitcnt lgkmcnt(0)
    s_barrier
    """)
    RD = 24
    for kq in range(4):
        for hf in range(2):
            a(f"ds_read_b128 {v(RD+8*kq+4*hf,4)}, v13 offset:{kq*64*272+128*hf}")
    a("s_waitcnt lgkmcnt(4)")
    for i in range(0, 8, 2):
        a(f"v_pk_add_f32 {v(RD+i,2)}, {v(RD+i,2)}, {v(RD+8+i,2)}")
    a("s_waitcnt lgkmcnt(0)")
    for i in range(0, 8, 2):
        a(f"v_pk_add_f32 {v(RD+16+i,2)}, {v(RD+16+i,2)}, {v(RD+24+i,2)}")
    for i in range(0, 8, 2):
        a(f"v_pk_add_f32 {v(RD+i,2)}, {v(RD+i,2)}, {v(RD+16+i,2)}")
    for i in range(4):
        a(f"v_cvt_pk_bf16_f32 {v(RD+8+i)}, {v(RD+2*i)}, {v(RD+2*i+1)}")
    a(f"buffer_store_dwordx4 {v(RD+8,4)}, v5, {s(rOUT,4)}, {s(sT0)} offen")
    if diag:
        a("s_waitcnt vmcnt(0)")
        stamp("end")
        a(f"""
        v_writelane_b32 {v(vST)}, {s(sCNT)}, 31
        s_lshl3_add_u32 {s(sT0)}, s2, {s(sW)}
        s_lshl_b32 {s(sT0)}, {s(sT0)}, 8
        s_add_u32 {s(sT0)}, {s(sT0)}, {WS_DIAG}
        v_lshrrev_b32 v5, 2, {v(vL16)}
        buffer_store_dword {v(vST)}, v5, {s(rWS,4)}, {s(sT0)} offen
        """)
    if o.get('probe'):
        a("s_waitcnt vmcnt(0)")
        stamp("end")
        if o['probe'] == 'none':
            a("s_mov_b32 s95, s96")
        if o['probe'] == 'skew':
            a(f"""
            v_mov_b32 v5, 0
            buffer_load_dwordx2 v[6:7], v5, {s(rDBG,4)}, 0 offen offset:8 sc1
            s_waitcnt vmcnt(0)
            v_not_b32 v7, v7
            v_sub_u32 v6, v6, v7
            s_nop 1
            v_readfirstlane_b32 s95, v6
            s_nop 3
            s_add_u32 s95, s95, s96
            """)
        a(f"""
        s_sub_u32 s95, s95, s96
        s_mul_i32 s95, s95, {o.get('mult', 10)}
        s_add_u32 s95, s95, 6000
        """)
        a.label("L_pad")
        a(f"""
        s_memrealtime {s(sST,2)}
        s_waitcnt lgkmcnt(0)
        s_sub_u32 {s(sST)}, {s(sST)}, s96
        s_cmp_lt_u32 {s(sST)}, s95
        s_cbranch_scc1 L_pad
        """)
    a.label("L_end")
    a("s_endpgm")

    a.label("L_nanA")
    poison_any(OAF, "L_okA")
    a.label("L_retryA")
    a(f"""
    s_sub_u32 {s(sCNT)}, {s(sCNT)}, 1
    s_cmp_eq_u32 {s(sCNT)}, 0
    s_waitcnt vmcnt(0)
    s_nop 15
    s_cbranch_scc1 L_okA
    """)
    load_o(OAF, WS_OA)
    a("s_branch L_tryA")

    a.label("L_fallback")
    a.c("true row max, then the same accumulation, K/V read from the global image")
    a(f"""
    v_mov_b32 v10, 0xff800000
    v_mov_b32 v11, 0xff800000
    s_mov_b32 {s(sT0)}, 0
    """)
    a.label("L_fb1")
    a(f"""
    buffer_load_dwordx4 {v(vK[0],4)}, {v(vL16)}, {s(rWS,4)}, {s(sT0)} offen sc1
    s_waitcnt vmcnt(0)
    {mf32(vS[0], vK[0], vQ, '0')}
    s_nop 11
    """)
    rowmax(vS[0], 10, False)
    a(f"""
    s_add_u32 {s(sT0)}, {s(sT0)}, 2048
    s_cmp_lt_u32 {s(sT0)}, 131072
    s_cbranch_scc1 L_fb1
    """)
    finish_max(10, 0.0)
    for i in range(0, 16, 2):
        a(f"v_mov_b64 {v(vO+i,2)}, 0")
    a(f"s_mov_b32 {s(sT0)}, 0")
    a.label("L_fb2")
    a(f"""
    buffer_load_dwordx4 {v(vK[0],4)}, {v(vL16)}, {s(rWS,4)}, {s(sT0)} offen sc1
    s_mov_b64 exec, {s(sVM,2)}
    buffer_load_dwordx4 {v(vVa[0],4)}, {v(vL16)}, {s(rWS,4)}, {s(sT0)} offen offset:1024 sc1
    buffer_load_dwordx4 {v(vVb[0],4)}, {v(vL16)}, {s(rWS,4)}, {s(sT0)} offen offset:1280 sc1
    s_mov_b64 exec, -1
    s_waitcnt vmcnt(0)
    {mf32(vS[0], vK[0], vQ, vNM)}
    s_nop 11
    """)
    for i in range(16):
        a(ex(vS[0] + i))
    a(f"""
    s_nop 1
    {smf(vVa[0], vS[0])}
    {smf(vVb[0], vS[0]+8)}
    s_add_u32 {s(sT0)}, {s(sT0)}, 2048
    s_cmp_lt_u32 {s(sT0)}, 131072
    s_nop 7
    s_cbranch_scc1 L_fb2
    s_nop 15
    s_branch L_norm
    """)
    return a


HEADER = open('cdna_kernels/' + NAME + '.s.ref').read().split('; Override launch geometry')[0]


TRIV = """.text
.globl triv_kernel
.p2align 8
.type triv_kernel,@function
triv_kernel:
    s_endpgm
.section .rodata,"a"
.p2align 6
.amdhsa_kernel triv_kernel
  .amdhsa_next_free_vgpr 8
  .amdhsa_next_free_sgpr 16
  .amdhsa_accum_offset 8
  .amdhsa_group_segment_fixed_size 0
  .amdhsa_kernarg_size 96
  .amdhsa_user_sgpr_count 2
  .amdhsa_user_sgpr_kernarg_segment_ptr 1
  .amdhsa_system_sgpr_workgroup_id_x 1
.end_amdhsa_kernel
"""


def wrap(a, lst=None):
    k = NAME + '_kernel'
    if lst:
        t = wrap(a)
        main = f"; @launch kernel={k} grid=(256,1,1) block=(512,1,1) lds={LDS_BYTES}\n"
        tr = "; @launch kernel=triv_kernel grid=(256,1,1) block=(64,1,1) lds=0\n"
        L = "".join(main if c == 'm' else tr for c in lst)
        return t.replace(f"; @launch grid=(256,1,1) block=(512,1,1) lds={LDS_BYTES}\n", L) + (TRIV if 't' in lst else '')
    return (HEADER + f"; @launch grid=(256,1,1) block=(512,1,1) lds={LDS_BYTES}\n"
            + f""".amdgcn_target "amdgcn-amd-amdhsa--gfx950"
.text
.globl {k}
.p2align 8
.type {k},@function
{k}:
""" + a.text() + f""".section .rodata,"a"
.p2align 6
.amdhsa_kernel {k}
  .amdhsa_next_free_vgpr 256
  .amdhsa_next_free_sgpr 100
  .amdhsa_accum_offset 256
  .amdhsa_group_segment_fixed_size 0
  .amdhsa_kernarg_size 96
  .amdhsa_user_sgpr_count 2
  .amdhsa_user_sgpr_kernarg_segment_ptr 1
  .amdhsa_system_sgpr_workgroup_id_x 1
.end_amdhsa_kernel
""")


if __name__ == '__main__':
    import argparse, json
    ap = argparse.ArgumentParser()
    ap.add_argument('out')
    ap.add_argument('--diag', action='store_true')
    ap.add_argument('--opts', default='{}')
    args = ap.parse_args()
    a = gen(args.diag, json.loads(args.opts))
    bad = check(a.lines)
    for b in bad:
        print("HAZARD need", b[0], "have", b[1], "|", b[2], "->", b[3])
    open(args.out, 'w').write(wrap(a, json.loads(args.opts).get('list')))
    print("written", args.out, len(a.lines), "lines")
```

```python
import sys, struct
sys.path.insert(0, 'gen')
from asmlib import *

NAME = 'gated_mix__grouped_kv_mqa__linear_attn_block__prompt'


def f2u(x):
    return struct.unpack('<I', struct.pack('<f', x))[0]


def H(x):
    return f"0x{x & 0xffffffff:08x}"


WS_KV = 0
WS_G = 0x20000
WS_KVF = 0x22000
WS_KVP = 0x28000
WS_OA = 0x200000
WS_OB = 0x400000
WS_SIZE = 0x600000
WS_DIAG = 0x600000
SLOT = 40960
STG = 122880
MISC = 131072
L_SCR = MISC
L_PQ = MISC + 8704
L_CNT = 163776
L_RED = 106496
LDS_BYTES = 163840
sW = 3
pX, pWQ, pWK, pWV, pWO, pBX, pWQKV, pBWO, pGATE, pOUT, pDBG, pWS = 4, 6, 8, 10, 12, 14, 16, 18, 20, 22, 24, 26
rX, rW1, rWKV, rGATE, rWS, rDBG, rOUT, rWO, rBWO = 28, 32, 36, 40, 44, 48, 52, 56, 60
sTB, sHG, sCH, sWSTEP, sOX, sOW, sI = 64, 65, 66, 67, 68, 69, 70
sT0, sT1, sT2, sT3, sKVT, sT5, sT6, sSTR, sT8 = 71, 72, 73, 74, 75, 76, 77, 78, 79
sVM = 80
sCNT = 82
sOOFF = 83
sOB_, sOC = 84, 85
sSV = 86
sST = 88
sH, sTH = 90, 91
sT9, sT10 = 92, 93
sSTG = 94
vL16, vL16H, vIDX, vGT = 1, 2, 3, 4
vQ, vPQ = 16, 20
vNM, vO = 24, 40
vS = [56, 72]
vK = [88, 92]
vVa = [96, 104]
vVb = [100, 108]
vST = 15
aQA, aQB, aKB, aVB = [24, 28], [32, 36], [40, 44], [48, 52]
SET = [56, 104]
vEPS = 152
vXR = [156, 157]
vWR = 158
vCA, vF = 160, 161
vR, vG = 7, 8
NVGPR = 168

LOG2E = 1.4426950408889634
QSCALE = 0.25 * LOG2E
EPS = 1e-6
MARGIN = 60.0
SPIN = 1 << 16


def gen(diag=False, opts=None):
    o = dict(pub=7, oa_at=3, hprio=3)
    if opts:
        o.update(opts)
    a = Asm()
    nst = [0]

    def stamp(name, cyc=False):
        if o.get('probe') == name:
            a(f"s_memrealtime {s(sST,2)}\ns_waitcnt lgkmcnt(0)\ns_mov_b32 s95, {s(sST)}")
        if not diag or name in o.get('nostamp', ['B1', 'B2', 'B3', 'B4', 'B5', 'B6']):
            return
        k = nst[0]
        nst[0] += 1
        a.c(f"stamp {k} {name}")
        a(f"{'s_memtime' if cyc else 's_memrealtime'} {s(sST,2)}")
        a("s_waitcnt lgkmcnt(0)")
        a(f"v_writelane_b32 {v(vST)}, {s(sST)}, {k}")

    def dump():
        if diag:
            a(f"""
            s_mul_i32 {s(sT0)}, s2, 12
            s_add_u32 {s(sT0)}, {s(sT0)}, {s(sW)}
            s_lshl_b32 {s(sT0)}, {s(sT0)}, 8
            s_add_u32 {s(sT0)}, {s(sT0)}, {WS_DIAG}
            v_lshrrev_b32 v5, 2, {v(vL16)}
            buffer_store_dword {v(vST)}, v5, {s(rWS,4)}, {s(sT0)} offen
            """)

    def srd(r, p):
        a(f"s_mov_b32 {s(r)}, {s(p)}\ns_mov_b32 {s(r+1)}, {s(p+1)}")

    def srdc(r, n):
        a(f"s_mov_b32 {s(r+2)}, {n}\ns_mov_b32 {s(r+3)}, 0x20000")

    def mf16(d, A, B, C):
        C = C if isinstance(C, str) else v(C, 4)
        return f"v_mfma_f32_16x16x32_bf16 {v(d,4)}, {v(A,4)}, {v(B,4)}, {C}"

    def mf32(d, A, B, C):
        C = C if isinstance(C, str) else v(C, 16)
        return f"v_mfma_f32_32x32x16_bf16 {v(d,16)}, {v(A,4)}, {v(B,4)}, {C}"

    def smf(A, B):
        return f"v_smfmac_f32_32x32x32_bf16 {v(vO,16)}, {v(A,4)}, {v(B,8)}, {v(vIDX)}"

    def slot(it):
        return ((it + 1) % 3) * SLOT

    def wbase(st_):
        return 8192 * st_ if st_ <= 12 else MISC + 8192 * (st_ - 13)

    WSN = WS_SIZE + (0x100000 if diag else 0)

    a(f"""
    s_cmp_ge_u32 s2, 256
    s_cbranch_scc1 L_end
    {'s_memrealtime s[96:97]' if o.get('probe') else ''}
    s_load_dwordx16 s[4:19], s[0:1], 0
    s_load_dwordx8 s[20:27], s[0:1], 64
    v_lshrrev_b32 v5, 6, v0
    v_and_b32 v6, 63, v0
    v_readfirstlane_b32 {s(sW)}, v5
    v_lshlrev_b32 {v(vL16)}, 4, v6
    s_and_b32 {s(sT0)}, s2, 7
    s_lshr_b32 {s(sT2)}, s2, 5
    s_bfe_u32 {s(sT3)}, s2, 0x20003
    s_lshr_b32 {s(sTB)}, {s(sT0)}, 1
    s_lshl3_add_u32 {s(sTB)}, {s(sTB)}, {s(sT2)}
    s_and_b32 {s(sHG)}, {s(sT0)}, 1
    s_lshl2_add_u32 {s(sHG)}, {s(sHG)}, {s(sT3)}
    s_lshr_b32 {s(sT1)}, s2, 6
    s_lshl2_add_u32 {s(sOB_)}, {s(sT0)}, {s(sT1)}
    s_bfe_u32 {s(sOC)}, s2, 0x30003
    v_lshrrev_b32 {v(vG)}, 4, v6
    v_and_b32 v11, 7, v6
    v_xor_b32 v10, v11, {v(vG)}
    v_lshlrev_b32 v10, 4, v10
    v_lshrrev_b32 v12, 3, v6
    v_lshl_add_u32 v10, v12, 10, v10
    """)
    if diag:
        a(f"v_mov_b32 {v(vST)}, 0")
    srdc(rX, 2097152)
    a(f"s_cmp_ge_u32 {s(sW)}, 8\ns_cbranch_scc1 L_helper")

    a(f"""
    s_lshr_b32 {s(sKVT)}, {s(sHG)}, 1
    s_lshl2_add_u32 {s(sKVT)}, {s(sTB)}, {s(sKVT)}
    s_lshl_b32 {s(sKVT)}, {s(sKVT)}, 4
    s_lshl_b32 {s(sT6)}, {s(sW)}, 7
    s_lshl_b32 {s(sT5)}, {s(sKVT)}, 10
    s_add_u32 {s(sT5)}, {s(sT5)}, {s(sT6)}
    s_lshl_b32 {s(sT9)}, {s(sW)}, 11
    s_lshl_b32 {s(sSTG)}, {s(sW)}, 12
    s_add_u32 {s(sSTG)}, {s(sSTG)}, {STG}
    s_mov_b32 m0, {s(sSTG)}
    v_xor_b32 v11, 64, v10
    v_add_u32 v11, 7168, v11
    v_lshlrev_b32 v9, 4, {v(vG)}
    v_and_b32 {v(vR)}, 15, v0
    s_and_b32 {s(sT8)}, {s(sHG)}, 1
    """)
    srdc(rWKV, 16384)
    srdc(rGATE, 1024)
    a(f"""
    s_cmp_eq_u32 {s(sT8)}, 0
    s_waitcnt lgkmcnt(0)
    s_cselect_b32 {s(rWKV)}, {s(pWK)}, {s(pWV)}
    s_cselect_b32 {s(rWKV+1)}, {s(pWK+1)}, {s(pWV+1)}
    """)
    srd(rX, pX)
    xk = [60, 64]
    gk = [68, 72]
    wk = [76, 80]
    dk, dg = 84, 88
    a(f"""
    buffer_load_dwordx4 {v(vL16)}, {s(rWKV,4)}, {s(sT9)} offen lds
    buffer_load_dwordx4 {v(vL16)}, {s(rWKV,4)}, {s(sT9)} offen offset:1024 lds
    s_add_u32 m0, {s(sSTG)}, 2048
    """)
    srd(rGATE, pGATE)
    a(f"""
    buffer_load_dwordx4 v10, {s(rX,4)}, {s(sT5)} offen lds
    buffer_load_dwordx4 v11, {s(rX,4)}, {s(sT5)} offen offset:1024 lds
    buffer_load_dwordx4 {v(gk[0],4)}, v9, {s(rGATE,4)}, {s(sT6)} offen
    buffer_load_dwordx4 {v(gk[1],4)}, v9, {s(rGATE,4)}, {s(sT6)} offen offset:64
    """)
    stamp("start")
    srd(rWS, pWS)
    srdc(rWS, WSN)
    srd(rDBG, pDBG)
    srdc(rDBG, 256)
    srd(rOUT, pOUT)
    srdc(rOUT, 2097152)
    a(f"""
    s_and_b32 {s(sH)}, {s(sW)}, 3
    s_lshr_b32 {s(sTH)}, {s(sW)}, 2
    v_add_u32 {v(vL16H)}, 0x10000, {v(vL16)}
    v_mov_b32 {v(vIDX)}, 0xdddddddd
    s_mov_b32 {s(sVM)}, 0xffff
    s_mov_b32 {s(sVM+1)}, 0xffff
    v_lshrrev_b32 v11, 1, {v(vR)}
    v_xor_b32 v11, v11, {v(vG)}
    v_lshlrev_b32 v11, 4, v11
    v_lshl_add_u32 v11, {v(vR)}, 7, v11
    s_lshl_b32 {s(sT0)}, {s(sTH)}, 12
    s_add_u32 {s(sT0)}, {s(sT0)}, {slot(0)}
    v_add_u32 {v(vXR[0])}, {s(sT0)}, v11
    v_xor_b32 {v(vXR[1])}, 64, {v(vXR[0])}
    v_add_u32 v9, {s(sSTG)}, v11
    v_xor_b32 v10, 64, v9
    v_bfe_u32 v11, v6, 2, 2
    v_lshl_add_u32 v11, {v(vG)}, 3, v11
    v_and_b32 v12, 3, v6
    v_lshlrev_b32 v12, 3, v12
    v_lshl_add_u32 v13, v11, 5, v12
    v_add_u32 v13, {s(sSTG)}, v13
    v_lshl_add_u32 v11, v11, 7, v12
    v_bfe_u32 v12, v6, 3, 2
    v_xor_b32 v12, {s(sH)}, v12
    v_lshl_add_u32 v11, v12, 5, v11
    v_add_u32 {v(vWR)}, {8192 + slot(0)}, v11
    s_lshl1_add_u32 {s(sT0)}, {s(sTB)}, {s(sTH)}
    s_lshl_b32 {s(sT0)}, {s(sT0)}, 5
    s_lshl2_add_u32 {s(sT1)}, {s(sHG)}, {s(sH)}
    s_add_u32 {s(sT0)}, {s(sT0)}, {s(sT1)}
    s_lshl_b32 {s(sOOFF)}, {s(sT0)}, 10
    v_mov_b32 {v(vCA)}, {L_CNT}
    v_add_u32 v11, {s(sSTG)}, {v(vL16)}
    v_lshl_add_u32 v12, v6, 2, {s(sSTG)}
    """)
    for i in range(4):
        a(f"v_mov_b32 {v(vEPS+i)}, {H(f2u(EPS))}")
    a("s_waitcnt vmcnt(0)")
    stamp("kvloads")
    a(f"""
    ds_read_b128 {v(xk[0],4)}, v9 offset:2048
    ds_read_b128 {v(xk[1],4)}, v10 offset:2048
    ds_read_b64_tr_b16 {v(wk[0],2)}, v13
    ds_read_b64_tr_b16 {v(wk[0]+2,2)}, v13 offset:128
    ds_read_b64_tr_b16 {v(wk[1],2)}, v13 offset:1024
    ds_read_b64_tr_b16 {v(wk[1]+2,2)}, v13 offset:1152
    s_cmp_eq_u32 {s(sT8)}, 0
    s_waitcnt lgkmcnt(4)
    {mf16(dg, gk[0], xk[0], '0')}
    {mf16(dg, gk[1], xk[1], dg)}
    s_waitcnt lgkmcnt(0)
    s_cbranch_scc0 L_isV
    {mf16(dk, wk[0], xk[0], '0')}
    {mf16(dk, wk[1], xk[1], dk)}
    s_branch L_kvj
    """)
    a.label("L_isV")
    a(f"""
    {mf16(dk, xk[0], wk[0], '0')}
    {mf16(dk, xk[1], wk[1], dk)}
    """)
    a.label("L_kvj")
    a(f"""
    s_nop 5
    ds_write_b32 v12, {v(dg)} offset:1024
    s_nop 0
    ds_write_b128 v11, {v(dk,4)}
    s_waitcnt lgkmcnt(0)
    s_barrier
    """)
    stamp("B0")
    stamp("B0c", cyc=True)

    def reads(it):
        st = SET[it % 2]
        L = []
        for ks in range(2):
            b = st + 24 * ks
            L.append(f"ds_read_b128 {v(b,4)}, {v(vXR[ks])}")
            for mt in range(4):
                for u in range(2):
                    L.append(f"ds_read_b64_tr_b16 {v(b+8+4*mt+2*u,2)}, {v(vWR)} offset:{mt*8192+ks*4096+u*512}")
                if mt == 0:
                    L.append(f"ds_read_b128 {v(b+4,4)}, {v(vXR[ks])} offset:2048")
        if o.get('noread') and it > 1:
            return []
        return L

    def mfmas(it, ks):
        b = SET[it % 2] + 24 * ks
        x = [b, b + 4]
        W = [b + 8 + 4 * m for m in range(4)]
        f = (it == 0 and ks == 0)
        L = []
        for sub in range(2):
            L.append(mf16(aQA[sub], W[0], x[sub], '0' if f else aQA[sub]))
        for sub in range(2):
            L.append(mf16(aQB[sub], W[1], x[sub], vEPS if f else aQB[sub]))
        for sub in range(2):
            L.append(mf16(aKB[sub], x[sub], W[2], vEPS if f else aKB[sub]))
        for sub in range(2):
            L.append(mf16(aVB[sub], x[sub], W[3], '0' if f else aVB[sub]))
        if o.get('nomfma') and it > 0:
            return ["s_nop 0"] * 8
        return L

    P = 104
    GP = 136
    a(f"s_cmp_eq_u32 {s(sW)}, {o['pub']}\ns_cbranch_scc0 L_nopub")
    a(f"v_add_u32 v11, {STG}, {v(vL16)}\nv_lshlrev_b32 v12, 2, v6\nv_add_u32 v12, {STG}, v12")
    for i in range(8):
        a(f"ds_read_b128 {v(P+4*i,4)}, v11 offset:{4096*i}")
    for i in range(8):
        a(f"ds_read_b32 {v(GP+i)}, v12 offset:{4096*i+1024}")
    a(f"""
    v_lshrrev_b32 v11, 1, {v(vG)}
    v_lshlrev_b32 v11, 9, v11
    v_lshl_add_u32 v11, {v(vR)}, 4, v11
    v_and_b32 v12, 1, {v(vG)}
    v_lshl_add_u32 v11, v12, 3, v11
    s_lshr_b32 {s(sT0)}, {s(sKVT)}, 5
    s_lshl_b32 {s(sT0)}, {s(sT0)}, 11
    s_and_b32 {s(sT1)}, {s(sKVT)}, 16
    s_lshl_b32 {s(sT1)}, {s(sT1)}, 4
    s_add_u32 {s(sT0)}, {s(sT0)}, {s(sT1)}
    s_lshl_b32 {s(sT1)}, {s(sT8)}, 10
    s_add_u32 {s(sT0)}, {s(sT0)}, {s(sT1)}
    s_lshl_b32 {s(sT1)}, {s(sKVT)}, 2
    s_add_u32 {s(sT1)}, {s(sT1)}, {WS_G}
    v_lshlrev_b32 v12, 2, {v(vR)}
    s_waitcnt lgkmcnt(8)
    """)
    for st_ in (4, 8, 16):
        for i in range(0, 32, 2 * st_):
            a(f"v_pk_add_f32 {v(P+i,2)}, {v(P+i,2)}, {v(P+i+st_,2)}")
            a(f"v_pk_add_f32 {v(P+i+2,2)}, {v(P+i+2,2)}, {v(P+i+st_+2,2)}")
    a(f"""
    v_cvt_pk_bf16_f32 {v(P)}, {v(P)}, {v(P+1)}
    v_cvt_pk_bf16_f32 {v(P+1)}, {v(P+2)}, {v(P+3)}
    buffer_store_dwordx2 {v(P,2)}, v11, {s(rWS,4)}, {s(sT0)} offen sc1
    s_waitcnt lgkmcnt(0)
    v_pk_add_f32 {v(GP,2)}, {v(GP,2)}, {v(GP+2,2)}
    v_pk_add_f32 {v(GP+4,2)}, {v(GP+4,2)}, {v(GP+6,2)}
    v_pk_add_f32 {v(GP,2)}, {v(GP,2)}, {v(GP+4,2)}
    v_add_f32 {v(GP)}, {v(GP)}, {v(GP+1)}
    v_mul_f32 {v(GP)}, {H(f2u(-LOG2E))}, {v(GP)}
    v_exp_f32 {v(GP)}, {v(GP)}
    s_nop 0
    v_add_f32 {v(GP)}, 1.0, {v(GP)}
    v_rcp_f32 {v(GP)}, {v(GP)}
    s_mov_b64 exec, 0xffff
    buffer_store_dword {v(GP)}, v12, {s(rWS,4)}, {s(sT1)} offen sc1
    s_mov_b64 exec, -1
    """)
    a.label("L_nopub")
    for ln in reads(0):
        a(ln)

    sig_at = o.get('sig_at', 1)
    for it in range(8):
        a("s_waitcnt lgkmcnt(10)")
        for ln in mfmas(it, 0):
            a(ln)
        if it < 7:
            d = slot(it + 1) - slot(it)
            op = "v_add_u32" if d > 0 else "v_subrev_u32"
            for r_ in (vXR[0], vXR[1], vWR):
                a(f"{op} {v(r_)}, {abs(d)}, {v(r_)}")
            if it == sig_at:
                a(f"""
                s_cmp_eq_u32 {s(sW)}, {o['pub']}
                s_cbranch_scc0 L_nosig1
                s_and_b32 {s(sT0)}, s2, 0x18
                s_lshl_b32 {s(sT0)}, {s(sT0)}, 3
                v_mov_b32 v11, 0
                v_mov_b32 v12, 1
                s_mov_b64 exec, 1
                s_waitcnt vmcnt(0)
                buffer_atomic_add v12, v11, {s(rDBG,4)}, {s(sT0)} offen sc1
                s_mov_b64 exec, -1
                """)
                a.label("L_nosig1")
            a("s_waitcnt lgkmcnt(0)\ns_barrier")
            stamp(f"B{it+1}")
            if it == 6:
                stamp("B7c", cyc=True)
            R_ = reads(it + 1)
            M_ = mfmas(it, 1)
            for i, m_ in enumerate(M_):
                a(m_)
                for ln in R_[i * len(R_) // 8:(i + 1) * len(R_) // 8]:
                    a(ln)
        else:
            a("s_waitcnt lgkmcnt(0)")
            for ln in mfmas(it, 1):
                a(ln)
    stamp("gemm1")

    cL, cE, cQ = 60, 62, 64
    a(f"""
    v_mov_b32 v{cL}, {H(f2u(LOG2E))}
    v_mov_b32 v{cL+1}, {H(f2u(LOG2E))}
    v_mov_b32 v{cE}, {H(f2u(-EPS*LOG2E))}
    v_mov_b32 v{cE+1}, {H(f2u(-EPS*LOG2E))}
    v_mov_b32 v{cQ}, {H(f2u(QSCALE))}
    v_mov_b32 v{cQ+1}, {H(f2u(QSCALE))}
    """)
    ONE = 68
    for i in range(4):
        a(f"v_mov_b32 {v(ONE+i)}, 0x3f803f80")
    for i in range(0, 8, 2):
        a(f"v_pk_mul_f32 {v(aQA[0]+i,2)}, {v(aQA[0]+i,2)}, {v(cQ,2)}")
    for i in range(4):
        a(f"v_cvt_pk_bf16_f32 {v(vQ+i)}, {v(aQA[0]+2*i)}, {v(aQA[0]+2*i+1)}")

    def phi(src, dst, tmp):
        for i in range(0, 8, 2):
            a(f"v_pk_fma_f32 {v(tmp+i,2)}, {v(src+i,2)}, {v(cL,2)}, {v(cE,2)}")
        for i in range(8):
            a(f"v_exp_f32 {v(tmp+i)}, {v(tmp+i)} clamp")
        for i in range(8):
            a(f"v_max_f32 {v(src+i)}, {v(src+i)}, {v(vEPS)}")
        for i in range(0, 8, 2):
            a(f"v_pk_add_f32 {v(src+i,2)}, {v(src+i,2)}, {v(tmp+i,2)}")
        for i in range(4):
            a(f"v_cvt_pk_bf16_f32 {v(dst+i)}, {v(src+2*i)}, {v(src+2*i+1)}")

    PK, VF, TM = 72, 76, 80
    phi(aKB[0], PK, TM)
    for i in range(4):
        a(f"v_cvt_pk_bf16_f32 {v(VF+i)}, {v(aVB[0]+2*i)}, {v(aVB[0]+2*i+1)}")
    a(f"""
    v_permlane16_swap_b32 {v(vQ)}, {v(vQ+2)}
    v_permlane16_swap_b32 {v(vQ+1)}, {v(vQ+3)}
    """)
    DKV, DZ = 88, 92
    a(mf16(DKV, PK, VF, '0'))
    a(mf16(DZ, PK, ONE, '0'))
    phi(aQB[0], vPQ, TM)
    a(f"""
    v_lshrrev_b32 v11, 1, {v(vG)}
    v_mad_u32_u24 v11, v11, 17, {v(vR)}
    v_and_b32 v12, 1, {v(vG)}
    v_lshlrev_b32 v12, 4, v12
    v_lshl_add_u32 v11, v11, 5, v12
    s_mul_i32 {s(sT0)}, {s(sW)}, 1088
    s_add_u32 {s(sT0)}, {s(sT0)}, {L_SCR}
    v_add_u32 v11, {s(sT0)}, v11
    v_permlane16_swap_b32 {v(vPQ)}, {v(vPQ+2)}
    v_permlane16_swap_b32 {v(vPQ+1)}, {v(vPQ+3)}
    s_lshl_b32 {s(sT0)}, {s(sW)}, 10
    s_add_u32 {s(sT0)}, {s(sT0)}, {L_PQ}
    v_add_u32 v12, {s(sT0)}, {v(vL16)}
    ds_write_b128 v11, {v(DKV,4)}
    ds_write_b128 v12, {v(vPQ,4)}
    s_mov_b32 exec_lo, 0x00010001
    s_mov_b32 exec_hi, 0x00010001
    ds_write_b128 v11, {v(DZ,4)} offset:512
    s_mov_b64 exec, -1
    """)
    for i in range(0, 16, 2):
        a(f"v_mov_b64 {v(vVa[0]+i,2)}, 0")
    for i in range(0, 16, 2):
        a(f"v_mov_b64 {v(vO+i,2)}, 0")
    a("s_mov_b32 exec_lo, 0x00110000\ns_mov_b32 exec_hi, 0x00110000")
    for i in range(0, 16, 2):
        a(f"v_mov_b64 {v(vVa[0]+i,2)}, {v(ONE,2)}")
    a(f"""
    s_mov_b64 exec, -1
    s_lshl1_add_u32 {s(sT1)}, {s(sTB)}, {s(sTH)}
    s_lshl_b32 {s(sT1)}, {s(sT1)}, 7
    s_add_u32 {s(sT1)}, {s(sT1)}, {WS_G}
    v_and_b32 v11, 31, v0
    v_lshlrev_b32 v11, 2, v11
    s_waitcnt lgkmcnt(0)
    s_barrier
    """)
    stamp("X1")

    def tadr(t, off):
        byte = t * 2048 + off
        return (vL16, byte) if byte < 65536 else (vL16H, byte - 65536)

    def rdK(r, t):
        b, off = tadr(t, 0)
        return f"ds_read_b128 {v(r,4)}, {v(b)} offset:{off}"

    def rdV(r, t, blk):
        b, off = tadr(t, 1024 + 256 * blk)
        return f"ds_read_b128 {v(r,4)}, {v(b)} offset:{off}"

    KT = 112
    a("s_setprio 2")
    a(rdK(KT, 0))
    a(rdK(vK[0], 1))
    a(rdK(vK[1], 2))
    a(f"s_mov_b64 exec, {s(sVM,2)}")
    a(rdV(vVa[0], 0, 0))
    a(rdV(vVb[1], 0, 1))
    a(rdV(vVa[1], 1, 0))
    a("s_mov_b64 exec, -1")
    a(f"""
    s_waitcnt lgkmcnt(5)
    {mf32(vS[0], KT, vQ, '0')}
    buffer_load_dword {v(vGT)}, v11, {s(rWS,4)}, {s(sT1)} offen sc1
    """)
    vOA = 5
    vOW = [162, 163, 164, 165]
    a(f"""
    v_lshlrev_b32 {v(vOA)}, 9, {v(vG)}
    v_lshl_add_u32 {v(vOA)}, {v(vR)}, 4, {v(vOA)}
    s_lshr_b32 {s(sT0)}, {s(sH)}, 1
    s_lshl1_add_u32 {s(sT0)}, {s(sOB_)}, {s(sT0)}
    s_lshl1_add_u32 {s(sT0)}, {s(sT0)}, {s(sTH)}
    s_lshl_b32 {s(sT0)}, {s(sT0)}, 14
    s_and_b32 {s(sT1)}, {s(sH)}, 1
    s_lshl_b32 {s(sT1)}, {s(sT1)}, 8
    s_add_u32 {s(sT10)}, {s(sT0)}, {s(sT1)}
    v_mov_b32 v14, 1
    s_nop 0
    """)

    def rowmax(S, dst, first_):
        if first_:
            a(f"v_max3_f32 {v(dst)}, {v(S)}, {v(S+1)}, {v(S+2)}")
            a(f"v_max3_f32 {v(dst+1)}, {v(S+3)}, {v(S+4)}, {v(S+5)}")
            rest = list(range(6, 16))
        else:
            rest = list(range(16))
        for n, i in enumerate(rest[::2]):
            d = dst + (n % 2)
            a(f"v_max3_f32 {v(d)}, {v(d)}, {v(S+i)}, {v(S+i+1)}")

    def finish_max(dst, margin):
        a(f"""
        v_max_f32 {v(dst)}, {v(dst)}, {v(dst+1)}
        v_mov_b32 {v(dst+1)}, {v(dst)}
        s_nop 1
        v_permlane32_swap_b32 {v(dst)}, {v(dst+1)}
        v_max_f32 {v(dst)}, {v(dst)}, {v(dst+1)}
        v_sub_f32 {v(vNM)}, {H(f2u(-margin))}, {v(dst)}
        v_mov_b32 {v(vNM+1)}, {v(vNM)}
        """)
        for i in range(2, 16, 2):
            a(f"v_mov_b64 {v(vNM+i,2)}, {v(vNM,2)}")

    rowmax(vS[0], 10, True)
    finish_max(10, MARGIN)
    a("s_nop 1")
    a(mf32(vS[0], KT, vQ, vNM))
    a(f"""
    v_bfe_u32 v9, v0, 2, 2
    v_bfe_u32 v10, v0, 4, 1
    v_lshl_add_u32 v9, v10, 2, v9
    v_bfe_u32 v10, v0, 5, 1
    v_lshl_add_u32 v9, v10, 4, v9
    v_and_b32 v10, 3, v0
    v_lshlrev_b32 v10, 3, v10
    v_lshl_add_u32 v9, v9, 7, v10
    v_bfe_u32 v10, v0, 3, 2
    v_lshl_add_u32 v9, v10, 5, v9
    s_mul_i32 {s(sT0)}, {s(sTH)}, 0x1040
    v_xor_b32 {v(vOW[0])}, {s(sT0)}, v9
    v_xor_b32 {v(vOW[1])}, 32, {v(vOW[0])}
    v_xor_b32 {v(vOW[2])}, 64, {v(vOW[0])}
    v_xor_b32 {v(vOW[3])}, 0x60, {v(vOW[0])}
    s_waitcnt lgkmcnt(0)
    """)
    stamp("attn0")
    stamp("attn0c", cyc=True)
    a("s_setprio 0")

    def ex(r):
        return f"v_exp_f32 {v(r)}, {v(r)}"

    def block(t, prio):
        b = t % 2
        S, Pn = vS[b], vS[1 - b]
        L = [ex(S)]
        if prio:
            L.append("s_setprio 1")
        L.append(ex(S + 1))
        if t > 0:
            L.append(smf(vVb[b], Pn + 8))
        L += [ex(S + i) for i in range(2, 5)]
        if t < 63:
            L.append(mf32(Pn, vK[b], vQ, vNM))
        L += [ex(S + i) for i in range(5, 10)]
        L.append(smf(vVa[b], S))
        L += [ex(S + i) for i in range(10, 16)]
        return L

    OBF = 112
    OAF = 24

    def load_o(dst, base, frm=0, to=8):
        for i in range(frm, to):
            if i == frm or i % 2 == 0:
                a(f"s_add_u32 {s(sT0)}, {s(sT10)}, {base + 4096*(i//2)}")
            a(f"buffer_load_dwordx4 {v(dst+4*i,4)}, {v(vOA)}, {s(rWS,4)}, {s(sT0)} offen offset:{2048*(i%2)} sc1")

    slow = []

    def flagcheck(name, thr):
        a(f"""
        s_cmp_lt_u32 {s(sT2)}, {thr}
        s_cbranch_scc1 L_spin_{name}
        """)
        a.label(f"L_ok_{name}")
        slow.append((name, thr))

    for t in range(0, 64, 2):
        for ln in block(t, True) + block(t + 1, False):
            a(ln)
        if t in (12, 54):
            a(f"v_readfirstlane_b32 {s(sT2)}, {v(vF)}")
        a("s_setprio 0")
        if t == 12:
            flagcheck("kv", 4)
        if t == 54:
            flagcheck("s2", 16)
        if t < 62:
            a(f"s_mov_b64 exec, {s(sVM,2)}")
            a(rdV(vVb[0], t + 1, 1))
            a(rdV(vVa[0], t + 2, 0))
            a(rdV(vVb[1], t + 2, 1))
            a(rdV(vVa[1], t + 3, 0))
            a("s_mov_b64 exec, -1")
            a(rdK(vK[0], t + 3))
            if t + 4 < 64:
                a(rdK(vK[1], t + 4))
        else:
            a(f"s_mov_b64 exec, {s(sVM,2)}")
            a(rdV(vVb[0], 63, 1))
            a("s_mov_b64 exec, -1")
        if t in (10, 52):
            a(f"ds_read_b32 {v(vF)}, {v(vCA)}")
        if t in (54, 56, 58, 60):
            k = (t - 54)
            load_o(OBF, WS_OB, k, k + 2)
        a("s_waitcnt lgkmcnt(0)")
        if t == 50:
            a(f"s_mov_b64 exec, 1\nds_add_u32 {v(vCA)}, v14 offset:4\ns_mov_b64 exec, -1")
    a(smf(vVb[0], vS[1] + 8))
    stamp("attn1c", cyc=True)
    stamp("attn1")
    vRW, vRR, vOUT = 12, 13, 14
    a(f"""
    s_lshl_b32 {s(sT0)}, {s(sW)}, 11
    s_add_u32 {s(sT1)}, {s(sT0)}, {L_RED}
    v_add_u32 {v(vRW)}, {s(sT1)}, {v(vL16)}
    s_xor_b32 {s(sT0)}, {s(sT0)}, 8192
    s_add_u32 {s(sT1)}, {s(sT0)}, {L_RED}
    v_add_u32 {v(vRR)}, {s(sT1)}, {v(vL16)}
    v_bfe_u32 v9, v0, 4, 1
    v_bfe_u32 v10, v0, 5, 1
    v_lshlrev_b32 v9, 5, v9
    v_lshl_add_u32 v9, v10, 4, v9
    v_and_b32 v10, 15, v0
    v_lshl_add_u32 {v(vOUT)}, v10, 10, v9
    """)
    a(f"""
    v_add_f32 v9, |{v(vO)}|, |{v(vO+1)}|
    v_add_f32 v10, |{v(vO+2)}|, |{v(vO+3)}|
    v_add_f32 v9, v9, |{v(vO+4)}|
    v_add_f32 v10, v10, |{v(vO+5)}|
    v_add_f32 v9, v9, |{v(vO+6)}|
    v_add_f32 v10, v10, |{v(vO+7)}|
    v_add_f32 v9, v9, {v(vO+8)}
    v_add_f32 v9, v9, v10
    v_cmp_ngt_f32 vcc, {H(f2u(2.0**115))}, v9
    s_waitcnt vmcnt(0)
    s_cbranch_vccnz L_fallback
    """)
    a.label("L_norm")
    a(f"""
    v_rcp_f32 v10, {v(vO+8)}
    s_add_u32 {s(sT0)}, {s(sOOFF)}, {WS_OA}
    v_mul_f32 v10, v10, {v(vGT)}
    v_mov_b32 v11, v10
    """)
    for i in range(0, 8, 2):
        a(f"v_pk_mul_f32 {v(vO+i,2)}, {v(vO+i,2)}, v[10:11]")
    for i in range(4):
        a(f"v_cvt_pk_bf16_f32 {v(vQ+i)}, {v(vO+2*i)}, {v(vO+2*i+1)}")
    a(f"buffer_store_dwordx4 {v(vQ,4)}, {v(vL16)}, {s(rWS,4)}, {s(sT0)} offen sc1")
    a("s_barrier")
    stamp("X5")

    acc = [144, 148, 152, 156]
    WR = [56, 72, 88]

    def rdW(st_):
        L = []
        b = wbase(st_)
        if st_ in (8, 13):
            L += [f"v_add_u32 {v(r_)}, 0x10000, {v(r_)}" for r_ in vOW]
        for ct in range(4):
            for u in range(2):
                L.append(f"ds_read_b64_tr_b16 {v(WR[st_%3]+4*ct+2*u,2)}, {v(vOW[ct])} offset:{(b & 0xffff) + 1024*u}")
        return L

    def chk(F, lab):
        a(f"""
        v_max3_u32 v9, {v(F)}, {v(F+1)}, {v(F+2)}
        v_max_u32 v9, v9, {v(F+3)}
        v_cmp_eq_u32 vcc, -1, v9
        s_nop 0
        s_cbranch_vccnz {lab}
        """)

    for ln in rdW(0) + rdW(1):
        a(ln)
    a(f"s_mov_b32 {s(sCNT)}, {SPIN}")
    a.label("L_chkB")
    a(f"v_max3_u32 v9, {v(OBF)}, {v(OBF+1)}, {v(OBF+2)}")
    a(f"v_max_u32 v9, v9, {v(OBF+3)}")
    for i in range(4, 32, 2):
        a(f"v_max3_u32 v9, v9, {v(OBF+i)}, {v(OBF+i+1)}")
    a("v_cmp_eq_u32 vcc, -1, v9\ns_nop 0\ns_cbranch_vccnz L_reB")
    a.label("L_okB")
    for st_ in range(16):
        F = (OBF if st_ < 8 else OAF) + 4 * (st_ % 8)
        if st_ >= 8:
            a.label(f"L_try{st_}")
            a(f"s_waitcnt vmcnt({15-st_})")
            chk(F, f"L_re{st_}")
            a.label(f"L_go{st_}")
        a(f"s_waitcnt lgkmcnt({8 if st_ < 15 else 0})")
        R_ = rdW(st_ + 2) if st_ + 2 < 16 else []
        for ct in range(4):
            a(mf16(acc[ct], WR[st_ % 3] + 4 * ct, F, '0' if st_ == 0 else acc[ct]))
            for ln in R_[ct * len(R_) // 4:(ct + 1) * len(R_) // 4]:
                a(ln)
        if st_ == o['oa_at']:
            load_o(OAF, WS_OA)
        if st_ == 7:
            stamp("Bpart")
    stamp("outmm")
    a(f"""
    s_lshl_b32 {s(sT0)}, {s(sOB_)}, 16
    s_lshl_b32 {s(sT1)}, {s(sH)}, 14
    s_add_u32 {s(sT0)}, {s(sT0)}, {s(sT1)}
    s_lshl_b32 {s(sT1)}, {s(sOC)}, 7
    s_add_u32 {s(sT0)}, {s(sT0)}, {s(sT1)}
    s_lshl_b32 {s(sT1)}, {s(sTH)}, 6
    s_add_u32 {s(sT0)}, {s(sT0)}, {s(sT1)}
    ds_write_b128 {v(vRW)}, {v(acc[2],4)}
    ds_write_b128 {v(vRW)}, {v(acc[3],4)} offset:1024
    s_waitcnt lgkmcnt(0)
    s_barrier
    ds_read_b128 v[24:27], {v(vRR)}
    ds_read_b128 v[28:31], {v(vRR)} offset:1024
    s_waitcnt lgkmcnt(0)
    """)
    for i in range(0, 8, 2):
        a(f"v_pk_add_f32 {v(acc[0]+i,2)}, {v(acc[0]+i,2)}, {v(24+i,2)}")
    for i in range(4):
        a(f"v_cvt_pk_bf16_f32 {v(32+i)}, {v(acc[0]+2*i)}, {v(acc[0]+2*i+1)}")
    a(f"""
    s_nop 0
    v_permlane16_swap_b32 v32, v34
    v_permlane16_swap_b32 v33, v35
    buffer_store_dwordx4 v[32:35], {v(vOUT)}, {s(rOUT,4)}, {s(sT0)} offen
    """)
    if diag:
        a("s_waitcnt vmcnt(0)")
        stamp("end")
        a(f"v_writelane_b32 {v(vST)}, {s(sCNT)}, 63")
        dump()
    if o.get('probe'):
        a("s_waitcnt vmcnt(0)")
        stamp("end")
        if o['probe'] == 'none':
            a("s_mov_b32 s95, s96")
        a(f"""
        s_sub_u32 s95, s95, s96
        s_mul_i32 s95, s95, {o.get('mult', 10)}
        s_add_u32 s95, s95, 6000
        """)
        a.label("L_pad")
        a(f"""
        s_memrealtime {s(sST,2)}
        s_waitcnt lgkmcnt(0)
        s_sub_u32 {s(sST)}, {s(sST)}, s96
        s_cmp_lt_u32 {s(sST)}, s95
        s_cbranch_scc1 L_pad
        """)
    a.label("L_end")
    a("s_endpgm")

    a.label("L_reB")
    load_o(OBF, WS_OB)
    a(f"""
    s_sub_u32 {s(sCNT)}, {s(sCNT)}, 1
    s_cmp_eq_u32 {s(sCNT)}, 0
    s_waitcnt vmcnt(0)
    s_cbranch_scc0 L_chkB
    s_branch L_okB
    """)
    for st_ in range(8, 16):
        a.label(f"L_re{st_}")
        a(f"""
        s_cmp_eq_u32 {s(sCNT)}, 0
        s_cbranch_scc1 L_go{st_}
        s_sub_u32 {s(sCNT)}, {s(sCNT)}, 1
        s_waitcnt vmcnt(0)
        """)
        load_o(OAF, WS_OA, st_ - 8, 8)
        a(f"s_branch L_try{st_}")
    for name, thr in slow:
        a.label(f"L_spin_{name}")
        a(f"s_mov_b32 {s(sCNT)}, {SPIN*16}")
        a.label(f"L_spin2_{name}")
        a(f"""
        ds_read_b32 {v(vF)}, {v(vCA)}
        s_sub_u32 {s(sCNT)}, {s(sCNT)}, 1
        s_cmp_eq_u32 {s(sCNT)}, 0
        s_cbranch_scc1 L_ok_{name}
        s_waitcnt lgkmcnt(0)
        v_readfirstlane_b32 {s(sT2)}, {v(vF)}
        s_nop 0
        s_cmp_lt_u32 {s(sT2)}, {thr}
        s_cbranch_scc1 L_spin2_{name}
        s_branch L_ok_{name}
        """)

    a.label("L_fallback")
    a.c("true row max, then the same accumulation, K/V read from the global image")
    a(f"""
    v_mov_b32 v10, 0xff800000
    v_mov_b32 v11, 0xff800000
    s_mov_b32 {s(sT0)}, 0
    """)
    a.label("L_fb1")
    a(f"""
    buffer_load_dwordx4 {v(vK[0],4)}, {v(vL16)}, {s(rWS,4)}, {s(sT0)} offen sc1
    s_waitcnt vmcnt(0)
    {mf32(vS[0], vK[0], vQ, '0')}
    s_nop 11
    """)
    rowmax(vS[0], 10, False)
    a(f"""
    s_add_u32 {s(sT0)}, {s(sT0)}, 2048
    s_cmp_lt_u32 {s(sT0)}, 131072
    s_cbranch_scc1 L_fb1
    """)
    finish_max(10, 0.0)
    for i in range(0, 16, 2):
        a(f"v_mov_b64 {v(vO+i,2)}, 0")
    a(f"s_mov_b32 {s(sT0)}, 0")
    a.label("L_fb2")
    a(f"""
    buffer_load_dwordx4 {v(vK[0],4)}, {v(vL16)}, {s(rWS,4)}, {s(sT0)} offen sc1
    s_mov_b64 exec, {s(sVM,2)}
    buffer_load_dwordx4 {v(vVa[0],4)}, {v(vL16)}, {s(rWS,4)}, {s(sT0)} offen offset:1024 sc1
    buffer_load_dwordx4 {v(vVb[0],4)}, {v(vL16)}, {s(rWS,4)}, {s(sT0)} offen offset:1280 sc1
    s_mov_b64 exec, -1
    s_waitcnt vmcnt(0)
    {mf32(vS[0], vK[0], vQ, vNM)}
    s_nop 11
    """)
    for i in range(16):
        a(ex(vS[0] + i))
    a(f"""
    s_nop 1
    {smf(vVa[0], vS[0])}
    {smf(vVb[0], vS[0]+8)}
    s_add_u32 {s(sT0)}, {s(sT0)}, 2048
    s_cmp_lt_u32 {s(sT0)}, 131072
    s_nop 7
    s_cbranch_scc1 L_fb2
    s_nop 15
    s_branch L_norm
    """)

    a(".p2align 6")
    a.label("L_helper")
    hX0, hX1 = 16, 17
    hW = [18, 19, 20, 21]
    a(f"""
    s_sub_u32 {s(sI)}, {s(sW)}, 8
    s_lshl1_add_u32 {s(sCH)}, {s(sT3)}, {s(sT2)}
    s_and_b32 {s(sCH)}, {s(sCH)}, 7
    s_lshl2_add_u32 {s(sT8)}, {s(sTB)}, {s(sI)}
    s_lshl_b32 {s(sT8)}, {s(sT8)}, 14
    v_add_u32 {v(hX0)}, {s(sT8)}, v10
    v_xor_b32 {v(hX1)}, 64, {v(hX0)}
    v_add_u32 {v(hX1)}, 7168, {v(hX1)}
    s_max_u32 {s(sT0)}, {s(sI)}, 1
    s_sub_u32 {s(sT0)}, {s(sT0)}, 1
    s_lshl3_add_u32 {s(sT0)}, {s(sT0)}, {s(sHG)}
    s_lshl_b32 {s(sT0)}, {s(sT0)}, 7
    s_lshl_b32 {s(sT9)}, {s(sI)}, 11
    s_lshl_b32 {s(sT10)}, {s(sI)}, 13
    s_mov_b32 {s(rW1+3)}, 0x20000
    s_cmp_eq_u32 {s(sI)}, 0
    s_cselect_b32 {s(sSTR)}, 1, 3
    s_lshl_b32 {s(rW1+2)}, {s(sSTR)}, 19
    s_lshl_b32 {s(sWSTEP)}, {s(sSTR)}, 15
    s_lshl_b32 {s(sSTR)}, {s(sSTR)}, 10
    v_bfe_u32 v9, v6, 4, 1
    v_lshlrev_b32 v9, 1, v9
    v_xor_b32 v9, v9, v11
    v_lshl_add_u32 v9, v9, 4, {s(sT0)}
    v_mad_u32_u24 {v(hW[0])}, v12, {s(sSTR)}, v9
    s_lshl_b32 {s(sT1)}, {s(sSTR)}, 3
    s_sub_u32 {s(sT1)}, {s(sT1)}, 1024
    v_xor_b32 {v(hW[1])}, 64, {v(hW[0])}
    v_add_u32 {v(hW[1])}, {s(sT1)}, {v(hW[1])}
    s_lshl_b32 {s(sT1)}, {s(sT1)}, 1
    v_add_u32 {v(hW[2])}, {s(sT1)}, {v(hW[0])}
    v_add_u32 {v(hW[3])}, {s(sT1)}, {v(hW[1])}
    s_cmp_eq_u32 {s(sI)}, 0
    s_waitcnt lgkmcnt(0)
    s_cselect_b32 {s(rW1)}, {s(pWQ)}, {s(pWQKV)}
    s_cselect_b32 {s(rW1+1)}, {s(pWQ+1)}, {s(pWQKV+1)}
    """)
    srd(rX, pX)

    def dma_chunk(it):
        sl = slot(it)
        a(f"""
        s_lshl_b32 {s(sOX)}, {s(sCH)}, 7
        s_add_u32 m0, {s(sT9)}, {sl}
        s_lshl_b32 {s(sOW)}, {s(sCH)}, 1
        buffer_load_dwordx4 {v(hX0)}, {s(rX,4)}, {s(sOX)} offen lds
        buffer_load_dwordx4 {v(hX1)}, {s(rX,4)}, {s(sOX)} offen offset:1024 lds
        s_add_u32 m0, {s(sT10)}, {sl+8192}
        s_mul_i32 {s(sOW)}, {s(sOW)}, {s(sWSTEP)}
        """)
        for i in range(4):
            a(f"buffer_load_dwordx4 {v(hW[i])}, {s(rW1,4)}, {s(sOW)} offen offset:{1024*i} lds")
        a(f"""
        s_add_u32 m0, {s(sT10)}, {sl+8192+4096}
        s_add_u32 {s(sOW)}, {s(sOW)}, {s(sWSTEP)}
        """)
        for i in range(4):
            a(f"buffer_load_dwordx4 {v(hW[i])}, {s(rW1,4)}, {s(sOW)} offen offset:{1024*i} lds")
        a(f"s_add_u32 {s(sCH)}, {s(sCH)}, 1\ns_and_b32 {s(sCH)}, {s(sCH)}, 7")

    stamp("Hstart")
    dma_chunk(0)
    a(f"""
    v_mov_b32 {v(vCA)}, {L_CNT}
    v_mov_b64 v[22:23], 0
    ds_write_b64 {v(vCA)}, v[22:23]
    """)
    srd(rWS, pWS)
    srdc(rWS, WSN)
    srd(rDBG, pDBG)
    srdc(rDBG, 256)
    srd(rWO, pWO)
    srdc(rWO, 524288)
    srd(rBWO, pBWO)
    srdc(rBWO, 524288)
    dma_chunk(1)
    hPA, hPV = 24, 25
    a(f"""
    v_and_b32 {v(hPA)}, 3, v6
    v_lshlrev_b32 {v(hPA)}, 6, {v(hPA)}
    s_waitcnt vmcnt(10) lgkmcnt(0)
    s_barrier
    """)
    for it in range(7):
        if it + 2 <= 7:
            dma_chunk(it + 2)
            a("s_waitcnt vmcnt(10)")
        else:
            a(f"buffer_load_dword {v(hPV)}, {v(hPA)}, {s(rDBG,4)}, 0 offen sc1")
            a("s_waitcnt vmcnt(1)")
        a("s_barrier")
    a(f"s_setprio {o['hprio']}")

    def gpoll(name, addr, off, thr, pre=False, sleep=0):
        a(f"s_mov_b32 {s(sCNT)}, {SPIN}")
        if pre:
            a(f"s_branch L_gc_{name}")
        a.label(f"L_gp_{name}")
        if sleep:
            a(f"s_sleep {sleep}")
        a(f"""
        buffer_load_dword {v(hPV)}, {v(addr)}, {s(rDBG,4)}, 0 offen offset:{off} sc1
        s_sub_u32 {s(sCNT)}, {s(sCNT)}, 1
        s_cmp_eq_u32 {s(sCNT)}, 0
        s_cbranch_scc1 L_gd_{name}
        """)
        a.label(f"L_gc_{name}")
        a(f"""
        s_waitcnt vmcnt(0)
        v_cmp_gt_u32 vcc, {thr}, {v(hPV)}
        s_nop 0
        s_cbranch_vccnz L_gp_{name}
        """)
        a.label(f"L_gd_{name}")

    def lpoll(name, off, thr):
        a(f"s_mov_b32 {s(sCNT)}, {SPIN*4}")
        a.label(f"L_lp_{name}")
        a(f"""
        s_sleep 8
        ds_read_b32 v9, {v(vCA)} offset:{off}
        s_sub_u32 {s(sCNT)}, {s(sCNT)}, 1
        s_cmp_eq_u32 {s(sCNT)}, 0
        s_cbranch_scc1 L_lp_{name}d
        s_waitcnt lgkmcnt(0)
        v_readfirstlane_b32 {s(sT1)}, v9
        s_nop 0
        s_cmp_lt_u32 {s(sT1)}, {thr}
        s_cbranch_scc1 L_lp_{name}
        """)
        a.label(f"L_lp_{name}d")

    gpoll("s1", hPA, 0, 64, pre=True)
    stamp("Hs1")

    def kv_group(G):
        a(f"s_add_u32 {s(sT0)}, {s(sT8)}, {16384*G}\ns_mov_b32 m0, {s(sT0)}\ns_nop 0")
        for i in range(4):
            a(f"buffer_load_dwordx4 {v(vL16)}, {s(rWS,4)}, {s(sT0)} offen offset:{1024*i} sc1 lds")

    a(f"s_lshl_b32 {s(sT8)}, {s(sI)}, 12")
    npre = o.get('npre', 4)
    for G in range(npre):
        kv_group(G)
    hA, hB = 26, 27
    a(f"""
    s_mul_i32 {s(sT0)}, {s(sI)}, 1088
    s_add_u32 {s(sT0)}, {s(sT0)}, {L_SCR}
    v_add_u32 {v(hA)}, {s(sT0)}, {v(vL16)}
    s_lshl_b32 {s(sT0)}, {s(sI)}, 10
    s_add_u32 {s(sT0)}, {s(sT0)}, {L_PQ}
    v_add_u32 {v(hB)}, {s(sT0)}, {v(vL16)}
    v_mov_b64 v[28:29], -1
    v_mov_b64 v[30:31], -1
    v_and_b32 v9, 31, v6
    v_lshlrev_b32 v9, 2, v9
    s_waitcnt vmcnt({4*(npre-2)})
    s_barrier
    """)
    stamp("HX1")
    hPQ = [32, 36]
    hS = [40, 44, 48, 52]
    hG = [56, 57]
    a(f"""
    ds_read_b128 {v(hS[0],4)}, {v(hA)}
    ds_read_b128 {v(hS[1],4)}, {v(hA)} offset:4352
    ds_read_b128 {v(hS[2],4)}, {v(hA)} offset:1024
    ds_read_b128 {v(hS[3],4)}, {v(hA)} offset:5376
    ds_read_b128 {v(hPQ[0],4)}, {v(hB)}
    ds_read_b128 {v(hPQ[1],4)}, {v(hB)} offset:4096
    """)
    for G in range(npre, 8):
        kv_group(G)
    a(f"""
    s_lshl_b32 {s(sT0)}, {s(sTB)}, 8
    s_add_u32 {s(sT0)}, {s(sT0)}, {WS_G}
    buffer_load_dword {v(hG[0])}, v9, {s(rWS,4)}, {s(sT0)} offen sc1
    buffer_load_dword {v(hG[1])}, v9, {s(rWS,4)}, {s(sT0)} offen offset:128 sc1
    s_lshl_b32 {s(sT0)}, {s(sTB)}, 6
    s_lshl2_add_u32 {s(sT1)}, {s(sHG)}, {s(sI)}
    s_add_u32 {s(sT0)}, {s(sT0)}, {s(sT1)}
    s_lshl_b32 {s(sOOFF)}, {s(sT0)}, 10
    """)
    for base in (WS_OA, WS_OA + 32768, WS_OB, WS_OB + 32768):
        a(f"s_add_u32 {s(sT0)}, {s(sOOFF)}, {base}")
        a(f"buffer_store_dwordx4 v[28:31], {v(vL16)}, {s(rWS,4)}, {s(sT0)} offen sc1")
    a(f"""
    s_lshl_b32 {s(sT0)}, {s(sHG)}, 5
    s_add_u32 {s(sT0)}, {s(sT0)}, {s(sTB)}
    s_lshl2_add_u32 {s(sT0)}, {s(sT0)}, {s(sI)}
    s_mul_i32 {s(sT0)}, {s(sT0)}, 1088
    s_add_u32 {s(sT0)}, {s(sT0)}, {WS_KVP}
    s_waitcnt lgkmcnt(0)
    v_pk_add_f32 {v(hS[0],2)}, {v(hS[0],2)}, {v(hS[1],2)}
    v_pk_add_f32 {v(hS[0]+2,2)}, {v(hS[0]+2,2)}, {v(hS[1]+2,2)}
    v_pk_add_f32 {v(hS[2],2)}, {v(hS[2],2)}, {v(hS[3],2)}
    v_pk_add_f32 {v(hS[2]+2,2)}, {v(hS[2]+2,2)}, {v(hS[3]+2,2)}
    v_mov_b32 v10, 1
    v_mov_b32 v11, 0
    buffer_store_dwordx4 {v(hS[0],4)}, {v(vL16)}, {s(rWS,4)}, {s(sT0)} offen sc1
    s_mov_b64 exec, 15
    buffer_store_dwordx4 {v(hS[2],4)}, {v(vL16)}, {s(rWS,4)}, {s(sT0)} offen offset:1024 sc1
    s_mov_b64 exec, 1
    s_waitcnt vmcnt(0)
    ds_add_rtn_u32 v12, {v(vCA)}, v10
    s_and_b32 {s(sT0)}, s2, 0x18
    s_lshl_b32 {s(sT0)}, {s(sT0)}, 3
    s_waitcnt lgkmcnt(0)
    v_readfirstlane_b32 {s(sT1)}, v12
    s_nop 0
    s_cmp_eq_u32 {s(sT1)}, 3
    s_cbranch_scc0 L_nosig2
    buffer_atomic_add v10, v11, {s(rDBG,4)}, {s(sT0)} offen offset:4 sc1
    """)
    a.label("L_nosig2")
    a("s_mov_b64 exec, -1")
    stamp("Hkv")
    hP3 = 26
    a(f"""
    s_lshr_b32 {s(sT0)}, {s(sHG)}, 1
    s_lshl_b32 {s(sT0)}, {s(sT0)}, 6
    s_and_b32 {s(sT1)}, {s(sHG)}, 1
    s_lshl2_add_u32 {s(sT0)}, {s(sT1)}, {s(sT0)}
    v_mov_b32 {v(hP3)}, {s(sT0)}
    s_cmp_eq_u32 {s(sI)}, 0
    s_cbranch_scc0 L_nol1
    """)
    gpoll("s2", hPA, 4, 64, sleep=o.get('sl2', 16))
    stamp("Hs2")
    PL = 64
    a(f"""
    v_mov_b32 v12, 16
    v_and_b32 v13, 31, v6
    v_lshrrev_b32 v14, 5, v6
    s_mov_b64 exec, 1
    ds_add_u32 {v(vCA)}, v12
    s_mov_b32 exec_lo, 0x1ffff
    s_mov_b32 exec_hi, 0x1ffff
    v_mul_u32_u24 v14, {16*4352}, v14
    v_lshl_add_u32 v14, v13, 3, v14
    s_mul_i32 {s(sT0)}, {s(sHG)}, {32*4352}
    s_mul_i32 {s(sT1)}, {s(sTB)}, 136
    s_add_u32 {s(sT0)}, {s(sT0)}, {s(sT1)}
    s_add_u32 {s(sT0)}, {s(sT0)}, {WS_KVP}
    """)
    for p in range(16):
        a(f"buffer_load_dwordx2 {v(PL+2*p,2)}, v14, {s(rWS,4)}, {s(sT0)} offen sc1")
        if p < 15:
            a(f"s_add_u32 {s(sT0)}, {s(sT0)}, 4352")
    a(f"""
    s_mul_i32 {s(sT0)}, {s(sHG)}, 2176
    s_mul_i32 {s(sT1)}, {s(sTB)}, 68
    s_add_u32 {s(sT0)}, {s(sT0)}, {s(sT1)}
    s_add_u32 {s(sT0)}, {s(sT0)}, {WS_KVF}
    s_mov_b64 exec, -1
    s_waitcnt vmcnt(0)
    """)
    for st_ in (2, 4, 8, 16):
        for i in range(0, 32, 2 * st_):
            a(f"v_pk_add_f32 {v(PL+i,2)}, {v(PL+i,2)}, {v(PL+i+st_,2)}")
    a(f"""
    v_mov_b64 {v(PL+2,2)}, {v(PL,2)}
    v_lshlrev_b32 v13, 2, v13
    s_nop 0
    v_permlane32_swap_b32 {v(PL)}, {v(PL+2)}
    v_permlane32_swap_b32 {v(PL+1)}, {v(PL+3)}
    v_pk_add_f32 {v(PL,2)}, {v(PL,2)}, {v(PL+2,2)}
    v_cvt_pk_bf16_f32 {v(PL)}, {v(PL)}, {v(PL+1)}
    s_mov_b64 exec, 0x1ffff
    buffer_store_dword {v(PL)}, v13, {s(rWS,4)}, {s(sT0)} offen sc1
    s_mov_b64 exec, 1
    s_waitcnt vmcnt(0)
    buffer_atomic_add v10, {v(hP3)}, {s(rDBG,4)}, 0 offen offset:8 sc1
    s_mov_b64 exec, -1
    """)
    gpoll("s3", hP3, 8, 32, sleep=o.get('sl3', 16))
    a(f"s_mov_b64 exec, 1\nds_add_u32 {v(vCA)}, v12\ns_mov_b64 exec, -1\ns_branch L_lp_s3d")
    a.label("L_nol1")
    lpoll("s3", 0, 32)
    stamp("Hs3")
    KF = 60
    DB = [64, 80]
    hOW = [26, 27]
    a(f"""
    v_and_b32 v9, 31, v6
    v_min_u32 v9, 16, v9
    v_lshrrev_b32 v12, 5, v6
    v_mad_u32_u24 v9, v12, 17, v9
    v_lshlrev_b32 v9, 4, v9
    s_lshl2_add_u32 {s(sT0)}, {s(sHG)}, {s(sI)}
    s_mul_i32 {s(sT0)}, {s(sT0)}, 544
    s_add_u32 {s(sT0)}, {s(sT0)}, {WS_KVF}
    buffer_load_dwordx4 {v(KF,4)}, v9, {s(rWS,4)}, {s(sT0)} offen sc1
    v_lshlrev_b32 v9, 1, {v(vG)}
    v_and_b32 v12, 7, v6
    v_xor_b32 v9, v9, v12
    v_lshlrev_b32 v9, 4, v9
    v_lshrrev_b32 v12, 3, v6
    v_lshl_add_u32 v9, v12, 10, v9
    s_lshr_b32 {s(sT0)}, {s(sI)}, 1
    s_lshl_b32 {s(sT0)}, {s(sT0)}, 18
    s_and_b32 {s(sT1)}, {s(sI)}, 1
    s_lshl_b32 {s(sT1)}, {s(sT1)}, 14
    s_add_u32 {s(sT0)}, {s(sT0)}, {s(sT1)}
    s_lshl_b32 {s(sT1)}, {s(sOC)}, 7
    s_add_u32 {s(sT0)}, {s(sT0)}, {s(sT1)}
    v_add_u32 {v(hOW[0])}, {s(sT0)}, v9
    v_add_u32 {v(hOW[1])}, 7168, {v(hOW[0])}
    s_waitcnt vmcnt(0)
    {mf32(DB[0], KF, hPQ[0], '0')}
    {mf32(DB[1], KF, hPQ[1], '0')}
    """)

    def dma_w(st_):
        r = rBWO if st_ < 8 else rWO
        a(f"""
        s_add_u32 m0, {s(sT9)}, {wbase(st_)}
        s_mov_b32 {s(sT0)}, {(st_ % 8) * 32768}
        buffer_load_dwordx4 {v(hOW[0])}, {s(r,4)}, {s(sT0)} offen lds
        buffer_load_dwordx4 {v(hOW[1])}, {s(r,4)}, {s(sT0)} offen offset:1024 lds
        """)

    for st_ in (13, 14, 15):
        dma_w(st_)
    for th in range(2):
        D = DB[th]
        a(f"""
        v_add_f32 v12, {H(f2u(EPS))}, {v(D+8)}
        v_rcp_f32 v12, v12
        v_sub_f32 v9, 1.0, {v(hG[th])}
        v_mul_f32 v12, v12, v9
        v_mov_b32 v13, v12
        """)
        for i in range(0, 8, 2):
            a(f"v_pk_mul_f32 {v(D+i,2)}, {v(D+i,2)}, v[12:13]")
        for i in range(4):
            a(f"v_cvt_pk_bf16_f32 {v(D+8+i)}, {v(D+2*i)}, {v(D+2*i+1)}")
        a(f"""
        s_add_u32 {s(sT0)}, {s(sOOFF)}, {WS_OB + 32768*th}
        buffer_store_dwordx4 {v(D+8,4)}, {v(vL16)}, {s(rWS,4)}, {s(sT0)} offen sc1
        """)
    stamp("HoB")
    lpoll("prog", 4, 8)
    stamp("Hprog")
    for st_ in range(13):
        dma_w(st_)
    a("s_waitcnt vmcnt(0)")
    stamp("Hw")
    a("s_barrier")
    dump()
    a("s_endpgm")
    return a


HEADER = open('cdna_kernels/' + NAME + '.s.ref').read().split('; Override launch geometry')[0]


def wrap(a):
    k = NAME + '_kernel'
    return (HEADER + f"; @launch grid=(256,1,1) block=(768,1,1) lds={LDS_BYTES}\n"
            + f""".amdgcn_target "amdgcn-amd-amdhsa--gfx950"
.text
.globl {k}
.p2align 8
.type {k},@function
{k}:
""" + a.text() + f""".section .rodata,"a"
.p2align 6
.amdhsa_kernel {k}
  .amdhsa_next_free_vgpr {NVGPR}
  .amdhsa_next_free_sgpr 100
  .amdhsa_accum_offset {NVGPR}
  .amdhsa_group_segment_fixed_size 0
  .amdhsa_kernarg_size 96
  .amdhsa_user_sgpr_count 2
  .amdhsa_user_sgpr_kernarg_segment_ptr 1
  .amdhsa_system_sgpr_workgroup_id_x 1
.end_amdhsa_kernel
""")


if __name__ == '__main__':
    import argparse, json
    ap = argparse.ArgumentParser()
    ap.add_argument('out')
    ap.add_argument('--diag', action='store_true')
    ap.add_argument('--opts', default='{}')
    args = ap.parse_args()
    a = gen(args.diag, json.loads(args.opts))
    bad = check(a.lines)
    for b in bad:
        print("HAZARD need", b[0], "have", b[1], "|", b[2], "->", b[3])
    open(args.out, 'w').write(wrap(a))
    print("written", args.out, len(a.lines), "lines")
```

```python
import sys, struct
sys.path.insert(0, 'gen')
from asmlib import *

NAME = 'gated_mix__grouped_kv_mqa__linear_attn_block__prompt'


def f2u(x):
    return struct.unpack('<I', struct.pack('<f', x))[0]


def H(x):
    return f"0x{x & 0xffffffff:08x}"


WS_KV = 0
WS_G = 0x20000
WS_KVF = 0x22000
WS_C3 = 0x27000
WS_KVP = 0x28000
WS_OA = 0x200000
WS_OB = 0x400000
WS_SIZE = 0x600000
WS_DIAG = 0x600000
SLOT = 40960
STG = 122880
MISC = 131072
L_SCR = MISC
L_PQ = MISC + 8704
L_CNT = 163776
L_RED = 106496
LDS_BYTES = 163840
sW = 3
pX, pWQ, pWK, pWV, pWO, pBX, pWQKV, pBWO, pGATE, pOUT, pDBG, pWS = 4, 6, 8, 10, 12, 14, 16, 18, 20, 22, 24, 26
rX, rW1, rWKV, rGATE, rWS, rDBG, rOUT, rWO, rBWO = 28, 32, 36, 40, 44, 48, 52, 56, 60
sTB, sHG, sCH, sWSTEP, sOX, sOW, sI = 64, 65, 66, 67, 68, 69, 70
sT0, sT1, sT2, sT3, sKVT, sT5, sT6, sSTR, sT8 = 71, 72, 73, 74, 75, 76, 77, 78, 79
sVM = 80
sCNT = 82
sOOFF = 83
sOB_, sOC = 84, 85
sSV = 86
sST = 88
sH, sTH = 90, 91
sT9, sT10 = 92, 93
sSTG = 94
vL16, vL16H, vIDX, vGT = 1, 2, 3, 4
vQ, vPQ = 16, 20
vNM, vO = 24, 40
vS = [56, 72]
vK = [88, 92]
vVa = [96, 104]
vVb = [100, 108]
vST = 15
aQA, aQB, aKB, aVB = [24, 28], [32, 36], [40, 44], [48, 52]
HA, HB = 56, [112, 136]
vEPS, ONE, cE = 80, 84, 88
vXR = [160, 161]
vWR = 162
vCA, vF = 163, 164
vOA, vSCR, vPQA, vGA = 5, 165, 166, 167
vOW = [14, 160, 161, 162]
sCL, sCQ = 96, 98
sHK, sHQ = 100, 101
vR, vG = 7, 8
NVGPR = 168

LOG2E = 1.4426950408889634
QSCALE = 0.25 * LOG2E
EPS = 1e-6
VSCALE = 32
SPIN = 1 << 16


def gen(diag=False, opts=None):
    o = dict(pub=7, hprio=3, X=94, reb=[8], oa={4: 2, 5: 2, 6: 2, 7: 2}, pf=1, outmod='')
    if opts:
        o.update(opts)
    o['oa'] = {int(k_): v_ for k_, v_ in o['oa'].items()}
    MARGIN = float(o['X'])
    nb = o.get('nb', 2)
    xq, xk_ = o.get('xq', 1), o.get('xk', 2)
    a = Asm()
    nst = [0]

    def stamp(name, cyc=False):
        if o.get('probe') == name:
            a(f"s_memrealtime {s(sST,2)}\ns_waitcnt lgkmcnt(0)\ns_mov_b32 s95, {s(sST)}")
        if not diag or name in o.get('nostamp', ['B1', 'B2', 'B3', 'B4', 'B5', 'B6']):
            return
        k = nst[0]
        nst[0] += 1
        a.c(f"stamp {k} {name}")
        a(f"{'s_memtime' if cyc else 's_memrealtime'} {s(sST,2)}")
        a("s_waitcnt lgkmcnt(0)")
        a(f"v_writelane_b32 {v(vST)}, {s(sST)}, {k}")

    def dump():
        if diag:
            a(f"""
            s_mul_i32 {s(sT0)}, s2, 12
            s_add_u32 {s(sT0)}, {s(sT0)}, {s(sW)}
            s_lshl_b32 {s(sT0)}, {s(sT0)}, 8
            s_add_u32 {s(sT0)}, {s(sT0)}, {WS_DIAG}
            v_lshrrev_b32 v5, 2, {v(vL16)}
            buffer_store_dword {v(vST)}, v5, {s(rWS,4)}, {s(sT0)} offen
            """)

    def srd(r, p):
        a(f"s_mov_b32 {s(r)}, {s(p)}\ns_mov_b32 {s(r+1)}, {s(p+1)}")

    def srdc(r, n):
        a(f"s_mov_b32 {s(r+2)}, {n}\ns_mov_b32 {s(r+3)}, 0x20000")

    def mf16(d, A, B, C):
        C = C if isinstance(C, str) else v(C, 4)
        return f"v_mfma_f32_16x16x32_bf16 {v(d,4)}, {v(A,4)}, {v(B,4)}, {C}"

    def mf32(d, A, B, C):
        C = C if isinstance(C, str) else v(C, 16)
        return f"v_mfma_f32_32x32x16_bf16 {v(d,16)}, {v(A,4)}, {v(B,4)}, {C}"

    def smf(A, B):
        return f"v_smfmac_f32_32x32x32_bf16 {v(vO,16)}, {v(A,4)}, {v(B,8)}, {v(vIDX)}"

    def slot(it):
        return ((it + 1) % 3) * SLOT

    def wbase(st_):
        return 8192 * st_ if st_ <= 12 else MISC + 8192 * (st_ - 13)

    WSN = WS_SIZE + (0x100000 if diag else 0)

    a(f"""
    s_cmp_ge_u32 s2, 256
    s_cbranch_scc1 L_end
    {'s_memrealtime s[88:89]' if o.get('probe') else ''}
    s_load_dwordx16 s[4:19], s[0:1], 0
    s_load_dwordx8 s[20:27], s[0:1], 64
    v_lshrrev_b32 v5, 6, v0
    v_and_b32 v6, 63, v0
    v_readfirstlane_b32 {s(sW)}, v5
    v_lshlrev_b32 {v(vL16)}, 4, v6
    s_and_b32 {s(sT0)}, s2, 7
    s_lshr_b32 {s(sT2)}, s2, {3+nb}
    s_bfe_u32 {s(sT3)}, s2, {(nb << 16) + 3}
    s_lshr_b32 {s(sTB)}, {s(sT0)}, {3-nb}
    s_lshl{5-nb}_add_u32 {s(sTB)}, {s(sTB)}, {s(sT2)}
    s_and_b32 {s(sHG)}, {s(sT0)}, {(1 << (3-nb)) - 1}
    s_lshl{nb}_add_u32 {s(sHG)}, {s(sHG)}, {s(sT3)}
    s_lshr_b32 {s(sT1)}, s2, 6
    s_lshl2_add_u32 {s(sOB_)}, {s(sT0)}, {s(sT1)}
    s_bfe_u32 {s(sOC)}, s2, 0x30003
    v_lshrrev_b32 {v(vG)}, 4, v6
    v_and_b32 v11, 7, v6
    v_xor_b32 v10, v11, {v(vG)}
    v_lshlrev_b32 v10, 4, v10
    v_lshrrev_b32 v12, 3, v6
    v_lshl_add_u32 v10, v12, 10, v10
    """)
    if diag:
        a(f"v_mov_b32 {v(vST)}, 0")
    srdc(rX, 2097152)
    a(f"s_cmp_ge_u32 {s(sW)}, 8\ns_cbranch_scc1 L_helper")

    a(f"""
    s_lshr_b32 {s(sKVT)}, {s(sHG)}, 1
    s_lshl2_add_u32 {s(sKVT)}, {s(sTB)}, {s(sKVT)}
    s_lshl_b32 {s(sKVT)}, {s(sKVT)}, 4
    s_lshl_b32 {s(sT6)}, {s(sW)}, 7
    s_lshl_b32 {s(sT5)}, {s(sKVT)}, 10
    s_add_u32 {s(sT5)}, {s(sT5)}, {s(sT6)}
    s_lshl_b32 {s(sT9)}, {s(sW)}, 11
    s_lshl_b32 {s(sSTG)}, {s(sW)}, 12
    s_add_u32 {s(sSTG)}, {s(sSTG)}, {STG}
    s_mov_b32 m0, {s(sSTG)}
    v_xor_b32 v11, 64, v10
    v_add_u32 v11, 7168, v11
    v_lshlrev_b32 v9, 4, {v(vG)}
    v_and_b32 {v(vR)}, 15, v0
    s_and_b32 {s(sT8)}, {s(sHG)}, 1
    """)
    srdc(rWKV, 16384)
    srdc(rGATE, 1024)
    a(f"""
    s_cmp_eq_u32 {s(sT8)}, 0
    s_waitcnt lgkmcnt(0)
    s_cselect_b32 {s(rWKV)}, {s(pWK)}, {s(pWV)}
    s_cselect_b32 {s(rWKV+1)}, {s(pWK+1)}, {s(pWV+1)}
    """)
    srd(rX, pX)
    if o.get('probe'):
        a("s_mov_b32 s14, s88")
    xk = [56, 60]
    gk = [64, 68]
    wk = [72, 76]
    dk, dg = 24, 28
    a(f"""
    buffer_load_dwordx4 {v(vL16)}, {s(rWKV,4)}, {s(sT9)} offen lds
    buffer_load_dwordx4 {v(vL16)}, {s(rWKV,4)}, {s(sT9)} offen offset:1024 lds
    s_add_u32 m0, {s(sSTG)}, 2048
    """)
    srd(rGATE, pGATE)
    a(f"""
    buffer_load_dwordx4 v10, {s(rX,4)}, {s(sT5)} offen lds
    buffer_load_dwordx4 v11, {s(rX,4)}, {s(sT5)} offen offset:1024 lds
    buffer_load_dwordx4 {v(gk[0],4)}, v9, {s(rGATE,4)}, {s(sT6)} offen
    buffer_load_dwordx4 {v(gk[1],4)}, v9, {s(rGATE,4)}, {s(sT6)} offen offset:64
    """)
    stamp("start")
    if o['pf']:
        a("s_getpc_b64 s[12:13]")
        a.label("L_pc")
        a(f"""
        s_and_b32 {s(sT0)}, s2, 0xf8
        s_add_u32 {s(sT0)}, {s(sT0)}, {s(sW)}
        s_lshl_b32 {s(sT0)}, {s(sT0)}, 7
        s_min_u32 {s(sT0)}, {s(sT0)}, L_codeend-L_pc-4
        s_load_dword s18, s[12:13], {s(sT0)}
        """)
    srd(rWS, pWS)
    srdc(rWS, WSN)
    srd(rDBG, pDBG)
    srdc(rDBG, 256)
    srd(rOUT, pOUT)
    srdc(rOUT, 2097152)
    a(f"""
    s_and_b32 {s(sH)}, {s(sW)}, 3
    s_lshr_b32 {s(sTH)}, {s(sW)}, 2
    v_add_u32 {v(vL16H)}, 0x10000, {v(vL16)}
    v_mov_b32 {v(vIDX)}, 0xdddddddd
    s_mov_b32 {s(sVM)}, 0xffff
    s_mov_b32 {s(sVM+1)}, 0xffff
    v_lshrrev_b32 v11, 1, {v(vR)}
    v_xor_b32 v11, v11, {v(vG)}
    v_lshlrev_b32 v11, 4, v11
    v_lshl_add_u32 v11, {v(vR)}, 7, v11
    s_lshl_b32 {s(sT0)}, {s(sTH)}, 12
    s_add_u32 {s(sT0)}, {s(sT0)}, {slot(0)}
    v_add_u32 {v(vXR[0])}, {s(sT0)}, v11
    v_xor_b32 {v(vXR[1])}, 64, {v(vXR[0])}
    v_add_u32 v9, {s(sSTG)}, v11
    v_xor_b32 v10, 64, v9
    v_bfe_u32 v11, v6, 2, 2
    v_lshl_add_u32 v11, {v(vG)}, 3, v11
    v_and_b32 v12, 3, v6
    v_lshlrev_b32 v12, 3, v12
    v_lshl_add_u32 v13, v11, 5, v12
    v_add_u32 v13, {s(sSTG)}, v13
    v_lshl_add_u32 v11, v11, 7, v12
    v_bfe_u32 v12, v6, 3, 2
    v_xor_b32 v12, {s(sH)}, v12
    v_lshl_add_u32 v11, v12, 5, v11
    v_add_u32 {v(vWR)}, {8192 + slot(0)}, v11
    s_lshl1_add_u32 {s(sT0)}, {s(sTB)}, {s(sTH)}
    s_lshl_b32 {s(sT0)}, {s(sT0)}, 5
    s_lshl2_add_u32 {s(sT1)}, {s(sHG)}, {s(sH)}
    s_add_u32 {s(sT0)}, {s(sT0)}, {s(sT1)}
    s_lshl_b32 {s(sOOFF)}, {s(sT0)}, 10
    v_mov_b32 {v(vCA)}, {L_CNT}
    v_add_u32 v11, {s(sSTG)}, {v(vL16)}
    v_lshl_add_u32 v12, v6, 2, {s(sSTG)}
    """)
    for i in range(4):
        a(f"v_mov_b32 {v(vEPS+i)}, {H(f2u(EPS))}")
        a(f"v_mov_b32 {v(ONE+i)}, 0x3f803f80")
    a(f"""
    v_mov_b32 {v(cE)}, {H(f2u(-EPS*LOG2E))}
    v_mov_b32 {v(cE+1)}, {H(f2u(-EPS*LOG2E))}
    s_mov_b32 {s(sCL)}, {H(f2u(LOG2E))}
    s_mov_b32 {s(sCL+1)}, {H(f2u(LOG2E))}
    s_mov_b32 {s(sCQ)}, {H(f2u(QSCALE))}
    s_mov_b32 {s(sCQ+1)}, {H(f2u(QSCALE))}
    v_lshrrev_b32 v90, 1, {v(vG)}
    v_mad_u32_u24 v90, v90, 17, {v(vR)}
    v_and_b32 v91, 1, {v(vG)}
    v_lshlrev_b32 v91, 4, v91
    v_lshl_add_u32 v90, v90, 5, v91
    s_mul_i32 {s(sT0)}, {s(sW)}, 1088
    s_add_u32 {s(sT0)}, {s(sT0)}, {L_SCR}
    v_add_u32 {v(vSCR)}, {s(sT0)}, v90
    s_lshl_b32 {s(sT0)}, {s(sW)}, 10
    s_add_u32 {s(sT0)}, {s(sT0)}, {L_PQ}
    v_add_u32 {v(vPQA)}, {s(sT0)}, {v(vL16)}
    s_lshl1_add_u32 {s(sT1)}, {s(sTB)}, {s(sTH)}
    s_lshl_b32 {s(sT1)}, {s(sT1)}, 7
    s_add_u32 {s(sT1)}, {s(sT1)}, {WS_G}
    v_and_b32 v90, 31, v0
    v_lshl_add_u32 {v(vGA)}, v90, 2, {s(sT1)}
    v_lshlrev_b32 {v(vOA)}, 9, {v(vG)}
    v_lshl_add_u32 {v(vOA)}, {v(vR)}, 4, {v(vOA)}
    s_lshr_b32 {s(sT0)}, {s(sH)}, 1
    s_lshl1_add_u32 {s(sT0)}, {s(sOB_)}, {s(sT0)}
    s_lshl1_add_u32 {s(sT0)}, {s(sT0)}, {s(sTH)}
    s_lshl_b32 {s(sT0)}, {s(sT0)}, 14
    s_and_b32 {s(sT1)}, {s(sH)}, 1
    s_lshl_b32 {s(sT1)}, {s(sT1)}, 8
    s_add_u32 {s(sT10)}, {s(sT0)}, {s(sT1)}
    v_bfe_u32 v90, v0, 2, 2
    v_bfe_u32 v91, v0, 4, 1
    v_lshl_add_u32 v90, v91, 2, v90
    v_bfe_u32 v91, v0, 5, 1
    v_lshl_add_u32 v90, v91, 4, v90
    v_and_b32 v91, 3, v0
    v_lshlrev_b32 v91, 3, v91
    v_lshl_add_u32 v90, v90, 7, v91
    v_bfe_u32 v91, v0, 3, 2
    v_lshl_add_u32 v90, v91, 5, v90
    s_mul_i32 {s(sT0)}, {s(sTH)}, 0x1040
    v_xor_b32 {v(vOW[0])}, {s(sT0)}, v90
    """)
    for i in range(0, 16, 2):
        a(f"v_mov_b64 {v(vVa[0]+i,2)}, 0")
    a("s_mov_b32 exec_lo, 0x00110000\ns_mov_b32 exec_hi, 0x00110000")
    for i in range(0, 16, 2):
        a(f"v_mov_b64 {v(vVa[0]+i,2)}, {v(ONE,2)}")
    a("s_mov_b64 exec, -1")
    a("s_waitcnt vmcnt(0) lgkmcnt(0)")
    stamp("kvloads")
    a(f"""
    ds_read_b128 {v(xk[0],4)}, v9 offset:2048
    ds_read_b128 {v(xk[1],4)}, v10 offset:2048
    ds_read_b64_tr_b16 {v(wk[0],2)}, v13
    ds_read_b64_tr_b16 {v(wk[0]+2,2)}, v13 offset:128
    ds_read_b64_tr_b16 {v(wk[1],2)}, v13 offset:1024
    ds_read_b64_tr_b16 {v(wk[1]+2,2)}, v13 offset:1152
    s_cmp_eq_u32 {s(sT8)}, 0
    s_waitcnt lgkmcnt(4)
    {mf16(dg, gk[0], xk[0], '0')}
    {mf16(dg, gk[1], xk[1], dg)}
    s_waitcnt lgkmcnt(0)
    s_cbranch_scc0 L_isV
    {mf16(dk, wk[0], xk[0], '0')}
    {mf16(dk, wk[1], xk[1], dk)}
    s_branch L_kvj
    """)
    a.label("L_isV")
    a(f"""
    {mf16(dk, xk[0], wk[0], '0')}
    {mf16(dk, xk[1], wk[1], dk)}
    """)
    a.label("L_kvj")
    a(f"""
    s_nop 5
    ds_write_b32 v12, {v(dg)} offset:1024
    s_nop 0
    ds_write_b128 v11, {v(dk,4)}
    s_waitcnt lgkmcnt(0)
    s_barrier
    """)
    stamp("B0")
    stamp("B0c", cyc=True)

    def reads(it):
        L = []
        for ks in range(2):
            b = HB[it % 2] if ks else HA
            L.append(f"ds_read_b128 {v(b,4)}, {v(vXR[ks])}")
            for mt in range(4):
                for u in range(2):
                    L.append(f"ds_read_b64_tr_b16 {v(b+8+4*mt+2*u,2)}, {v(vWR)} offset:{mt*8192+ks*4096+u*512}")
                if mt == 0:
                    L.append(f"ds_read_b128 {v(b+4,4)}, {v(vXR[ks])} offset:2048")
        if o.get('noread') and it > 1:
            return []
        return L

    def mfmas(it, ks):
        b = HB[it % 2] if ks else HA
        x = [b, b + 4]
        W = [b + 8 + 4 * m for m in range(4)]
        f = (it == 0 and ks == 0)
        L = []
        for sub in range(2):
            L.append(mf16(aQA[sub], W[0], x[sub], '0' if f else aQA[sub]))
        for sub in range(2):
            L.append(mf16(aQB[sub], W[1], x[sub], vEPS if f else aQB[sub]))
        for sub in range(2):
            L.append(mf16(aKB[sub], x[sub], W[2], vEPS if f else aKB[sub]))
        for sub in range(2):
            L.append(mf16(aVB[sub], x[sub], W[3], '0' if f else aVB[sub]))
        if o.get('nomfma') and it > 0:
            return ["s_nop 0"] * 8
        return L

    P = 112
    GP = 144
    a(f"s_cmp_eq_u32 {s(sW)}, {o['pub']}\ns_cbranch_scc0 L_nopub")
    a(f"v_add_u32 v11, {STG}, {v(vL16)}\nv_lshlrev_b32 v12, 2, v6\nv_add_u32 v12, {STG}, v12")
    for i in range(8):
        a(f"ds_read_b128 {v(P+4*i,4)}, v11 offset:{4096*i}")
    for i in range(8):
        a(f"ds_read_b32 {v(GP+i)}, v12 offset:{4096*i+1024}")
    a(f"""
    v_lshrrev_b32 v11, 1, {v(vG)}
    v_lshlrev_b32 v11, 9, v11
    v_lshl_add_u32 v11, {v(vR)}, 4, v11
    v_and_b32 v12, 1, {v(vG)}
    v_lshl_add_u32 v11, v12, 3, v11
    s_lshr_b32 {s(sT0)}, {s(sKVT)}, 5
    s_lshl_b32 {s(sT0)}, {s(sT0)}, 11
    s_and_b32 {s(sT1)}, {s(sKVT)}, 16
    s_lshl_b32 {s(sT1)}, {s(sT1)}, 4
    s_add_u32 {s(sT0)}, {s(sT0)}, {s(sT1)}
    s_lshl_b32 {s(sT1)}, {s(sT8)}, 10
    s_add_u32 {s(sT0)}, {s(sT0)}, {s(sT1)}
    s_lshl_b32 {s(sT1)}, {s(sKVT)}, 2
    s_add_u32 {s(sT1)}, {s(sT1)}, {WS_G}
    v_lshlrev_b32 v12, 2, {v(vR)}
    s_waitcnt lgkmcnt(8)
    """)
    for st_ in (4, 8, 16):
        for i in range(0, 32, 2 * st_):
            a(f"v_pk_add_f32 {v(P+i,2)}, {v(P+i,2)}, {v(P+i+st_,2)}")
            a(f"v_pk_add_f32 {v(P+i+2,2)}, {v(P+i+2,2)}, {v(P+i+st_+2,2)}")
    a(f"""
    s_lshl_b32 {s(sT2)}, {s(sT8)}, {VSCALE.bit_length()-1}
    v_ldexp_f32 {v(P)}, {v(P)}, {s(sT2)}
    v_ldexp_f32 {v(P+1)}, {v(P+1)}, {s(sT2)}
    v_ldexp_f32 {v(P+2)}, {v(P+2)}, {s(sT2)}
    v_ldexp_f32 {v(P+3)}, {v(P+3)}, {s(sT2)}
    v_cvt_pk_bf16_f32 v152, {v(P)}, {v(P+1)}
    v_cvt_pk_bf16_f32 v153, {v(P+2)}, {v(P+3)}
    buffer_store_dwordx2 v[152:153], v11, {s(rWS,4)}, {s(sT0)} offen sc1
    s_waitcnt lgkmcnt(0)
    v_pk_add_f32 {v(GP,2)}, {v(GP,2)}, {v(GP+2,2)}
    v_pk_add_f32 {v(GP+4,2)}, {v(GP+4,2)}, {v(GP+6,2)}
    v_pk_add_f32 {v(GP,2)}, {v(GP,2)}, {v(GP+4,2)}
    v_add_f32 {v(GP)}, {v(GP)}, {v(GP+1)}
    v_mul_f32 {v(GP)}, {H(f2u(-LOG2E))}, {v(GP)}
    v_exp_f32 {v(GP)}, {v(GP)}
    s_nop 0
    v_add_f32 {v(GP)}, 1.0, {v(GP)}
    v_rcp_f32 {v(GP)}, {v(GP)}
    s_mov_b64 exec, 0xffff
    buffer_store_dword {v(GP)}, v12, {s(rWS,4)}, {s(sT1)} offen sc1
    s_mov_b64 exec, -1
    s_cmp_lg_u32 {s(sTB)}, 0
    s_cbranch_scc1 L_nopub
    v_mov_b32 v154, 0
    s_lshl_b32 {s(sT1)}, {s(sHG)}, 7
    s_add_u32 {s(sT1)}, {s(sT1)}, {WS_C3}
    s_mov_b64 exec, 1
    buffer_store_dword v154, v154, {s(rWS,4)}, {s(sT1)} offen sc1
    s_mov_b64 exec, -1
    """)
    a.label("L_nopub")
    for ln in reads(0):
        a(ln)

    sig_at = o.get('sig_at', 1)
    for it in range(8):
        a("s_waitcnt lgkmcnt(10)")
        for ln in mfmas(it, 0):
            a(ln)
        if it < 7:
            d = slot(it + 1) - slot(it)
            op = "v_add_u32" if d > 0 else "v_subrev_u32"
            for r_ in (vXR[0], vXR[1], vWR):
                a(f"{op} {v(r_)}, {abs(d)}, {v(r_)}")
            if it == sig_at:
                a(f"""
                s_cmp_eq_u32 {s(sW)}, {o['pub']}
                s_cbranch_scc0 L_nosig1
                s_and_b32 {s(sT0)}, s2, 0x18
                s_lshl_b32 {s(sT0)}, {s(sT0)}, 3
                v_mov_b32 v11, 0
                v_mov_b32 v12, 1
                s_mov_b64 exec, 1
                s_waitcnt vmcnt(0)
                buffer_atomic_add v12, v11, {s(rDBG,4)}, {s(sT0)} offen sc1
                s_mov_b64 exec, -1
                """)
                a.label("L_nosig1")
            a("s_waitcnt lgkmcnt(0)")
            early = (it == 6 and o.get('early6', 1))
            if early:
                for ln in mfmas(it, 1):
                    a(ln)
            a("s_barrier")
            stamp(f"B{it+1}")
            if it == 6:
                stamp("B7c", cyc=True)
            R_ = reads(it + 1)
            M_ = mfmas(it, 1) if not early else [""] * 8
            for i, m_ in enumerate(M_):
                a(m_)
                for ln in R_[i * len(R_) // 8:(i + 1) * len(R_) // 8]:
                    a(ln)
        else:
            a("s_waitcnt lgkmcnt(0)")
            for ln in mfmas(it, 1):
                a(ln)
    stamp("gemm1")

    def phi(src, dst, tmp):
        for i in range(0, 8, 2):
            a(f"v_pk_fma_f32 {v(tmp+i,2)}, {v(src+i,2)}, {s(sCL,2)}, {v(cE,2)}")
        for i in range(8):
            a(f"v_exp_f32 {v(tmp+i)}, {v(tmp+i)} clamp")
        for i in range(8):
            a(f"v_max_f32 {v(src+i)}, {v(src+i)}, {v(vEPS)}")
        for i in range(0, 8, 2):
            a(f"v_pk_add_f32 {v(src+i,2)}, {v(src+i,2)}, {v(tmp+i,2)}")
        for i in range(4):
            a(f"v_cvt_pk_bf16_f32 {v(dst+i)}, {v(src+2*i)}, {v(src+2*i+1)}")

    PK, VF, TM, DKV, DZ = 56, 60, 64, 72, 76
    a("s_nop 0")
    for i in range(0, 8, 2):
        a(f"v_pk_mul_f32 {v(aQA[0]+i,2)}, {v(aQA[0]+i,2)}, {s(sCQ,2)}")
    for i in range(4):
        a(f"v_cvt_pk_bf16_f32 {v(vQ+i)}, {v(aQA[0]+2*i)}, {v(aQA[0]+2*i+1)}")
    phi(aKB[0], PK, TM)
    for i in range(4):
        a(f"v_cvt_pk_bf16_f32 {v(VF+i)}, {v(aVB[0]+2*i)}, {v(aVB[0]+2*i+1)}")
    a(f"""
    v_permlane16_swap_b32 {v(vQ)}, {v(vQ+2)}
    v_permlane16_swap_b32 {v(vQ+1)}, {v(vQ+3)}
    """)
    a(mf16(DKV, PK, VF, '0'))
    a(mf16(DZ, PK, ONE, '0'))
    phi(aQB[0], vPQ, TM)
    a(f"""
    ds_write_b128 {v(vSCR)}, {v(DKV,4)}
    v_mov_b64 {v(vO,2)}, 0
    v_permlane16_swap_b32 {v(vPQ)}, {v(vPQ+2)}
    v_permlane16_swap_b32 {v(vPQ+1)}, {v(vPQ+3)}
    ds_write_b128 {v(vPQA)}, {v(vPQ,4)}
    s_mov_b32 exec_lo, 0x00010001
    s_mov_b32 exec_hi, 0x00010001
    ds_write_b128 {v(vSCR)}, {v(DZ,4)} offset:512
    s_mov_b64 exec, -1
    """)
    for i in range(2, 10, 2):
        a(f"v_mov_b64 {v(vO+i,2)}, 0")
    a("s_waitcnt lgkmcnt(0)\ns_barrier")
    stamp("X1")

    def tadr(t, off):
        byte = t * 2048 + off
        return (vL16, byte) if byte < 65536 else (vL16H, byte - 65536)

    def rdK(r, t):
        b, off = tadr(t, 0)
        return f"ds_read_b128 {v(r,4)}, {v(b)} offset:{off}"

    def rdV(r, t, blk):
        b, off = tadr(t, 1024 + 256 * blk)
        return f"ds_read_b128 {v(r,4)}, {v(b)} offset:{off}"

    KT = 112
    a("s_setprio 2")
    a(rdK(KT, 0))
    a(rdK(vK[0], 1))
    a(rdK(vK[1], 2))
    a(f"s_mov_b64 exec, {s(sVM,2)}")
    a(rdV(vVa[0], 0, 0))
    a(rdV(vVb[1], 0, 1))
    a(rdV(vVa[1], 1, 0))
    a("s_mov_b64 exec, -1")
    a(f"""
    s_waitcnt lgkmcnt(5)
    {mf32(vS[0], KT, vQ, '0')}
    v_mov_b32 v13, 1
    s_nop 10
    """)

    def rowmax(S, dst, first_):
        if first_:
            a(f"v_max3_f32 {v(dst)}, {v(S)}, {v(S+1)}, {v(S+2)}")
            a(f"v_max3_f32 {v(dst+1)}, {v(S+3)}, {v(S+4)}, {v(S+5)}")
            rest = list(range(6, 16))
        else:
            rest = list(range(16))
        for n, i in enumerate(rest[::2]):
            d = dst + (n % 2)
            a(f"v_max3_f32 {v(d)}, {v(d)}, {v(S+i)}, {v(S+i+1)}")

    def finish_max(dst, margin):
        a(f"""
        v_max_f32 {v(dst)}, {v(dst)}, {v(dst+1)}
        v_mov_b32 {v(dst+1)}, {v(dst)}
        s_nop 1
        v_permlane32_swap_b32 {v(dst)}, {v(dst+1)}
        v_max_f32 {v(dst)}, {v(dst)}, {v(dst+1)}
        v_sub_f32 {v(vNM)}, {H(f2u(-margin))}, {v(dst)}
        v_mov_b32 {v(vNM+1)}, {v(vNM)}
        """)
        for i in range(2, 16, 2):
            a(f"v_mov_b64 {v(vNM+i,2)}, {v(vNM,2)}")

    rowmax(vS[0], 10, True)
    finish_max(10, MARGIN)
    a("s_nop 1")
    a(mf32(vS[0], KT, vQ, vNM))
    a("s_waitcnt lgkmcnt(0)\ns_nop 9")
    stamp("attn0")
    stamp("attn0c", cyc=True)
    a("s_setprio 0")

    def ex(r):
        return f"v_exp_f32 {v(r)}, {v(r)}"

    def block(t, prio):
        b = t % 2
        S, Pn = vS[b], vS[1 - b]
        L = [ex(S)]
        if prio:
            L.append("s_setprio 1")
        if t in o['reb']:
            L += [f"v_frexp_exp_i32_f32 v10, {v(vO+8)}",
                  f"v_sub_u32 v10, {1 - o['X']}, v10",
                  f"v_max_i32 v10, 0xffffff88, v10",
                  f"v_cvt_f32_i32 v11, v10",
                  f"v_add_f32 {v(vNM)}, {v(vNM)}, v11",
                  f"v_ldexp_f32 v10, 1.0, v10",
                  f"v_mov_b32 {v(vNM+1)}, {v(vNM)}",
                  f"v_mov_b32 v11, v10"]
            L += [f"v_mov_b64 {v(vNM+i,2)}, {v(vNM,2)}" for i in range(2, 16, 2)]
        L.append(ex(S + 1))
        if t > 0:
            L.append(smf(vVb[b], Pn + 8))
        L += [ex(S + i) for i in range(2, 5)]
        if t < 63:
            L.append(mf32(Pn, vK[b], vQ, vNM))
        if t - 1 in o['reb']:
            L += [ex(S + i) for i in range(5, 13)]
            L += [f"v_pk_mul_f32 {v(vO+i,2)}, {v(vO+i,2)}, v[10:11]" for i in range(0, 10, 2)]
            L += [ex(S + 13), ex(S + 14), smf(vVa[b], S), ex(S + 15)]
            return L
        L += [ex(S + i) for i in range(5, 10)]
        L.append(smf(vVa[b], S))
        L += [ex(S + i) for i in range(10, 16)]
        return L

    OBF = 112
    OAF = 24
    CKP = [26, 42, 50]

    def load_o(dst, base, frm=0, to=8):
        for i in range(frm, to):
            if i == frm or i % 2 == 0:
                a(f"s_add_u32 {s(sT0)}, {s(sT10)}, {base + 4096*(i//2)}")
            a(f"buffer_load_dwordx4 {v(dst+4*i,4)}, {v(vOA)}, {s(rWS,4)}, {s(sT0)} offen offset:{2048*(i%2)} sc1")

    slow = []

    def flagcheck(name, thr):
        a(f"""
        s_cmp_lt_u32 {s(sT2)}, {thr}
        s_cbranch_scc1 L_spin_{name}
        """)
        a.label(f"L_ok_{name}")
        slow.append((name, thr))

    for t in range(0, 64, 2):
        for ln in block(t, True) + block(t + 1, False):
            a(ln)
        if t in (12, 54):
            a(f"v_readfirstlane_b32 {s(sT2)}, {v(vF)}")
        a("s_setprio 0")
        if t == 12:
            flagcheck("kv", 4)
        if t == 54:
            flagcheck("s2", 16)
        if t < 62:
            a(f"s_mov_b64 exec, {s(sVM,2)}")
            a(rdV(vVb[0], t + 1, 1))
            a(rdV(vVa[0], t + 2, 0))
            a(rdV(vVb[1], t + 2, 1))
            a(rdV(vVa[1], t + 3, 0))
            a("s_mov_b64 exec, -1")
            a(rdK(vK[0], t + 3))
            if t + 4 < 64:
                a(rdK(vK[1], t + 4))
        else:
            a(f"s_mov_b64 exec, {s(sVM,2)}")
            a(rdV(vVb[0], 63, 1))
            a("s_mov_b64 exec, -1")
        if t == 20:
            a(f"buffer_load_dword {v(vGT)}, {v(vGA)}, {s(rWS,4)}, 0 offen sc1")
        if t in (10, 52):
            a(f"ds_read_b32 {v(vF)}, {v(vCA)}")
        if t in (54, 56, 58, 60):
            k = (t - 54)
            load_o(OBF, WS_OB, k, k + 2)
        a("s_waitcnt lgkmcnt(0)")
        if t in CKP:
            a(f"s_mov_b64 exec, 1\nds_add_u32 {v(vCA)}, v13 offset:{4 + 4*CKP.index(t)}\ns_mov_b64 exec, -1")
    a(smf(vVb[0], vS[1] + 8))
    stamp("attn1c", cyc=True)
    stamp("attn1")
    vRW, vRR, vOUT = 12, 13, 6
    a(f"""
    s_lshl_b32 {s(sT0)}, {s(sW)}, 11
    s_add_u32 {s(sT1)}, {s(sT0)}, {L_RED}
    v_add_u32 {v(vRW)}, {s(sT1)}, {v(vL16)}
    s_xor_b32 {s(sT0)}, {s(sT0)}, 8192
    s_add_u32 {s(sT1)}, {s(sT0)}, {L_RED}
    v_add_u32 {v(vRR)}, {s(sT1)}, {v(vL16)}
    v_bfe_u32 v9, v0, 4, 1
    v_bfe_u32 v10, v0, 5, 1
    v_lshlrev_b32 v9, 5, v9
    v_lshl_add_u32 v9, v10, 4, v9
    v_and_b32 v10, 15, v0
    v_lshl_add_u32 {v(vOUT)}, v10, 10, v9
    """)
    a(f"""
    s_mov_b32 {s(sT2)}, {H(f2u(2.0**-99))}
    v_add_f32 v9, |{v(vO)}|, |{v(vO+1)}|
    v_add_f32 v10, |{v(vO+2)}|, |{v(vO+3)}|
    v_add_f32 v9, v9, |{v(vO+4)}|
    v_add_f32 v10, v10, |{v(vO+5)}|
    v_add_f32 v9, v9, |{v(vO+6)}|
    v_add_f32 v10, v10, |{v(vO+7)}|
    v_add_f32 v9, v9, v10
    v_cmp_gt_f32 {s(sSV,2)}, {s(sT2)}, v9
    v_add_f32 v9, v9, {v(vO+8)}
    v_cmp_ngt_f32 vcc, {H(f2u(2.0**115))}, v9
    s_waitcnt vmcnt(0)
    s_or_b64 vcc, vcc, {s(sSV,2)}
    s_cbranch_vccnz L_fallback
    """)
    a.label("L_norm")
    a(f"""
    v_rcp_f32 v10, {v(vO+8)}
    v_mul_f32 v8, {H(f2u(2.0**-VSCALE))}, {v(vGT)}
    v_mov_b32 v11, v10
    v_mov_b32 v9, v8
    s_add_u32 {s(sT0)}, {s(sOOFF)}, {WS_OA}
    """)
    for i in range(0, 8, 2):
        a(f"v_pk_mul_f32 {v(vO+i,2)}, {v(vO+i,2)}, v[10:11]")
    for i in range(0, 8, 2):
        a(f"v_pk_mul_f32 {v(vO+i,2)}, {v(vO+i,2)}, v[8:9]")
    for i in range(4):
        a(f"v_cvt_pk_bf16_f32 {v(vQ+i)}, {v(vO+2*i)}, {v(vO+2*i+1)}")
    a(f"buffer_store_dwordx4 {v(vQ,4)}, {v(vL16)}, {s(rWS,4)}, {s(sT0)} offen sc1")
    a(f"""
    v_xor_b32 {v(vOW[1])}, 32, {v(vOW[0])}
    v_xor_b32 {v(vOW[2])}, 64, {v(vOW[0])}
    v_xor_b32 {v(vOW[3])}, 0x60, {v(vOW[0])}
    s_barrier
    """)
    stamp("X5")

    acc = [144, 148, 152, 156]
    WR = [56, 72, 88]

    def rdW(st_):
        L = []
        b = wbase(st_)
        if st_ in (8, 13):
            L += [f"v_add_u32 {v(r_)}, 0x10000, {v(r_)}" for r_ in vOW]
        for ct in range(4):
            for u in range(2):
                L.append(f"ds_read_b64_tr_b16 {v(WR[st_%3]+4*ct+2*u,2)}, {v(vOW[ct])} offset:{(b & 0xffff) + 1024*u}")
        return L

    def chk(F, lab):
        a(f"""
        v_max3_u32 v9, {v(F)}, {v(F+1)}, {v(F+2)}
        v_max_u32 v9, v9, {v(F+3)}
        v_cmp_eq_u32 vcc, -1, v9
        s_nop 0
        s_cbranch_vccnz {lab}
        """)

    for ln in rdW(0) + rdW(1):
        a(ln)
    a(f"s_mov_b32 {s(sCNT)}, {SPIN}")
    a.label("L_chkB")
    a(f"v_max3_u32 v9, {v(OBF)}, {v(OBF+1)}, {v(OBF+2)}")
    a(f"v_max_u32 v9, v9, {v(OBF+3)}")
    for i in range(4, 32, 2):
        a(f"v_max3_u32 v9, v9, {v(OBF+i)}, {v(OBF+i+1)}")
    a("v_cmp_eq_u32 vcc, -1, v9\ns_nop 0\ns_cbranch_vccnz L_reB")
    a.label("L_okB")
    nld = 0
    for st_ in range(16):
        F = (OBF if st_ < 8 else OAF) + 4 * (st_ % 8)
        if st_ >= 8:
            a.label(f"L_try{st_}")
            a(f"s_waitcnt vmcnt({15-st_})")
            chk(F, f"L_re{st_}")
            a.label(f"L_go{st_}")
        a(f"s_waitcnt lgkmcnt({8 if st_ < 15 else 0})")
        R_ = rdW(st_ + 2) if st_ + 2 < 16 else []
        for ct in range(4):
            a(mf16(acc[ct], WR[st_ % 3] + 4 * ct, F, '0' if st_ == 0 else acc[ct]))
            for ln in R_[ct * len(R_) // 4:(ct + 1) * len(R_) // 4]:
                a(ln)
        if st_ in o['oa']:
            load_o(OAF, WS_OA, nld, nld + o['oa'][st_])
            nld += o['oa'][st_]
        if st_ == 7:
            stamp("Bpart")
    stamp("outmm")
    a(f"""
    s_lshl_b32 {s(sT0)}, {s(sOB_)}, 16
    s_lshl_b32 {s(sT1)}, {s(sH)}, 14
    s_add_u32 {s(sT0)}, {s(sT0)}, {s(sT1)}
    s_lshl_b32 {s(sT1)}, {s(sOC)}, 7
    s_add_u32 {s(sT0)}, {s(sT0)}, {s(sT1)}
    s_lshl_b32 {s(sT1)}, {s(sTH)}, 6
    s_add_u32 {s(sT0)}, {s(sT0)}, {s(sT1)}
    ds_write_b128 {v(vRW)}, {v(acc[2],4)}
    ds_write_b128 {v(vRW)}, {v(acc[3],4)} offset:1024
    s_waitcnt lgkmcnt(0)
    s_barrier
    ds_read_b128 v[24:27], {v(vRR)}
    ds_read_b128 v[28:31], {v(vRR)} offset:1024
    s_waitcnt lgkmcnt(0)
    """)
    for i in range(0, 8, 2):
        a(f"v_pk_add_f32 {v(acc[0]+i,2)}, {v(acc[0]+i,2)}, {v(24+i,2)}")
    for i in range(4):
        a(f"v_cvt_pk_bf16_f32 {v(32+i)}, {v(acc[0]+2*i)}, {v(acc[0]+2*i+1)}")
    a(f"""
    s_nop 0
    v_permlane16_swap_b32 v32, v34
    v_permlane16_swap_b32 v33, v35
    buffer_store_dwordx4 v[32:35], {v(vOUT)}, {s(rOUT,4)}, {s(sT0)} offen {o['outmod']}
    """)
    if diag:
        a("s_waitcnt vmcnt(0)")
        stamp("end")
        a(f"v_writelane_b32 {v(vST)}, {s(sCNT)}, 63")
        dump()
    if o.get('probe'):
        a("s_waitcnt vmcnt(0)")
        stamp("end")
        if o['probe'] == 'none':
            a("s_mov_b32 s95, s14")
        a(f"""
        s_sub_u32 s95, s95, s14
        s_mul_i32 s95, s95, {o.get('mult', 10)}
        s_add_u32 s95, s95, 6000
        """)
        a.label("L_pad")
        a(f"""
        s_memrealtime {s(sST,2)}
        s_waitcnt lgkmcnt(0)
        s_sub_u32 {s(sST)}, {s(sST)}, s14
        s_cmp_lt_u32 {s(sST)}, s95
        s_cbranch_scc1 L_pad
        """)
    a.label("L_end")
    a("s_endpgm")

    a.label("L_reB")
    load_o(OBF, WS_OB)
    a(f"""
    s_sub_u32 {s(sCNT)}, {s(sCNT)}, 1
    s_cmp_eq_u32 {s(sCNT)}, 0
    s_waitcnt vmcnt(0)
    s_cbranch_scc0 L_chkB
    s_branch L_okB
    """)
    for st_ in range(8, 16):
        a.label(f"L_re{st_}")
        a(f"""
        s_cmp_eq_u32 {s(sCNT)}, 0
        s_cbranch_scc1 L_go{st_}
        s_sub_u32 {s(sCNT)}, {s(sCNT)}, 1
        s_waitcnt vmcnt(0)
        """)
        load_o(OAF, WS_OA, st_ - 8, 8)
        a(f"s_branch L_try{st_}")
    for name, thr in slow:
        a.label(f"L_spin_{name}")
        a(f"s_mov_b32 {s(sCNT)}, {SPIN*16}")
        a.label(f"L_spin2_{name}")
        a(f"""
        ds_read_b32 {v(vF)}, {v(vCA)}
        s_sub_u32 {s(sCNT)}, {s(sCNT)}, 1
        s_cmp_eq_u32 {s(sCNT)}, 0
        s_cbranch_scc1 L_ok_{name}
        s_waitcnt lgkmcnt(0)
        v_readfirstlane_b32 {s(sT2)}, {v(vF)}
        s_nop 0
        s_cmp_lt_u32 {s(sT2)}, {thr}
        s_cbranch_scc1 L_spin2_{name}
        s_branch L_ok_{name}
        """)

    a.label("L_fallback")
    a.c("true row max, then the same accumulation, K/V read from the global image")
    a(f"""
    v_mov_b32 v10, 0xff800000
    v_mov_b32 v11, 0xff800000
    s_mov_b32 {s(sT0)}, 0
    """)
    a.label("L_fb1")
    a(f"""
    buffer_load_dwordx4 {v(vK[0],4)}, {v(vL16)}, {s(rWS,4)}, {s(sT0)} offen sc1
    s_waitcnt vmcnt(0)
    {mf32(vS[0], vK[0], vQ, '0')}
    s_nop 11
    """)
    rowmax(vS[0], 10, False)
    a(f"""
    s_add_u32 {s(sT0)}, {s(sT0)}, 2048
    s_cmp_lt_u32 {s(sT0)}, 131072
    s_cbranch_scc1 L_fb1
    """)
    finish_max(10, 0.0)
    for i in range(0, 16, 2):
        a(f"v_mov_b64 {v(vO+i,2)}, 0")
    a(f"s_mov_b32 {s(sT0)}, 0")
    a.label("L_fb2")
    a(f"""
    buffer_load_dwordx4 {v(vK[0],4)}, {v(vL16)}, {s(rWS,4)}, {s(sT0)} offen sc1
    s_mov_b64 exec, {s(sVM,2)}
    buffer_load_dwordx4 {v(vVa[0],4)}, {v(vL16)}, {s(rWS,4)}, {s(sT0)} offen offset:1024 sc1
    buffer_load_dwordx4 {v(vVb[0],4)}, {v(vL16)}, {s(rWS,4)}, {s(sT0)} offen offset:1280 sc1
    s_mov_b64 exec, -1
    s_waitcnt vmcnt(0)
    {mf32(vS[0], vK[0], vQ, vNM)}
    s_nop 11
    """)
    for i in range(16):
        a(ex(vS[0] + i))
    a(f"""
    s_nop 1
    {smf(vVa[0], vS[0])}
    {smf(vVb[0], vS[0]+8)}
    s_add_u32 {s(sT0)}, {s(sT0)}, 2048
    s_cmp_lt_u32 {s(sT0)}, 131072
    s_nop 7
    s_cbranch_scc1 L_fb2
    s_nop 15
    s_branch L_norm
    """)

    a(".p2align 6")
    a.label("L_helper")
    hX0, hX1 = 16, 17
    hW = [18, 19, 20, 21]
    a(f"""
    s_sub_u32 {s(sI)}, {s(sW)}, 8
    s_lshl{1 if nb != 1 else 2}_add_u32 {s(sCH)}, {s(sT3 if nb < 3 else sT2)}, {s(sT2 if nb < 3 else sT3)}
    s_and_b32 {s(sCH)}, {s(sCH)}, {o.get('rotmask', 7)}
    s_lshl2_add_u32 {s(sT8)}, {s(sTB)}, {s(sI)}
    s_lshl_b32 {s(sT8)}, {s(sT8)}, 14
    v_add_u32 {v(hX0)}, {s(sT8)}, v10
    v_xor_b32 {v(hX1)}, 64, {v(hX0)}
    v_add_u32 {v(hX1)}, 7168, {v(hX1)}
    s_max_u32 {s(sT0)}, {s(sI)}, 1
    s_sub_u32 {s(sT0)}, {s(sT0)}, 1
    s_lshl_b32 {s(sT1)}, {s(sI)}, 2
    s_lshr_b32 {s(sT1)}, {(xq << 4) + (xk_ << 8) + (xk_ << 12)}, {s(sT1)}
    s_and_b32 {s(sT1)}, {s(sT1)}, 7
    s_xor_b32 {s(sT1)}, {s(sT1)}, {s(sHG)}
    s_lshl3_add_u32 {s(sT0)}, {s(sT0)}, {s(sT1)}
    s_lshl_b32 {s(sT0)}, {s(sT0)}, 7
    s_lshl_b32 {s(sT9)}, {s(sI)}, 11
    s_lshl_b32 {s(sT10)}, {s(sI)}, 13
    s_mov_b32 {s(rW1+3)}, 0x20000
    s_cmp_eq_u32 {s(sI)}, 0
    s_cselect_b32 {s(sSTR)}, 1, 3
    s_lshl_b32 {s(rW1+2)}, {s(sSTR)}, 19
    s_lshl_b32 {s(sWSTEP)}, {s(sSTR)}, 15
    s_lshl_b32 {s(sSTR)}, {s(sSTR)}, 10
    v_bfe_u32 v9, v6, 4, 1
    v_lshlrev_b32 v9, 1, v9
    v_xor_b32 v9, v9, v11
    v_lshl_add_u32 v9, v9, 4, {s(sT0)}
    v_mad_u32_u24 {v(hW[0])}, v12, {s(sSTR)}, v9
    s_lshl_b32 {s(sT1)}, {s(sSTR)}, 3
    s_sub_u32 {s(sT1)}, {s(sT1)}, 1024
    v_xor_b32 {v(hW[1])}, 64, {v(hW[0])}
    v_add_u32 {v(hW[1])}, {s(sT1)}, {v(hW[1])}
    s_lshl_b32 {s(sT1)}, {s(sT1)}, 1
    v_add_u32 {v(hW[2])}, {s(sT1)}, {v(hW[0])}
    v_add_u32 {v(hW[3])}, {s(sT1)}, {v(hW[1])}
    s_cmp_eq_u32 {s(sI)}, 0
    s_waitcnt lgkmcnt(0)
    s_cselect_b32 {s(rW1)}, {s(pWQ)}, {s(pWQKV)}
    s_cselect_b32 {s(rW1+1)}, {s(pWQ+1)}, {s(pWQKV+1)}
    """)
    srd(rX, pX)

    def dma_chunk(it):
        sl = slot(it)
        a(f"""
        s_lshl_b32 {s(sOX)}, {s(sCH)}, 7
        s_add_u32 m0, {s(sT9)}, {sl}
        s_lshl_b32 {s(sOW)}, {s(sCH)}, 1
        buffer_load_dwordx4 {v(hX0)}, {s(rX,4)}, {s(sOX)} offen lds
        buffer_load_dwordx4 {v(hX1)}, {s(rX,4)}, {s(sOX)} offen offset:1024 lds
        s_add_u32 m0, {s(sT10)}, {sl+8192}
        s_mul_i32 {s(sOW)}, {s(sOW)}, {s(sWSTEP)}
        """)
        for i in range(4):
            a(f"buffer_load_dwordx4 {v(hW[i])}, {s(rW1,4)}, {s(sOW)} offen offset:{1024*i} lds")
        a(f"""
        s_add_u32 m0, {s(sT10)}, {sl+8192+4096}
        s_add_u32 {s(sOW)}, {s(sOW)}, {s(sWSTEP)}
        """)
        for i in range(4):
            a(f"buffer_load_dwordx4 {v(hW[i])}, {s(rW1,4)}, {s(sOW)} offen offset:{1024*i} lds")
        a(f"s_add_u32 {s(sCH)}, {s(sCH)}, 1\ns_and_b32 {s(sCH)}, {s(sCH)}, 7")

    stamp("Hstart")
    dma_chunk(0)
    a(f"""
    v_mov_b32 {v(vCA)}, {L_CNT}
    v_mov_b64 v[28:29], 0
    v_mov_b64 v[30:31], 0
    ds_write_b128 {v(vCA)}, v[28:31]
    s_xor_b32 {s(sHK)}, {s(sHG)}, {xk_}
    s_xor_b32 {s(sHQ)}, {s(sHG)}, {xq}
    """)
    srd(rWS, pWS)
    srdc(rWS, WSN)
    srd(rDBG, pDBG)
    srdc(rDBG, 256)
    srd(rWO, pWO)
    srdc(rWO, 524288)
    srd(rBWO, pBWO)
    srdc(rBWO, 524288)
    dma_chunk(1)
    hPA, hPV = 24, 25
    a(f"""
    v_and_b32 {v(hPA)}, 3, v6
    v_lshlrev_b32 {v(hPA)}, 6, {v(hPA)}
    s_waitcnt vmcnt(10) lgkmcnt(0)
    s_barrier
    """)
    for it in range(7):
        if it + 2 <= 7:
            dma_chunk(it + 2)
            a("s_waitcnt vmcnt(10)")
        else:
            a(f"buffer_load_dword {v(hPV)}, {v(hPA)}, {s(rDBG,4)}, 0 offen sc1")
            a("s_waitcnt vmcnt(1)")
        a("s_barrier")
    a(f"s_setprio {o['hprio']}")

    def gpoll(name, addr, off, thr, pre=False, sleep=0, r=rDBG):
        a(f"s_mov_b32 {s(sCNT)}, {SPIN}")
        if pre:
            a(f"s_branch L_gc_{name}")
        a.label(f"L_gp_{name}")
        if sleep:
            a(f"s_sleep {sleep}")
        a(f"""
        buffer_load_dword {v(hPV)}, {v(addr)}, {s(r,4)}, 0 offen offset:{off} sc1
        s_sub_u32 {s(sCNT)}, {s(sCNT)}, 1
        s_cmp_eq_u32 {s(sCNT)}, 0
        s_cbranch_scc1 L_gd_{name}
        """)
        a.label(f"L_gc_{name}")
        a(f"""
        s_waitcnt vmcnt(0)
        v_cmp_gt_u32 vcc, {thr}, {v(hPV)}
        s_nop 0
        s_cbranch_vccnz L_gp_{name}
        """)
        a.label(f"L_gd_{name}")

    def lpoll(name, off, thr):
        a(f"s_mov_b32 {s(sCNT)}, {SPIN*4}")
        a.label(f"L_lp_{name}")
        a(f"""
        s_sleep {o.get('lsl', 16)}
        ds_read_b32 v9, {v(vCA)} offset:{off}
        s_sub_u32 {s(sCNT)}, {s(sCNT)}, 1
        s_cmp_eq_u32 {s(sCNT)}, 0
        s_cbranch_scc1 L_lp_{name}d
        s_waitcnt lgkmcnt(0)
        v_readfirstlane_b32 {s(sT1)}, v9
        s_nop 0
        s_cmp_lt_u32 {s(sT1)}, {thr}
        s_cbranch_scc1 L_lp_{name}
        """)
        a.label(f"L_lp_{name}d")

    gpoll("s1", hPA, 0, 64, pre=True)
    stamp("Hs1")

    def kv_group(G):
        a(f"s_add_u32 {s(sT0)}, {s(sT8)}, {16384*G}\ns_mov_b32 m0, {s(sT0)}\ns_nop 0")
        for i in range(4):
            a(f"buffer_load_dwordx4 {v(vL16)}, {s(rWS,4)}, {s(sT0)} offen offset:{1024*i} sc1 lds")

    a(f"s_lshl_b32 {s(sT8)}, {s(sI)}, 12")
    npre = o.get('npre', 4)
    for G in range(npre):
        kv_group(G)
    hA, hB = 26, 27
    a(f"""
    s_mul_i32 {s(sT0)}, {s(sI)}, 1088
    s_add_u32 {s(sT0)}, {s(sT0)}, {L_SCR}
    v_add_u32 {v(hA)}, {s(sT0)}, {v(vL16)}
    s_lshl_b32 {s(sT0)}, {s(sI)}, 10
    s_add_u32 {s(sT0)}, {s(sT0)}, {L_PQ}
    v_add_u32 {v(hB)}, {s(sT0)}, {v(vL16)}
    v_mov_b64 v[28:29], -1
    v_mov_b64 v[30:31], -1
    v_and_b32 v9, 31, v6
    v_lshlrev_b32 v9, 2, v9
    s_waitcnt vmcnt({4*(npre-2)})
    s_barrier
    """)
    stamp("HX1")
    hPQ = [32, 36]
    hS = [40, 44, 48, 52]
    hG = [56, 57]
    a(f"""
    ds_read_b128 {v(hS[0],4)}, {v(hA)}
    ds_read_b128 {v(hS[1],4)}, {v(hA)} offset:4352
    ds_read_b128 {v(hS[2],4)}, {v(hA)} offset:1024
    ds_read_b128 {v(hS[3],4)}, {v(hA)} offset:5376
    ds_read_b128 {v(hPQ[0],4)}, {v(hB)}
    ds_read_b128 {v(hPQ[1],4)}, {v(hB)} offset:4096
    """)
    for G in range(npre, 8):
        kv_group(G)
    a(f"""
    s_lshl_b32 {s(sT0)}, {s(sTB)}, 8
    s_add_u32 {s(sT0)}, {s(sT0)}, {WS_G}
    buffer_load_dword {v(hG[0])}, v9, {s(rWS,4)}, {s(sT0)} offen sc1
    buffer_load_dword {v(hG[1])}, v9, {s(rWS,4)}, {s(sT0)} offen offset:128 sc1
    s_lshl_b32 {s(sT0)}, {s(sTB)}, 6
    s_lshl2_add_u32 {s(sT1)}, {s(sHG)}, {s(sI)}
    s_add_u32 {s(sT0)}, {s(sT0)}, {s(sT1)}
    s_lshl_b32 {s(sOOFF)}, {s(sT0)}, 10
    """)
    for base in (WS_OA, WS_OA + 32768, WS_OB, WS_OB + 32768):
        if base == WS_OB:
            a(f"s_xor_b32 {s(sOOFF)}, {s(sOOFF)}, {4096*xq}")
        a(f"s_add_u32 {s(sT0)}, {s(sOOFF)}, {base}")
        a(f"buffer_store_dwordx4 v[28:31], {v(vL16)}, {s(rWS,4)}, {s(sT0)} offen sc1")
    a(f"""
    s_lshl_b32 {s(sT0)}, {s(sHK)}, 5
    s_add_u32 {s(sT0)}, {s(sT0)}, {s(sTB)}
    s_lshl2_add_u32 {s(sT0)}, {s(sT0)}, {s(sI)}
    s_mul_i32 {s(sT0)}, {s(sT0)}, 1088
    s_add_u32 {s(sT0)}, {s(sT0)}, {WS_KVP}
    s_waitcnt lgkmcnt(0)
    v_pk_add_f32 {v(hS[0],2)}, {v(hS[0],2)}, {v(hS[1],2)}
    v_pk_add_f32 {v(hS[0]+2,2)}, {v(hS[0]+2,2)}, {v(hS[1]+2,2)}
    v_pk_add_f32 {v(hS[2],2)}, {v(hS[2],2)}, {v(hS[3],2)}
    v_pk_add_f32 {v(hS[2]+2,2)}, {v(hS[2]+2,2)}, {v(hS[3]+2,2)}
    v_mov_b32 v10, 1
    v_mov_b32 v11, 0
    buffer_store_dwordx4 {v(hS[0],4)}, {v(vL16)}, {s(rWS,4)}, {s(sT0)} offen sc1
    s_mov_b64 exec, 15
    buffer_store_dwordx4 {v(hS[2],4)}, {v(vL16)}, {s(rWS,4)}, {s(sT0)} offen offset:1024 sc1
    s_mov_b64 exec, 1
    s_waitcnt vmcnt(0)
    ds_add_rtn_u32 v12, {v(vCA)}, v10
    s_and_b32 {s(sT0)}, s2, 0x18
    s_lshl_b32 {s(sT0)}, {s(sT0)}, 3
    s_waitcnt lgkmcnt(0)
    v_readfirstlane_b32 {s(sT1)}, v12
    s_nop 0
    s_cmp_eq_u32 {s(sT1)}, 3
    s_cbranch_scc0 L_nosig2
    buffer_atomic_add v10, v11, {s(rDBG,4)}, {s(sT0)} offen offset:4 sc1
    """)
    a.label("L_nosig2")
    a("s_mov_b64 exec, -1")
    stamp("Hkv")
    hP3 = 26
    a(f"""
    s_cmp_eq_u32 {s(sI)}, 0
    s_cbranch_scc0 L_nol1
    s_sleep {o.get('sl2a', 48)}
    """)
    gpoll("s2", hPA, 4, 64, sleep=o.get('sl2', 16))
    stamp("Hs2")
    PL = 64
    a(f"""
    v_mov_b32 v12, 16
    v_and_b32 v13, 31, v6
    v_lshrrev_b32 v14, 5, v6
    s_mov_b64 exec, 1
    ds_add_u32 {v(vCA)}, v12
    s_mov_b32 exec_lo, 0x1ffff
    s_mov_b32 exec_hi, 0x1ffff
    v_mul_u32_u24 v14, {16*4352}, v14
    v_lshl_add_u32 v14, v13, 3, v14
    s_mul_i32 {s(sT0)}, {s(sHK)}, {32*4352}
    s_mul_i32 {s(sT1)}, {s(sTB)}, 136
    s_add_u32 {s(sT0)}, {s(sT0)}, {s(sT1)}
    s_add_u32 {s(sT0)}, {s(sT0)}, {WS_KVP}
    """)
    for p in range(16):
        a(f"buffer_load_dwordx2 {v(PL+2*p,2)}, v14, {s(rWS,4)}, {s(sT0)} offen sc1")
        if p < 15:
            a(f"s_add_u32 {s(sT0)}, {s(sT0)}, 4352")
    a(f"""
    s_mul_i32 {s(sT0)}, {s(sHK)}, 2176
    s_mul_i32 {s(sT1)}, {s(sTB)}, 68
    s_add_u32 {s(sT0)}, {s(sT0)}, {s(sT1)}
    s_add_u32 {s(sT0)}, {s(sT0)}, {WS_KVF}
    s_mov_b64 exec, -1
    s_waitcnt vmcnt(0)
    """)
    for st_ in (2, 4, 8, 16):
        for i in range(0, 32, 2 * st_):
            a(f"v_pk_add_f32 {v(PL+i,2)}, {v(PL+i,2)}, {v(PL+i+st_,2)}")
    a(f"""
    v_mov_b64 {v(PL+2,2)}, {v(PL,2)}
    v_lshlrev_b32 v13, 2, v13
    s_nop 0
    v_permlane32_swap_b32 {v(PL)}, {v(PL+2)}
    v_permlane32_swap_b32 {v(PL+1)}, {v(PL+3)}
    v_pk_add_f32 {v(PL,2)}, {v(PL,2)}, {v(PL+2,2)}
    v_cvt_pk_bf16_f32 {v(PL)}, {v(PL)}, {v(PL+1)}
    s_mov_b64 exec, 0x1ffff
    buffer_store_dword {v(PL)}, v13, {s(rWS,4)}, {s(sT0)} offen sc1
    s_mov_b64 exec, 1
    s_lshl_b32 {s(sT0)}, {s(sHK)}, 7
    s_add_u32 {s(sT0)}, {s(sT0)}, {WS_C3}
    s_waitcnt vmcnt(0)
    buffer_atomic_add v10, v11, {s(rWS,4)}, {s(sT0)} offen sc1
    s_mov_b64 exec, -1
    s_lshl_b32 {s(sT0)}, {s(sHQ)}, 7
    s_add_u32 {s(sT0)}, {s(sT0)}, {WS_C3}
    v_mov_b32 {v(hP3)}, {s(sT0)}
    s_sleep {o.get('sl3a', 32)}
    """)
    gpoll("s3", hP3, 0, 32, sleep=o.get('sl3', 16), r=rWS)
    a(f"s_mov_b64 exec, 1\nds_add_u32 {v(vCA)}, v12\ns_mov_b64 exec, -1\ns_branch L_lp_s3d")
    a.label("L_nol1")
    lpoll("s3", 0, 32)
    stamp("Hs3")
    KF = 60
    DB = [64, 80]
    hOW = [26, 27]
    a(f"""
    v_and_b32 v9, 31, v6
    v_min_u32 v9, 16, v9
    v_lshrrev_b32 v12, 5, v6
    v_mad_u32_u24 v9, v12, 17, v9
    v_lshlrev_b32 v9, 4, v9
    s_lshl2_add_u32 {s(sT0)}, {s(sHQ)}, {s(sI)}
    s_mul_i32 {s(sT0)}, {s(sT0)}, 544
    s_add_u32 {s(sT0)}, {s(sT0)}, {WS_KVF}
    buffer_load_dwordx4 {v(KF,4)}, v9, {s(rWS,4)}, {s(sT0)} offen sc1
    v_lshlrev_b32 v9, 1, {v(vG)}
    v_and_b32 v12, 7, v6
    v_xor_b32 v9, v9, v12
    v_lshlrev_b32 v9, 4, v9
    v_lshrrev_b32 v12, 3, v6
    v_lshl_add_u32 v9, v12, 10, v9
    s_lshr_b32 {s(sT0)}, {s(sI)}, 1
    s_lshl_b32 {s(sT0)}, {s(sT0)}, 18
    s_and_b32 {s(sT1)}, {s(sI)}, 1
    s_lshl_b32 {s(sT1)}, {s(sT1)}, 14
    s_add_u32 {s(sT0)}, {s(sT0)}, {s(sT1)}
    s_lshl_b32 {s(sT1)}, {s(sOC)}, 7
    s_add_u32 {s(sT0)}, {s(sT0)}, {s(sT1)}
    v_add_u32 {v(hOW[0])}, {s(sT0)}, v9
    v_add_u32 {v(hOW[1])}, 7168, {v(hOW[0])}
    s_waitcnt vmcnt(0)
    {mf32(DB[0], KF, hPQ[0], '0')}
    {mf32(DB[1], KF, hPQ[1], '0')}
    """)

    def dma_w(st_):
        r = rBWO if st_ < 8 else rWO
        a(f"""
        s_add_u32 m0, {s(sT9)}, {wbase(st_)}
        s_mov_b32 {s(sT0)}, {(st_ % 8) * 32768}
        buffer_load_dwordx4 {v(hOW[0])}, {s(r,4)}, {s(sT0)} offen lds
        buffer_load_dwordx4 {v(hOW[1])}, {s(r,4)}, {s(sT0)} offen offset:1024 lds
        """)

    for st_ in (13, 14, 15):
        dma_w(st_)
    for th in range(2):
        D = DB[th]
        a(f"""
        v_add_f32 v12, {H(f2u(EPS))}, {v(D+8)}
        v_rcp_f32 v12, v12
        v_sub_f32 v9, 1.0, {v(hG[th])}
        v_mul_f32 v12, v12, v9
        v_mov_b32 v13, v12
        """)
        for i in range(0, 8, 2):
            a(f"v_pk_mul_f32 {v(D+i,2)}, {v(D+i,2)}, v[12:13]")
        for i in range(4):
            a(f"v_cvt_pk_bf16_f32 {v(D+8+i)}, {v(D+2*i)}, {v(D+2*i+1)}")
        a(f"""
        s_add_u32 {s(sT0)}, {s(sOOFF)}, {WS_OB + 32768*th}
        buffer_store_dwordx4 {v(D+8,4)}, {v(vL16)}, {s(rWS,4)}, {s(sT0)} offen sc1
        """)
    stamp("HoB")
    for n_, (lo, hi) in enumerate([(0, 7), (7, 11), (11, 13)]):
        lpoll(f"prog{n_}", 4 + 4 * n_, 8)
        if n_ == 2:
            stamp("Hprog")
        for st_ in range(lo, hi):
            dma_w(st_)
    a("s_waitcnt vmcnt(0)")
    stamp("Hw")
    a("s_barrier")
    dump()
    a("s_endpgm")
    a.label("L_codeend")
    return a


HEADER = open('cdna_kernels/' + NAME + '.s.ref').read().split('; Override launch geometry')[0]


def wrap(a):
    k = NAME + '_kernel'
    return (HEADER + f"; @launch grid=(256,1,1) block=(768,1,1) lds={LDS_BYTES}\n"
            + f""".amdgcn_target "amdgcn-amd-amdhsa--gfx950"
.text
.globl {k}
.p2align 8
.type {k},@function
{k}:
""" + a.text() + f""".section .rodata,"a"
.p2align 6
.amdhsa_kernel {k}
  .amdhsa_next_free_vgpr {NVGPR}
  .amdhsa_next_free_sgpr 102
  .amdhsa_accum_offset {NVGPR}
  .amdhsa_group_segment_fixed_size 0
  .amdhsa_kernarg_size 96
  .amdhsa_user_sgpr_count 2
  .amdhsa_user_sgpr_kernarg_segment_ptr 1
  .amdhsa_system_sgpr_workgroup_id_x 1
.end_amdhsa_kernel
""")


if __name__ == '__main__':
    import argparse, json
    ap = argparse.ArgumentParser()
    ap.add_argument('out')
    ap.add_argument('--diag', action='store_true')
    ap.add_argument('--opts', default='{}')
    args = ap.parse_args()
    a = gen(args.diag, json.loads(args.opts))
    bad = check(a.lines)
    for b in bad:
        print("HAZARD need", b[0], "have", b[1], "|", b[2], "->", b[3])
    open(args.out, 'w').write(wrap(a))
    print("written", args.out, len(a.lines), "lines")
```

```python
import sys, struct
sys.path.insert(0, 'gen')
from asmlib import *

NAME = 'gated_mix__grouped_kv_mqa__linear_attn_block__prompt'


def f2u(x):
    return struct.unpack('<I', struct.pack('<f', x))[0]


def H(x):
    return f"0x{x & 0xffffffff:08x}"


WS_KV = 0
WS_G = 0x20000
WS_KVF = 0x22000
WS_C3 = 0x27000
WS_KVP = 0x28000
WS_OA = 0x200000
WS_OB = 0x400000
WS_SIZE = 0x600000
WS_DIAG = 0x600000
SLOT = 40960
STG = 122880
MISC = 131072
L_SCR = MISC
L_PQ = MISC + 8704
L_CNT = 163776
L_RED = 106496
LDS_BYTES = 163840
sW = 3
pX, pWQ, pWK, pWV, pWO, pBX, pWQKV, pBWO, pGATE, pOUT, pDBG, pWS = 4, 6, 8, 10, 12, 14, 16, 18, 20, 22, 24, 26
rX, rW1, rWKV, rGATE, rWS, rDBG, rOUT, rWO, rBWO = 28, 32, 36, 40, 44, 48, 52, 56, 60
sTB, sHG, sCH, sWSTEP, sOX, sOW, sI = 64, 65, 66, 67, 68, 69, 70
sT0, sT1, sT2, sT3, sKVT, sT5, sT6, sSTR, sT8 = 71, 72, 73, 74, 75, 76, 77, 78, 79
sVM = 80
sCNT = 82
sOOFF = 83
sOB_, sOC = 84, 85
sSV = 86
sST = 88
sH, sTH = 90, 91
sT9, sT10 = 92, 93
sSTG = 94
vL16, vL16H, vIDX, vGT = 1, 2, 3, 4
vQ, vPQ = 16, 20
vNM, vO = 24, 40
vS = [56, 72]
vK = [88, 92]
vVa = [96, 104]
vVb = [100, 108]
vST = 15
aQA, aQB, aKB, aVB = [24, 28], [32, 36], [40, 44], [48, 52]
HA, HB = 56, [112, 136]
vEPS, ONE, cE = 80, 84, 88
vXR = [160, 161]
vWR = 162
vCA, vF = 163, 164
vOA, vSCR, vPQA, vGA = 5, 165, 166, 167
vOW = [14, 160, 161, 162]
sCL, sCQ = 96, 98
sHK, sHQ = 100, 101
vR, vG = 7, 8
NVGPR = 168

LOG2E = 1.4426950408889634
QSCALE = 0.25 * LOG2E
EPS = 1e-6
VSCALE = 32
SPIN = 1 << 16


def gen(diag=False, opts=None):
    o = dict(pub=7, hprio=3, X=94, reb=[8], oa={4: 2, 5: 2, 6: 2, 7: 2}, pf=1, outmod='')
    if opts:
        o.update(opts)
    o['oa'] = {int(k_): v_ for k_, v_ in o['oa'].items()}
    MARGIN = float(o['X'])
    nb = o.get('nb', 2)
    xq, xk_ = o.get('xq', 1), o.get('xk', 2)
    a = Asm()
    nst = [0]

    def stamp(name, cyc=False):
        if o.get('probe') == name:
            a(f"s_memrealtime {s(sST,2)}\ns_waitcnt lgkmcnt(0)\ns_mov_b32 s95, {s(sST)}")
        if not diag or name in o.get('nostamp', ['B1', 'B2', 'B3', 'B4', 'B5', 'B6']):
            return
        k = nst[0]
        nst[0] += 1
        a.c(f"stamp {k} {name}")
        a(f"{'s_memtime' if cyc else 's_memrealtime'} {s(sST,2)}")
        a("s_waitcnt lgkmcnt(0)")
        a(f"v_writelane_b32 {v(vST)}, {s(sST)}, {k}")

    def dump():
        if diag:
            a(f"""
            s_mul_i32 {s(sT0)}, s2, 12
            s_add_u32 {s(sT0)}, {s(sT0)}, {s(sW)}
            s_lshl_b32 {s(sT0)}, {s(sT0)}, 8
            s_add_u32 {s(sT0)}, {s(sT0)}, {WS_DIAG}
            v_lshrrev_b32 v5, 2, {v(vL16)}
            buffer_store_dword {v(vST)}, v5, {s(rWS,4)}, {s(sT0)} offen
            """)

    def pad():
        a("s_waitcnt vmcnt(0)")
        stamp("end")
        if o['probe'] == 'none':
            a("s_mov_b32 s95, s14")
        a(f"""
        s_sub_u32 s95, s95, s14
        s_mul_i32 s95, s95, {o.get('mult', 10)}
        s_add_u32 s95, s95, 6000
        """)
        a.label("L_pad")
        a(f"""
        s_memrealtime {s(sST,2)}
        s_waitcnt lgkmcnt(0)
        s_sub_u32 {s(sST)}, {s(sST)}, s14
        s_cmp_lt_u32 {s(sST)}, s95
        s_cbranch_scc1 L_pad
        """)

    def srd(r, p):
        a(f"s_mov_b32 {s(r)}, {s(p)}\ns_mov_b32 {s(r+1)}, {s(p+1)}")

    def srdc(r, n):
        a(f"s_mov_b32 {s(r+2)}, {n}\ns_mov_b32 {s(r+3)}, 0x20000")

    def mf16(d, A, B, C):
        C = C if isinstance(C, str) else v(C, 4)
        return f"v_mfma_f32_16x16x32_bf16 {v(d,4)}, {v(A,4)}, {v(B,4)}, {C}"

    def mf32(d, A, B, C):
        C = C if isinstance(C, str) else v(C, 16)
        return f"v_mfma_f32_32x32x16_bf16 {v(d,16)}, {v(A,4)}, {v(B,4)}, {C}"

    def smf(A, B):
        return f"v_smfmac_f32_32x32x32_bf16 {v(vO,16)}, {v(A,4)}, {v(B,8)}, {v(vIDX)}"

    def slot(it):
        return ((it + 1) % 3) * SLOT

    def wbase(st_):
        return 8192 * st_ if st_ <= 12 else MISC + 8192 * (st_ - 13)

    WSN = WS_SIZE + (0x100000 if diag else 0)

    a(f"""
    s_cmp_ge_u32 s2, 256
    s_cbranch_scc1 L_end
    {'s_memrealtime s[88:89]' if o.get('probe') else ''}
    s_load_dwordx16 s[4:19], s[0:1], 0
    s_load_dwordx8 s[20:27], s[0:1], 64
    v_lshrrev_b32 v5, 6, v0
    v_and_b32 v6, 63, v0
    v_readfirstlane_b32 {s(sW)}, v5
    v_lshlrev_b32 {v(vL16)}, 4, v6
    s_and_b32 {s(sT0)}, s2, 7
    s_lshr_b32 {s(sT2)}, s2, {3+nb}
    s_bfe_u32 {s(sT3)}, s2, {(nb << 16) + 3}
    s_lshr_b32 {s(sTB)}, {s(sT0)}, {3-nb}
    s_lshl{5-nb}_add_u32 {s(sTB)}, {s(sTB)}, {s(sT2)}
    s_and_b32 {s(sHG)}, {s(sT0)}, {(1 << (3-nb)) - 1}
    s_lshl{nb}_add_u32 {s(sHG)}, {s(sHG)}, {s(sT3)}
    s_lshr_b32 {s(sT1)}, s2, 6
    s_lshl2_add_u32 {s(sOB_)}, {s(sT0)}, {s(sT1)}
    s_bfe_u32 {s(sOC)}, s2, 0x30003
    v_lshrrev_b32 {v(vG)}, 4, v6
    v_and_b32 v11, 7, v6
    v_xor_b32 v10, v11, {v(vG)}
    v_lshlrev_b32 v10, 4, v10
    v_lshrrev_b32 v12, 3, v6
    v_lshl_add_u32 v10, v12, 10, v10
    """)
    if diag:
        a(f"v_mov_b32 {v(vST)}, 0")
    srdc(rX, 2097152)
    a(f"s_cmp_ge_u32 {s(sW)}, 8\ns_cbranch_scc1 L_helper")

    a(f"""
    s_lshr_b32 {s(sKVT)}, {s(sHG)}, 1
    s_lshl2_add_u32 {s(sKVT)}, {s(sTB)}, {s(sKVT)}
    s_lshl_b32 {s(sKVT)}, {s(sKVT)}, 4
    s_lshl_b32 {s(sT6)}, {s(sW)}, 7
    s_lshl_b32 {s(sT5)}, {s(sKVT)}, 10
    s_add_u32 {s(sT5)}, {s(sT5)}, {s(sT6)}
    s_lshl_b32 {s(sT9)}, {s(sW)}, 11
    s_lshl_b32 {s(sSTG)}, {s(sW)}, 12
    s_add_u32 {s(sSTG)}, {s(sSTG)}, {STG}
    s_mov_b32 m0, {s(sSTG)}
    v_xor_b32 v11, 64, v10
    v_add_u32 v11, 7168, v11
    v_lshlrev_b32 v9, 4, {v(vG)}
    v_and_b32 {v(vR)}, 15, v0
    s_and_b32 {s(sT8)}, {s(sHG)}, 1
    """)
    srdc(rWKV, 16384)
    srdc(rGATE, 1024)
    a(f"""
    s_cmp_eq_u32 {s(sT8)}, 0
    s_waitcnt lgkmcnt(0)
    s_cselect_b32 {s(rWKV)}, {s(pWK)}, {s(pWV)}
    s_cselect_b32 {s(rWKV+1)}, {s(pWK+1)}, {s(pWV+1)}
    """)
    srd(rX, pX)
    if o.get('probe'):
        a("s_mov_b32 s14, s88")
    xk = [56, 60]
    gk = [64, 68]
    wk = [72, 76]
    dk, dg = 24, 28
    a(f"""
    buffer_load_dwordx4 {v(vL16)}, {s(rWKV,4)}, {s(sT9)} offen lds
    buffer_load_dwordx4 {v(vL16)}, {s(rWKV,4)}, {s(sT9)} offen offset:1024 lds
    s_add_u32 m0, {s(sSTG)}, 2048
    """)
    srd(rGATE, pGATE)
    a(f"""
    buffer_load_dwordx4 v10, {s(rX,4)}, {s(sT5)} offen lds
    buffer_load_dwordx4 v11, {s(rX,4)}, {s(sT5)} offen offset:1024 lds
    buffer_load_dwordx4 {v(gk[0],4)}, v9, {s(rGATE,4)}, {s(sT6)} offen
    buffer_load_dwordx4 {v(gk[1],4)}, v9, {s(rGATE,4)}, {s(sT6)} offen offset:64
    """)
    stamp("start")
    if o['pf']:
        a("s_getpc_b64 s[12:13]")
        a.label("L_pc")
        a(f"""
        s_and_b32 {s(sT0)}, s2, 0xf8
        s_add_u32 {s(sT0)}, {s(sT0)}, {s(sW)}
        s_lshl_b32 {s(sT0)}, {s(sT0)}, 7
        s_min_u32 {s(sT0)}, {s(sT0)}, L_codeend-L_pc-4
        s_load_dword s18, s[12:13], {s(sT0)}
        """)
    srd(rWS, pWS)
    srdc(rWS, WSN)
    srd(rDBG, pDBG)
    srdc(rDBG, 256)
    srd(rOUT, pOUT)
    srdc(rOUT, 2097152)
    a(f"""
    s_and_b32 {s(sH)}, {s(sW)}, 3
    s_lshr_b32 {s(sTH)}, {s(sW)}, 2
    v_add_u32 {v(vL16H)}, 0x10000, {v(vL16)}
    v_mov_b32 {v(vIDX)}, 0xdddddddd
    s_mov_b32 {s(sVM)}, 0xffff
    s_mov_b32 {s(sVM+1)}, 0xffff
    v_lshrrev_b32 v11, 1, {v(vR)}
    v_xor_b32 v11, v11, {v(vG)}
    v_lshlrev_b32 v11, 4, v11
    v_lshl_add_u32 v11, {v(vR)}, 7, v11
    s_lshl_b32 {s(sT0)}, {s(sTH)}, 12
    s_add_u32 {s(sT0)}, {s(sT0)}, {slot(0)}
    v_add_u32 {v(vXR[0])}, {s(sT0)}, v11
    v_xor_b32 {v(vXR[1])}, 64, {v(vXR[0])}
    v_add_u32 v9, {s(sSTG)}, v11
    v_xor_b32 v10, 64, v9
    v_bfe_u32 v11, v6, 2, 2
    v_lshl_add_u32 v11, {v(vG)}, 3, v11
    v_and_b32 v12, 3, v6
    v_lshlrev_b32 v12, 3, v12
    v_lshl_add_u32 v13, v11, 5, v12
    v_add_u32 v13, {s(sSTG)}, v13
    v_lshl_add_u32 v11, v11, 7, v12
    v_bfe_u32 v12, v6, 3, 2
    v_xor_b32 v12, {s(sH)}, v12
    v_lshl_add_u32 v11, v12, 5, v11
    v_add_u32 {v(vWR)}, {8192 + slot(0)}, v11
    s_lshl1_add_u32 {s(sT0)}, {s(sTB)}, {s(sTH)}
    s_lshl_b32 {s(sT0)}, {s(sT0)}, 5
    s_lshl2_add_u32 {s(sT1)}, {s(sHG)}, {s(sH)}
    s_add_u32 {s(sT0)}, {s(sT0)}, {s(sT1)}
    s_lshl_b32 {s(sOOFF)}, {s(sT0)}, 10
    v_mov_b32 {v(vCA)}, {L_CNT}
    v_add_u32 v11, {s(sSTG)}, {v(vL16)}
    v_lshl_add_u32 v12, v6, 2, {s(sSTG)}
    """)
    for i in range(4):
        a(f"v_mov_b32 {v(vEPS+i)}, {H(f2u(EPS))}")
        a(f"v_mov_b32 {v(ONE+i)}, 0x3f803f80")
    a(f"""
    v_mov_b32 {v(cE)}, {H(f2u(-EPS*LOG2E))}
    v_mov_b32 {v(cE+1)}, {H(f2u(-EPS*LOG2E))}
    s_mov_b32 {s(sCL)}, {H(f2u(LOG2E))}
    s_mov_b32 {s(sCL+1)}, {H(f2u(LOG2E))}
    s_mov_b32 {s(sCQ)}, {H(f2u(QSCALE))}
    s_mov_b32 {s(sCQ+1)}, {H(f2u(QSCALE))}
    v_lshrrev_b32 v90, 1, {v(vG)}
    v_mad_u32_u24 v90, v90, 17, {v(vR)}
    v_and_b32 v91, 1, {v(vG)}
    v_lshlrev_b32 v91, 4, v91
    v_lshl_add_u32 v90, v90, 5, v91
    s_mul_i32 {s(sT0)}, {s(sW)}, 1088
    s_add_u32 {s(sT0)}, {s(sT0)}, {L_SCR}
    v_add_u32 {v(vSCR)}, {s(sT0)}, v90
    s_lshl_b32 {s(sT0)}, {s(sW)}, 10
    s_add_u32 {s(sT0)}, {s(sT0)}, {L_PQ}
    v_add_u32 {v(vPQA)}, {s(sT0)}, {v(vL16)}
    s_lshl1_add_u32 {s(sT1)}, {s(sTB)}, {s(sTH)}
    s_lshl_b32 {s(sT1)}, {s(sT1)}, 7
    s_add_u32 {s(sT1)}, {s(sT1)}, {WS_G}
    v_and_b32 v90, 31, v0
    v_lshl_add_u32 {v(vGA)}, v90, 2, {s(sT1)}
    v_lshlrev_b32 {v(vOA)}, 9, {v(vG)}
    v_lshl_add_u32 {v(vOA)}, {v(vR)}, 4, {v(vOA)}
    s_lshr_b32 {s(sT0)}, {s(sH)}, 1
    s_lshl1_add_u32 {s(sT0)}, {s(sOB_)}, {s(sT0)}
    s_lshl1_add_u32 {s(sT0)}, {s(sT0)}, {s(sTH)}
    s_lshl_b32 {s(sT0)}, {s(sT0)}, 14
    s_and_b32 {s(sT1)}, {s(sH)}, 1
    s_lshl_b32 {s(sT1)}, {s(sT1)}, 8
    s_add_u32 {s(sT10)}, {s(sT0)}, {s(sT1)}
    v_bfe_u32 v90, v0, 2, 2
    v_bfe_u32 v91, v0, 4, 1
    v_lshl_add_u32 v90, v91, 2, v90
    v_bfe_u32 v91, v0, 5, 1
    v_lshl_add_u32 v90, v91, 4, v90
    v_and_b32 v91, 3, v0
    v_lshlrev_b32 v91, 3, v91
    v_lshl_add_u32 v90, v90, 7, v91
    v_bfe_u32 v91, v0, 3, 2
    v_lshl_add_u32 v90, v91, 5, v90
    s_mul_i32 {s(sT0)}, {s(sTH)}, 0x1040
    v_xor_b32 {v(vOW[0])}, {s(sT0)}, v90
    """)
    for i in range(0, 16, 2):
        a(f"v_mov_b64 {v(vVa[0]+i,2)}, 0")
    a("s_mov_b32 exec_lo, 0x00110000\ns_mov_b32 exec_hi, 0x00110000")
    for i in range(0, 16, 2):
        a(f"v_mov_b64 {v(vVa[0]+i,2)}, {v(ONE,2)}")
    a("s_mov_b64 exec, -1")
    a("s_waitcnt vmcnt(0) lgkmcnt(0)")
    stamp("kvloads")
    a(f"""
    ds_read_b128 {v(xk[0],4)}, v9 offset:2048
    ds_read_b128 {v(xk[1],4)}, v10 offset:2048
    ds_read_b64_tr_b16 {v(wk[0],2)}, v13
    ds_read_b64_tr_b16 {v(wk[0]+2,2)}, v13 offset:128
    ds_read_b64_tr_b16 {v(wk[1],2)}, v13 offset:1024
    ds_read_b64_tr_b16 {v(wk[1]+2,2)}, v13 offset:1152
    s_cmp_eq_u32 {s(sT8)}, 0
    s_waitcnt lgkmcnt(4)
    {mf16(dg, gk[0], xk[0], '0')}
    {mf16(dg, gk[1], xk[1], dg)}
    s_waitcnt lgkmcnt(0)
    s_cbranch_scc0 L_isV
    {mf16(dk, wk[0], xk[0], '0')}
    {mf16(dk, wk[1], xk[1], dk)}
    s_branch L_kvj
    """)
    a.label("L_isV")
    a(f"""
    {mf16(dk, xk[0], wk[0], '0')}
    {mf16(dk, xk[1], wk[1], dk)}
    """)
    a.label("L_kvj")
    a(f"""
    s_nop 5
    ds_write_b32 v12, {v(dg)} offset:1024
    s_nop 0
    ds_write_b128 v11, {v(dk,4)}
    s_waitcnt lgkmcnt(0)
    s_barrier
    """)
    stamp("B0")
    stamp("B0c", cyc=True)

    def reads(it):
        L = []
        for ks in range(2):
            b = HB[it % 2] if ks else HA
            L.append(f"ds_read_b128 {v(b,4)}, {v(vXR[ks])}")
            for mt in range(4):
                for u in range(2):
                    L.append(f"ds_read_b64_tr_b16 {v(b+8+4*mt+2*u,2)}, {v(vWR)} offset:{mt*8192+ks*4096+u*512}")
                if mt == 0:
                    L.append(f"ds_read_b128 {v(b+4,4)}, {v(vXR[ks])} offset:2048")
        if o.get('noread') and it > 1:
            return []
        return L

    def mfmas(it, ks):
        b = HB[it % 2] if ks else HA
        x = [b, b + 4]
        W = [b + 8 + 4 * m for m in range(4)]
        f = (it == 0 and ks == 0)
        L = []
        for sub in range(2):
            L.append(mf16(aQA[sub], W[0], x[sub], '0' if f else aQA[sub]))
        for sub in range(2):
            L.append(mf16(aQB[sub], W[1], x[sub], vEPS if f else aQB[sub]))
        for sub in range(2):
            L.append(mf16(aKB[sub], x[sub], W[2], vEPS if f else aKB[sub]))
        for sub in range(2):
            L.append(mf16(aVB[sub], x[sub], W[3], '0' if f else aVB[sub]))
        if o.get('nomfma') and it > 0:
            return ["s_nop 0"] * 8
        return L

    P = 112
    GP = 144
    a(f"s_cmp_eq_u32 {s(sW)}, {o['pub']}\ns_cbranch_scc0 L_nopub")
    a(f"v_add_u32 v11, {STG}, {v(vL16)}\nv_lshlrev_b32 v12, 2, v6\nv_add_u32 v12, {STG}, v12")
    for i in range(8):
        a(f"ds_read_b128 {v(P+4*i,4)}, v11 offset:{4096*i}")
    for i in range(8):
        a(f"ds_read_b32 {v(GP+i)}, v12 offset:{4096*i+1024}")
    a(f"""
    v_lshrrev_b32 v11, 1, {v(vG)}
    v_lshlrev_b32 v11, 9, v11
    v_lshl_add_u32 v11, {v(vR)}, 4, v11
    v_and_b32 v12, 1, {v(vG)}
    v_lshl_add_u32 v11, v12, 3, v11
    s_lshr_b32 {s(sT0)}, {s(sKVT)}, 5
    s_lshl_b32 {s(sT0)}, {s(sT0)}, 11
    s_and_b32 {s(sT1)}, {s(sKVT)}, 16
    s_lshl_b32 {s(sT1)}, {s(sT1)}, 4
    s_add_u32 {s(sT0)}, {s(sT0)}, {s(sT1)}
    s_lshl_b32 {s(sT1)}, {s(sT8)}, 10
    s_add_u32 {s(sT0)}, {s(sT0)}, {s(sT1)}
    s_lshl_b32 {s(sT1)}, {s(sKVT)}, 2
    s_add_u32 {s(sT1)}, {s(sT1)}, {WS_G}
    v_lshlrev_b32 v12, 2, {v(vR)}
    s_waitcnt lgkmcnt(8)
    """)
    for st_ in (4, 8, 16):
        for i in range(0, 32, 2 * st_):
            a(f"v_pk_add_f32 {v(P+i,2)}, {v(P+i,2)}, {v(P+i+st_,2)}")
            a(f"v_pk_add_f32 {v(P+i+2,2)}, {v(P+i+2,2)}, {v(P+i+st_+2,2)}")
    a(f"""
    s_lshl_b32 {s(sT2)}, {s(sT8)}, {VSCALE.bit_length()-1}
    v_ldexp_f32 {v(P)}, {v(P)}, {s(sT2)}
    v_ldexp_f32 {v(P+1)}, {v(P+1)}, {s(sT2)}
    v_ldexp_f32 {v(P+2)}, {v(P+2)}, {s(sT2)}
    v_ldexp_f32 {v(P+3)}, {v(P+3)}, {s(sT2)}
    v_cvt_pk_bf16_f32 v152, {v(P)}, {v(P+1)}
    v_cvt_pk_bf16_f32 v153, {v(P+2)}, {v(P+3)}
    buffer_store_dwordx2 v[152:153], v11, {s(rWS,4)}, {s(sT0)} offen sc1
    s_waitcnt lgkmcnt(0)
    v_pk_add_f32 {v(GP,2)}, {v(GP,2)}, {v(GP+2,2)}
    v_pk_add_f32 {v(GP+4,2)}, {v(GP+4,2)}, {v(GP+6,2)}
    v_pk_add_f32 {v(GP,2)}, {v(GP,2)}, {v(GP+4,2)}
    v_add_f32 {v(GP)}, {v(GP)}, {v(GP+1)}
    v_mul_f32 {v(GP)}, {H(f2u(-LOG2E))}, {v(GP)}
    v_exp_f32 {v(GP)}, {v(GP)}
    s_nop 0
    v_add_f32 {v(GP)}, 1.0, {v(GP)}
    v_rcp_f32 {v(GP)}, {v(GP)}
    s_mov_b64 exec, 0xffff
    buffer_store_dword {v(GP)}, v12, {s(rWS,4)}, {s(sT1)} offen sc1
    s_mov_b64 exec, -1
    s_cmp_lg_u32 {s(sTB)}, 0
    s_cbranch_scc1 L_nopub
    v_mov_b32 v154, 0
    s_lshl_b32 {s(sT1)}, {s(sHG)}, 7
    s_add_u32 {s(sT1)}, {s(sT1)}, {WS_C3}
    s_mov_b64 exec, 1
    buffer_store_dword v154, v154, {s(rWS,4)}, {s(sT1)} offen sc1
    s_mov_b64 exec, -1
    """)
    a.label("L_nopub")
    for ln in reads(0):
        a(ln)

    sig_at = o.get('sig_at', 1)
    for it in range(8):
        a("s_waitcnt lgkmcnt(10)")
        for ln in mfmas(it, 0):
            a(ln)
        if it < 7:
            d = slot(it + 1) - slot(it)
            op = "v_add_u32" if d > 0 else "v_subrev_u32"
            for r_ in (vXR[0], vXR[1], vWR):
                a(f"{op} {v(r_)}, {abs(d)}, {v(r_)}")
            if it == sig_at:
                a(f"""
                s_cmp_eq_u32 {s(sW)}, {o['pub']}
                s_cbranch_scc0 L_nosig1
                s_and_b32 {s(sT0)}, s2, 0x18
                s_lshl_b32 {s(sT0)}, {s(sT0)}, 3
                v_mov_b32 v11, 0
                v_mov_b32 v12, 1
                s_mov_b64 exec, 1
                s_waitcnt vmcnt(0)
                buffer_atomic_add v12, v11, {s(rDBG,4)}, {s(sT0)} offen sc1
                s_mov_b64 exec, -1
                """)
                a.label("L_nosig1")
            a("s_waitcnt lgkmcnt(0)")
            early = (it == 6 and o.get('early6', 1))
            if early:
                for ln in mfmas(it, 1):
                    a(ln)
            a("s_barrier")
            stamp(f"B{it+1}")
            if it == 6:
                stamp("B7c", cyc=True)
            R_ = reads(it + 1)
            M_ = mfmas(it, 1) if not early else [""] * 8
            for i, m_ in enumerate(M_):
                a(m_)
                for ln in R_[i * len(R_) // 8:(i + 1) * len(R_) // 8]:
                    a(ln)
        else:
            a("s_waitcnt lgkmcnt(0)")
            for ln in mfmas(it, 1):
                a(ln)
    stamp("gemm1")

    def phi(src, dst, tmp):
        for i in range(0, 8, 2):
            a(f"v_pk_fma_f32 {v(tmp+i,2)}, {v(src+i,2)}, {s(sCL,2)}, {v(cE,2)}")
        for i in range(8):
            a(f"v_exp_f32 {v(tmp+i)}, {v(tmp+i)} clamp")
        for i in range(8):
            a(f"v_max_f32 {v(src+i)}, {v(src+i)}, {v(vEPS)}")
        for i in range(0, 8, 2):
            a(f"v_pk_add_f32 {v(src+i,2)}, {v(src+i,2)}, {v(tmp+i,2)}")
        for i in range(4):
            a(f"v_cvt_pk_bf16_f32 {v(dst+i)}, {v(src+2*i)}, {v(src+2*i+1)}")

    PK, VF, TM, DKV, DZ = 56, 60, 64, 72, 76
    a("s_nop 0")
    for i in range(0, 8, 2):
        a(f"v_pk_mul_f32 {v(aQA[0]+i,2)}, {v(aQA[0]+i,2)}, {s(sCQ,2)}")
    for i in range(4):
        a(f"v_cvt_pk_bf16_f32 {v(vQ+i)}, {v(aQA[0]+2*i)}, {v(aQA[0]+2*i+1)}")
    phi(aKB[0], PK, TM)
    for i in range(4):
        a(f"v_cvt_pk_bf16_f32 {v(VF+i)}, {v(aVB[0]+2*i)}, {v(aVB[0]+2*i+1)}")
    a(f"""
    v_permlane16_swap_b32 {v(vQ)}, {v(vQ+2)}
    v_permlane16_swap_b32 {v(vQ+1)}, {v(vQ+3)}
    """)
    a(mf16(DKV, PK, VF, '0'))
    a(mf16(DZ, PK, ONE, '0'))
    phi(aQB[0], vPQ, TM)
    a(f"""
    ds_write_b128 {v(vSCR)}, {v(DKV,4)}
    v_mov_b64 {v(vO,2)}, 0
    v_permlane16_swap_b32 {v(vPQ)}, {v(vPQ+2)}
    v_permlane16_swap_b32 {v(vPQ+1)}, {v(vPQ+3)}
    ds_write_b128 {v(vPQA)}, {v(vPQ,4)}
    s_mov_b32 exec_lo, 0x00010001
    s_mov_b32 exec_hi, 0x00010001
    ds_write_b128 {v(vSCR)}, {v(DZ,4)} offset:512
    s_mov_b64 exec, -1
    """)
    for i in range(2, 10, 2):
        a(f"v_mov_b64 {v(vO+i,2)}, 0")
    a("s_waitcnt lgkmcnt(0)\ns_barrier")
    stamp("X1")

    def tadr(t, off):
        byte = t * 2048 + off
        return (vL16, byte) if byte < 65536 else (vL16H, byte - 65536)

    def rdK(r, t):
        b, off = tadr(t, 0)
        return f"ds_read_b128 {v(r,4)}, {v(b)} offset:{off}"

    def rdV(r, t, blk):
        b, off = tadr(t, 1024 + 256 * blk)
        return f"ds_read_b128 {v(r,4)}, {v(b)} offset:{off}"

    KT = 112
    a("s_setprio 2")
    a(rdK(KT, 0))
    a(rdK(vK[0], 1))
    a(rdK(vK[1], 2))
    a(f"s_mov_b64 exec, {s(sVM,2)}")
    a(rdV(vVa[0], 0, 0))
    a(rdV(vVb[1], 0, 1))
    a(rdV(vVa[1], 1, 0))
    a("s_mov_b64 exec, -1")
    a(f"""
    s_waitcnt lgkmcnt(5)
    {mf32(vS[0], KT, vQ, '0')}
    v_mov_b32 v13, 1
    s_nop 10
    """)

    def rowmax(S, dst, first_):
        if first_:
            a(f"v_max3_f32 {v(dst)}, {v(S)}, {v(S+1)}, {v(S+2)}")
            a(f"v_max3_f32 {v(dst+1)}, {v(S+3)}, {v(S+4)}, {v(S+5)}")
            rest = list(range(6, 16))
        else:
            rest = list(range(16))
        for n, i in enumerate(rest[::2]):
            d = dst + (n % 2)
            a(f"v_max3_f32 {v(d)}, {v(d)}, {v(S+i)}, {v(S+i+1)}")

    def finish_max(dst, margin):
        a(f"""
        v_max_f32 {v(dst)}, {v(dst)}, {v(dst+1)}
        v_mov_b32 {v(dst+1)}, {v(dst)}
        s_nop 1
        v_permlane32_swap_b32 {v(dst)}, {v(dst+1)}
        v_max_f32 {v(dst)}, {v(dst)}, {v(dst+1)}
        v_sub_f32 {v(vNM)}, {H(f2u(-margin))}, {v(dst)}
        v_mov_b32 {v(vNM+1)}, {v(vNM)}
        """)
        for i in range(2, 16, 2):
            a(f"v_mov_b64 {v(vNM+i,2)}, {v(vNM,2)}")

    rowmax(vS[0], 10, True)
    finish_max(10, MARGIN)
    a("s_nop 1")
    a(mf32(vS[0], KT, vQ, vNM))
    a("s_waitcnt lgkmcnt(0)\ns_nop 9")
    stamp("attn0")
    stamp("attn0c", cyc=True)
    a("s_setprio 0")

    def ex(r):
        return f"v_exp_f32 {v(r)}, {v(r)}"

    def block(t, prio):
        b = t % 2
        S, Pn = vS[b], vS[1 - b]
        L = [ex(S)]
        if prio:
            L.append("s_setprio 1")
        if t in o['reb']:
            L += [f"v_frexp_exp_i32_f32 v10, {v(vO+8)}",
                  f"v_sub_u32 v10, {1 - o['X']}, v10",
                  f"v_max_i32 v10, 0xffffff88, v10",
                  f"v_cvt_f32_i32 v11, v10",
                  f"v_add_f32 {v(vNM)}, {v(vNM)}, v11",
                  f"v_ldexp_f32 v10, 1.0, v10",
                  f"v_mov_b32 {v(vNM+1)}, {v(vNM)}",
                  f"v_mov_b32 v11, v10"]
            L += [f"v_mov_b64 {v(vNM+i,2)}, {v(vNM,2)}" for i in range(2, 16, 2)]
        L.append(ex(S + 1))
        if t > 0:
            L.append(smf(vVb[b], Pn + 8))
        L += [ex(S + i) for i in range(2, 5)]
        if t < 63:
            L.append(mf32(Pn, vK[b], vQ, vNM))
        if t - 1 in o['reb']:
            L += [ex(S + i) for i in range(5, 13)]
            L += [f"v_pk_mul_f32 {v(vO+i,2)}, {v(vO+i,2)}, v[10:11]" for i in range(0, 10, 2)]
            L += [ex(S + 13), ex(S + 14), smf(vVa[b], S), ex(S + 15)]
            return L
        L += [ex(S + i) for i in range(5, 10)]
        L.append(smf(vVa[b], S))
        L += [ex(S + i) for i in range(10, 16)]
        return L

    OBF = 112
    OAF = 24
    CKP = [26, 42, 50]

    def load_o(dst, base, frm=0, to=8):
        for i in range(frm, to):
            if i == frm or i % 2 == 0:
                a(f"s_add_u32 {s(sT0)}, {s(sT10)}, {base + 4096*(i//2)}")
            a(f"buffer_load_dwordx4 {v(dst+4*i,4)}, {v(vOA)}, {s(rWS,4)}, {s(sT0)} offen offset:{2048*(i%2)} sc1")

    slow = []

    def flagcheck(name, thr):
        a(f"""
        s_cmp_lt_u32 {s(sT2)}, {thr}
        s_cbranch_scc1 L_spin_{name}
        """)
        a.label(f"L_ok_{name}")
        slow.append((name, thr))

    for t in range(0, 64, 2):
        for ln in block(t, True) + block(t + 1, False):
            a(ln)
        if t in (12, 54):
            a(f"v_readfirstlane_b32 {s(sT2)}, {v(vF)}")
        a("s_setprio 0")
        if t == 12:
            flagcheck("kv", 4)
        if t == 54:
            flagcheck("s2", 16)
        if t < 62:
            a(f"s_mov_b64 exec, {s(sVM,2)}")
            a(rdV(vVb[0], t + 1, 1))
            a(rdV(vVa[0], t + 2, 0))
            a(rdV(vVb[1], t + 2, 1))
            a(rdV(vVa[1], t + 3, 0))
            a("s_mov_b64 exec, -1")
            a(rdK(vK[0], t + 3))
            if t + 4 < 64:
                a(rdK(vK[1], t + 4))
        else:
            a(f"s_mov_b64 exec, {s(sVM,2)}")
            a(rdV(vVb[0], 63, 1))
            a("s_mov_b64 exec, -1")
        if t == 20:
            a(f"buffer_load_dword {v(vGT)}, {v(vGA)}, {s(rWS,4)}, 0 offen sc1")
        if t in (10, 52):
            a(f"ds_read_b32 {v(vF)}, {v(vCA)}")
        if t in (54, 56, 58, 60):
            k = (t - 54)
            load_o(OBF, WS_OB, k, k + 2)
        a("s_waitcnt lgkmcnt(0)")
        if t in CKP:
            a(f"s_mov_b64 exec, 1\nds_add_u32 {v(vCA)}, v13 offset:{4 + 4*CKP.index(t)}\ns_mov_b64 exec, -1")
    a(smf(vVb[0], vS[1] + 8))
    stamp("attn1c", cyc=True)
    stamp("attn1")
    vRW, vRR, vOUT = 12, 13, 6
    a(f"""
    s_lshl_b32 {s(sT0)}, {s(sW)}, 11
    s_add_u32 {s(sT1)}, {s(sT0)}, {L_RED}
    v_add_u32 {v(vRW)}, {s(sT1)}, {v(vL16)}
    s_xor_b32 {s(sT0)}, {s(sT0)}, 8192
    s_add_u32 {s(sT1)}, {s(sT0)}, {L_RED}
    v_add_u32 {v(vRR)}, {s(sT1)}, {v(vL16)}
    v_bfe_u32 v9, v0, 4, 1
    v_bfe_u32 v10, v0, 5, 1
    v_lshlrev_b32 v9, 5, v9
    v_lshl_add_u32 v9, v10, 4, v9
    v_and_b32 v10, 15, v0
    v_lshl_add_u32 {v(vOUT)}, v10, 10, v9
    """)
    a(f"""
    s_mov_b32 {s(sT2)}, {H(f2u(2.0**-99))}
    v_add_f32 v9, |{v(vO)}|, |{v(vO+1)}|
    v_add_f32 v10, |{v(vO+2)}|, |{v(vO+3)}|
    v_add_f32 v9, v9, |{v(vO+4)}|
    v_add_f32 v10, v10, |{v(vO+5)}|
    v_add_f32 v9, v9, |{v(vO+6)}|
    v_add_f32 v10, v10, |{v(vO+7)}|
    v_add_f32 v9, v9, v10
    v_cmp_gt_f32 {s(sSV,2)}, {s(sT2)}, v9
    v_add_f32 v9, v9, {v(vO+8)}
    v_cmp_ngt_f32 vcc, {H(f2u(2.0**115))}, v9
    s_waitcnt vmcnt(0)
    s_or_b64 vcc, vcc, {s(sSV,2)}
    s_cbranch_vccnz L_fallback
    """)
    a.label("L_norm")
    a(f"""
    v_rcp_f32 v10, {v(vO+8)}
    v_mul_f32 v8, {H(f2u(2.0**-VSCALE))}, {v(vGT)}
    v_mov_b32 v11, v10
    v_mov_b32 v9, v8
    s_add_u32 {s(sT0)}, {s(sOOFF)}, {WS_OA}
    """)
    for i in range(0, 8, 2):
        a(f"v_pk_mul_f32 {v(vO+i,2)}, {v(vO+i,2)}, v[10:11]")
    for i in range(0, 8, 2):
        a(f"v_pk_mul_f32 {v(vO+i,2)}, {v(vO+i,2)}, v[8:9]")
    for i in range(4):
        a(f"v_cvt_pk_bf16_f32 {v(vQ+i)}, {v(vO+2*i)}, {v(vO+2*i+1)}")
    a(f"buffer_store_dwordx4 {v(vQ,4)}, {v(vL16)}, {s(rWS,4)}, {s(sT0)} offen sc1")
    a(f"""
    v_xor_b32 {v(vOW[1])}, 32, {v(vOW[0])}
    v_xor_b32 {v(vOW[2])}, 64, {v(vOW[0])}
    v_xor_b32 {v(vOW[3])}, 0x60, {v(vOW[0])}
    s_barrier
    """)
    stamp("X5")

    acc = [144, 148, 152, 156]
    WR = [56, 72, 88]

    def rdW(st_):
        L = []
        b = wbase(st_)
        if st_ in (8, 13):
            L += [f"v_add_u32 {v(r_)}, 0x10000, {v(r_)}" for r_ in vOW]
        for ct in range(4):
            for u in range(2):
                L.append(f"ds_read_b64_tr_b16 {v(WR[st_%3]+4*ct+2*u,2)}, {v(vOW[ct])} offset:{(b & 0xffff) + 1024*u}")
        return L

    def chk(F, lab):
        a(f"""
        v_max3_u32 v9, {v(F)}, {v(F+1)}, {v(F+2)}
        v_max_u32 v9, v9, {v(F+3)}
        v_cmp_eq_u32 vcc, -1, v9
        s_nop 0
        s_cbranch_vccnz {lab}
        """)

    for ln in rdW(0) + rdW(1):
        a(ln)
    a(f"s_mov_b32 {s(sCNT)}, {SPIN}")
    a.label("L_chkB")
    a(f"v_max3_u32 v9, {v(OBF)}, {v(OBF+1)}, {v(OBF+2)}")
    a(f"v_max_u32 v9, v9, {v(OBF+3)}")
    for i in range(4, 32, 2):
        a(f"v_max3_u32 v9, v9, {v(OBF+i)}, {v(OBF+i+1)}")
    a("v_cmp_eq_u32 vcc, -1, v9\ns_nop 0\ns_cbranch_vccnz L_reB")
    a.label("L_okB")
    nld = 0
    for st_ in range(16):
        F = (OBF if st_ < 8 else OAF) + 4 * (st_ % 8)
        if st_ >= 8:
            a.label(f"L_try{st_}")
            a(f"s_waitcnt vmcnt({15-st_})")
            chk(F, f"L_re{st_}")
            a.label(f"L_go{st_}")
        a(f"s_waitcnt lgkmcnt({8 if st_ < 15 else 0})")
        R_ = rdW(st_ + 2) if st_ + 2 < 16 else []
        for ct in range(4):
            a(mf16(acc[ct], WR[st_ % 3] + 4 * ct, F, '0' if st_ == 0 else acc[ct]))
            for ln in R_[ct * len(R_) // 4:(ct + 1) * len(R_) // 4]:
                a(ln)
        if st_ in o['oa']:
            load_o(OAF, WS_OA, nld, nld + o['oa'][st_])
            nld += o['oa'][st_]
        if st_ == 7:
            stamp("Bpart")
    stamp("outmm")
    a(f"""
    s_lshl_b32 {s(sT0)}, {s(sOB_)}, 16
    s_lshl_b32 {s(sT1)}, {s(sH)}, 14
    s_add_u32 {s(sT0)}, {s(sT0)}, {s(sT1)}
    s_lshl_b32 {s(sT1)}, {s(sOC)}, 7
    s_add_u32 {s(sT0)}, {s(sT0)}, {s(sT1)}
    s_lshl_b32 {s(sT1)}, {s(sTH)}, 6
    s_add_u32 {s(sT0)}, {s(sT0)}, {s(sT1)}
    ds_write_b128 {v(vRW)}, {v(acc[2],4)}
    ds_write_b128 {v(vRW)}, {v(acc[3],4)} offset:1024
    s_waitcnt lgkmcnt(0)
    s_barrier
    ds_read_b128 v[24:27], {v(vRR)}
    ds_read_b128 v[28:31], {v(vRR)} offset:1024
    s_waitcnt lgkmcnt(0)
    """)
    for i in range(0, 8, 2):
        a(f"v_pk_add_f32 {v(acc[0]+i,2)}, {v(acc[0]+i,2)}, {v(24+i,2)}")
    for i in range(4):
        a(f"v_cvt_pk_bf16_f32 {v(32+i)}, {v(acc[0]+2*i)}, {v(acc[0]+2*i+1)}")
    a(f"""
    s_nop 0
    v_permlane16_swap_b32 v32, v34
    v_permlane16_swap_b32 v33, v35
    buffer_store_dwordx4 v[32:35], {v(vOUT)}, {s(rOUT,4)}, {s(sT0)} offen {o['outmod']}
    """)
    if diag:
        a("s_waitcnt vmcnt(0)")
        stamp("end")
        a(f"v_writelane_b32 {v(vST)}, {s(sCNT)}, 63")
        dump()
    if o.get('probe') and not o['probe'].startswith('H'):
        pad()
    a.label("L_end")
    a("s_endpgm")

    a.label("L_reB")
    load_o(OBF, WS_OB)
    a(f"""
    s_sub_u32 {s(sCNT)}, {s(sCNT)}, 1
    s_cmp_eq_u32 {s(sCNT)}, 0
    s_waitcnt vmcnt(0)
    s_cbranch_scc0 L_chkB
    s_branch L_okB
    """)
    for st_ in range(8, 16):
        a.label(f"L_re{st_}")
        a(f"""
        s_cmp_eq_u32 {s(sCNT)}, 0
        s_cbranch_scc1 L_go{st_}
        s_sub_u32 {s(sCNT)}, {s(sCNT)}, 1
        s_waitcnt vmcnt(0)
        """)
        load_o(OAF, WS_OA, st_ - 8, 8)
        a(f"s_branch L_try{st_}")
    for name, thr in slow:
        a.label(f"L_spin_{name}")
        a(f"s_mov_b32 {s(sCNT)}, {SPIN*16}")
        a.label(f"L_spin2_{name}")
        a(f"""
        ds_read_b32 {v(vF)}, {v(vCA)}
        s_sub_u32 {s(sCNT)}, {s(sCNT)}, 1
        s_cmp_eq_u32 {s(sCNT)}, 0
        s_cbranch_scc1 L_ok_{name}
        s_waitcnt lgkmcnt(0)
        v_readfirstlane_b32 {s(sT2)}, {v(vF)}
        s_nop 0
        s_cmp_lt_u32 {s(sT2)}, {thr}
        s_cbranch_scc1 L_spin2_{name}
        s_branch L_ok_{name}
        """)

    a.label("L_fallback")
    a.c("true row max, then the same accumulation, K/V read from the global image")
    a(f"""
    v_mov_b32 v10, 0xff800000
    v_mov_b32 v11, 0xff800000
    s_mov_b32 {s(sT0)}, 0
    """)
    a.label("L_fb1")
    a(f"""
    buffer_load_dwordx4 {v(vK[0],4)}, {v(vL16)}, {s(rWS,4)}, {s(sT0)} offen sc1
    s_waitcnt vmcnt(0)
    {mf32(vS[0], vK[0], vQ, '0')}
    s_nop 11
    """)
    rowmax(vS[0], 10, False)
    a(f"""
    s_add_u32 {s(sT0)}, {s(sT0)}, 2048
    s_cmp_lt_u32 {s(sT0)}, 131072
    s_cbranch_scc1 L_fb1
    """)
    finish_max(10, 0.0)
    for i in range(0, 16, 2):
        a(f"v_mov_b64 {v(vO+i,2)}, 0")
    a(f"s_mov_b32 {s(sT0)}, 0")
    a.label("L_fb2")
    a(f"""
    buffer_load_dwordx4 {v(vK[0],4)}, {v(vL16)}, {s(rWS,4)}, {s(sT0)} offen sc1
    s_mov_b64 exec, {s(sVM,2)}
    buffer_load_dwordx4 {v(vVa[0],4)}, {v(vL16)}, {s(rWS,4)}, {s(sT0)} offen offset:1024 sc1
    buffer_load_dwordx4 {v(vVb[0],4)}, {v(vL16)}, {s(rWS,4)}, {s(sT0)} offen offset:1280 sc1
    s_mov_b64 exec, -1
    s_waitcnt vmcnt(0)
    {mf32(vS[0], vK[0], vQ, vNM)}
    s_nop 11
    """)
    for i in range(16):
        a(ex(vS[0] + i))
    a(f"""
    s_nop 1
    {smf(vVa[0], vS[0])}
    {smf(vVb[0], vS[0]+8)}
    s_add_u32 {s(sT0)}, {s(sT0)}, 2048
    s_cmp_lt_u32 {s(sT0)}, 131072
    s_nop 7
    s_cbranch_scc1 L_fb2
    s_nop 15
    s_branch L_norm
    """)

    a(".p2align 6")
    a.label("L_helper")
    hX0, hX1 = 16, 17
    hW = [18, 19, 20, 21]
    a(f"""
    s_sub_u32 {s(sI)}, {s(sW)}, 8
    s_lshl{1 if nb != 1 else 2}_add_u32 {s(sCH)}, {s(sT3 if nb < 3 else sT2)}, {s(sT2 if nb < 3 else sT3)}
    s_and_b32 {s(sCH)}, {s(sCH)}, {o.get('rotmask', 7)}
    s_lshl2_add_u32 {s(sT8)}, {s(sTB)}, {s(sI)}
    s_lshl_b32 {s(sT8)}, {s(sT8)}, 14
    v_add_u32 {v(hX0)}, {s(sT8)}, v10
    v_xor_b32 {v(hX1)}, 64, {v(hX0)}
    v_add_u32 {v(hX1)}, 7168, {v(hX1)}
    s_max_u32 {s(sT0)}, {s(sI)}, 1
    s_sub_u32 {s(sT0)}, {s(sT0)}, 1
    s_lshl_b32 {s(sT1)}, {s(sI)}, 2
    s_lshr_b32 {s(sT1)}, {(xq << 4) + (xk_ << 8) + (xk_ << 12)}, {s(sT1)}
    s_and_b32 {s(sT1)}, {s(sT1)}, 7
    s_xor_b32 {s(sT1)}, {s(sT1)}, {s(sHG)}
    s_lshl3_add_u32 {s(sT0)}, {s(sT0)}, {s(sT1)}
    s_lshl_b32 {s(sT0)}, {s(sT0)}, 7
    s_lshl_b32 {s(sT9)}, {s(sI)}, 11
    s_lshl_b32 {s(sT10)}, {s(sI)}, 13
    s_mov_b32 {s(rW1+3)}, 0x20000
    s_cmp_eq_u32 {s(sI)}, 0
    s_cselect_b32 {s(sSTR)}, 1, 3
    s_lshl_b32 {s(rW1+2)}, {s(sSTR)}, 19
    s_lshl_b32 {s(sWSTEP)}, {s(sSTR)}, 15
    s_lshl_b32 {s(sSTR)}, {s(sSTR)}, 10
    v_bfe_u32 v9, v6, 4, 1
    v_lshlrev_b32 v9, 1, v9
    v_xor_b32 v9, v9, v11
    v_lshl_add_u32 v9, v9, 4, {s(sT0)}
    v_mad_u32_u24 {v(hW[0])}, v12, {s(sSTR)}, v9
    s_lshl_b32 {s(sT1)}, {s(sSTR)}, 3
    s_sub_u32 {s(sT1)}, {s(sT1)}, 1024
    v_xor_b32 {v(hW[1])}, 64, {v(hW[0])}
    v_add_u32 {v(hW[1])}, {s(sT1)}, {v(hW[1])}
    s_lshl_b32 {s(sT1)}, {s(sT1)}, 1
    v_add_u32 {v(hW[2])}, {s(sT1)}, {v(hW[0])}
    v_add_u32 {v(hW[3])}, {s(sT1)}, {v(hW[1])}
    s_cmp_eq_u32 {s(sI)}, 0
    s_waitcnt lgkmcnt(0)
    s_cselect_b32 {s(rW1)}, {s(pWQ)}, {s(pWQKV)}
    s_cselect_b32 {s(rW1+1)}, {s(pWQ+1)}, {s(pWQKV+1)}
    """)
    srd(rX, pX)
    if o.get('probe'):
        a("s_mov_b32 s14, s88")

    def dma_chunk(it):
        sl = slot(it)
        a(f"""
        s_lshl_b32 {s(sOX)}, {s(sCH)}, 7
        s_add_u32 m0, {s(sT9)}, {sl}
        s_lshl_b32 {s(sOW)}, {s(sCH)}, 1
        buffer_load_dwordx4 {v(hX0)}, {s(rX,4)}, {s(sOX)} offen lds
        buffer_load_dwordx4 {v(hX1)}, {s(rX,4)}, {s(sOX)} offen offset:1024 lds
        s_add_u32 m0, {s(sT10)}, {sl+8192}
        s_mul_i32 {s(sOW)}, {s(sOW)}, {s(sWSTEP)}
        """)
        for i in range(4):
            a(f"buffer_load_dwordx4 {v(hW[i])}, {s(rW1,4)}, {s(sOW)} offen offset:{1024*i} lds")
        a(f"""
        s_add_u32 m0, {s(sT10)}, {sl+8192+4096}
        s_add_u32 {s(sOW)}, {s(sOW)}, {s(sWSTEP)}
        """)
        for i in range(4):
            a(f"buffer_load_dwordx4 {v(hW[i])}, {s(rW1,4)}, {s(sOW)} offen offset:{1024*i} lds")
        a(f"s_add_u32 {s(sCH)}, {s(sCH)}, 1\ns_and_b32 {s(sCH)}, {s(sCH)}, 7")

    stamp("Hstart")
    dma_chunk(0)
    a(f"""
    v_mov_b32 {v(vCA)}, {L_CNT}
    v_mov_b64 v[28:29], 0
    v_mov_b64 v[30:31], 0
    ds_write_b128 {v(vCA)}, v[28:31]
    s_xor_b32 {s(sHK)}, {s(sHG)}, {xk_}
    s_xor_b32 {s(sHQ)}, {s(sHG)}, {xq}
    """)
    srd(rWS, pWS)
    srdc(rWS, WSN)
    srd(rDBG, pDBG)
    srdc(rDBG, 256)
    srd(rWO, pWO)
    srdc(rWO, 524288)
    srd(rBWO, pBWO)
    srdc(rBWO, 524288)
    dma_chunk(1)
    hPA, hPV = 24, 25
    a(f"""
    v_and_b32 {v(hPA)}, 3, v6
    v_lshlrev_b32 {v(hPA)}, 6, {v(hPA)}
    s_waitcnt vmcnt(10) lgkmcnt(0)
    s_barrier
    """)
    for it in range(7):
        if it + 2 <= 7:
            dma_chunk(it + 2)
            a("s_waitcnt vmcnt(10)")
        else:
            a(f"buffer_load_dword {v(hPV)}, {v(hPA)}, {s(rDBG,4)}, 0 offen sc1")
            a("s_waitcnt vmcnt(1)")
        a("s_barrier")
    a(f"s_setprio {o['hprio']}")

    def gpoll(name, addr, off, thr, pre=False, sleep=0, r=rDBG):
        a(f"s_mov_b32 {s(sCNT)}, {SPIN}")
        if pre:
            a(f"s_branch L_gc_{name}")
        a.label(f"L_gp_{name}")
        if sleep:
            a(f"s_sleep {sleep}")
        a(f"""
        buffer_load_dword {v(hPV)}, {v(addr)}, {s(r,4)}, 0 offen offset:{off} sc1
        s_sub_u32 {s(sCNT)}, {s(sCNT)}, 1
        s_cmp_eq_u32 {s(sCNT)}, 0
        s_cbranch_scc1 L_gd_{name}
        """)
        a.label(f"L_gc_{name}")
        a(f"""
        s_waitcnt vmcnt(0)
        v_cmp_gt_u32 vcc, {thr}, {v(hPV)}
        s_nop 0
        s_cbranch_vccnz L_gp_{name}
        """)
        a.label(f"L_gd_{name}")

    def lpoll(name, off, thr):
        a(f"s_mov_b32 {s(sCNT)}, {SPIN*4}")
        a.label(f"L_lp_{name}")
        a(f"""
        s_sleep {o.get('lsl', 16)}
        ds_read_b32 v9, {v(vCA)} offset:{off}
        s_sub_u32 {s(sCNT)}, {s(sCNT)}, 1
        s_cmp_eq_u32 {s(sCNT)}, 0
        s_cbranch_scc1 L_lp_{name}d
        s_waitcnt lgkmcnt(0)
        v_readfirstlane_b32 {s(sT1)}, v9
        s_nop 0
        s_cmp_lt_u32 {s(sT1)}, {thr}
        s_cbranch_scc1 L_lp_{name}
        """)
        a.label(f"L_lp_{name}d")

    gpoll("s1", hPA, 0, 64, pre=True)
    stamp("Hs1")

    def kv_group(G):
        a(f"s_add_u32 {s(sT0)}, {s(sT8)}, {16384*G}\ns_mov_b32 m0, {s(sT0)}\ns_nop 0")
        for i in range(4):
            a(f"buffer_load_dwordx4 {v(vL16)}, {s(rWS,4)}, {s(sT0)} offen offset:{1024*i} sc1 lds")

    a(f"s_lshl_b32 {s(sT8)}, {s(sI)}, 12")
    npre = o.get('npre', 2)
    for G in range(npre):
        kv_group(G)
    hA, hB = 26, 27
    a(f"""
    s_mul_i32 {s(sT0)}, {s(sI)}, 1088
    s_add_u32 {s(sT0)}, {s(sT0)}, {L_SCR}
    v_add_u32 {v(hA)}, {s(sT0)}, {v(vL16)}
    s_lshl_b32 {s(sT0)}, {s(sI)}, 10
    s_add_u32 {s(sT0)}, {s(sT0)}, {L_PQ}
    v_add_u32 {v(hB)}, {s(sT0)}, {v(vL16)}
    v_mov_b64 v[28:29], -1
    v_mov_b64 v[30:31], -1
    v_and_b32 v9, 31, v6
    v_lshlrev_b32 v9, 2, v9
    s_waitcnt vmcnt({4*(npre-2)})
    s_barrier
    """)
    stamp("HX1")
    hPQ = [32, 36]
    hS = [40, 44, 48, 52]
    hG = [56, 57]
    a(f"""
    ds_read_b128 {v(hS[0],4)}, {v(hA)}
    ds_read_b128 {v(hS[1],4)}, {v(hA)} offset:4352
    ds_read_b128 {v(hS[2],4)}, {v(hA)} offset:1024
    ds_read_b128 {v(hS[3],4)}, {v(hA)} offset:5376
    ds_read_b128 {v(hPQ[0],4)}, {v(hB)}
    ds_read_b128 {v(hPQ[1],4)}, {v(hB)} offset:4096
    """)
    for G in range(npre, 8):
        kv_group(G)
    a(f"""
    s_lshl_b32 {s(sT0)}, {s(sTB)}, 8
    s_add_u32 {s(sT0)}, {s(sT0)}, {WS_G}
    buffer_load_dword {v(hG[0])}, v9, {s(rWS,4)}, {s(sT0)} offen sc1
    buffer_load_dword {v(hG[1])}, v9, {s(rWS,4)}, {s(sT0)} offen offset:128 sc1
    s_lshl_b32 {s(sT0)}, {s(sTB)}, 6
    s_lshl2_add_u32 {s(sT1)}, {s(sHG)}, {s(sI)}
    s_add_u32 {s(sT0)}, {s(sT0)}, {s(sT1)}
    s_lshl_b32 {s(sOOFF)}, {s(sT0)}, 10
    """)
    for base in (WS_OA, WS_OA + 32768, WS_OB, WS_OB + 32768):
        if base == WS_OB:
            a(f"s_xor_b32 {s(sOOFF)}, {s(sOOFF)}, {4096*xq}")
        a(f"s_add_u32 {s(sT0)}, {s(sOOFF)}, {base}")
        a(f"buffer_store_dwordx4 v[28:31], {v(vL16)}, {s(rWS,4)}, {s(sT0)} offen sc1")
    a(f"""
    s_lshl_b32 {s(sT0)}, {s(sHK)}, 5
    s_add_u32 {s(sT0)}, {s(sT0)}, {s(sTB)}
    s_lshl2_add_u32 {s(sT0)}, {s(sT0)}, {s(sI)}
    s_mul_i32 {s(sT0)}, {s(sT0)}, 1088
    s_add_u32 {s(sT0)}, {s(sT0)}, {WS_KVP}
    s_waitcnt lgkmcnt(0)
    v_pk_add_f32 {v(hS[0],2)}, {v(hS[0],2)}, {v(hS[1],2)}
    v_pk_add_f32 {v(hS[0]+2,2)}, {v(hS[0]+2,2)}, {v(hS[1]+2,2)}
    v_pk_add_f32 {v(hS[2],2)}, {v(hS[2],2)}, {v(hS[3],2)}
    v_pk_add_f32 {v(hS[2]+2,2)}, {v(hS[2]+2,2)}, {v(hS[3]+2,2)}
    v_mov_b32 v10, 1
    v_mov_b32 v11, 0
    buffer_store_dwordx4 {v(hS[0],4)}, {v(vL16)}, {s(rWS,4)}, {s(sT0)} offen sc1
    s_mov_b64 exec, 15
    buffer_store_dwordx4 {v(hS[2],4)}, {v(vL16)}, {s(rWS,4)}, {s(sT0)} offen offset:1024 sc1
    s_mov_b64 exec, 1
    s_waitcnt vmcnt(0)
    ds_add_rtn_u32 v12, {v(vCA)}, v10
    s_and_b32 {s(sT0)}, s2, 0x18
    s_lshl_b32 {s(sT0)}, {s(sT0)}, 3
    s_waitcnt lgkmcnt(0)
    v_readfirstlane_b32 {s(sT1)}, v12
    s_nop 0
    s_cmp_eq_u32 {s(sT1)}, 3
    s_cbranch_scc0 L_nosig2
    buffer_atomic_add v10, v11, {s(rDBG,4)}, {s(sT0)} offen offset:4 sc1
    """)
    a.label("L_nosig2")
    a("s_mov_b64 exec, -1")
    stamp("Hkv")
    hP3 = 26
    a(f"""
    s_cmp_eq_u32 {s(sI)}, 0
    s_cbranch_scc0 L_nol1
    s_sleep {o.get('sl2a', 48)}
    """)
    gpoll("s2", hPA, 4, 64, sleep=o.get('sl2', 16))
    stamp("Hs2")
    PL = 64
    a(f"""
    v_mov_b32 v12, 16
    v_and_b32 v13, 31, v6
    v_lshrrev_b32 v14, 5, v6
    s_mov_b64 exec, 1
    ds_add_u32 {v(vCA)}, v12
    s_mov_b32 exec_lo, 0x1ffff
    s_mov_b32 exec_hi, 0x1ffff
    v_mul_u32_u24 v14, {16*4352}, v14
    v_lshl_add_u32 v14, v13, 3, v14
    s_mul_i32 {s(sT0)}, {s(sHK)}, {32*4352}
    s_mul_i32 {s(sT1)}, {s(sTB)}, 136
    s_add_u32 {s(sT0)}, {s(sT0)}, {s(sT1)}
    s_add_u32 {s(sT0)}, {s(sT0)}, {WS_KVP}
    """)
    for p in range(16):
        a(f"buffer_load_dwordx2 {v(PL+2*p,2)}, v14, {s(rWS,4)}, {s(sT0)} offen sc1")
        if p < 15:
            a(f"s_add_u32 {s(sT0)}, {s(sT0)}, 4352")
    a(f"""
    s_mul_i32 {s(sT0)}, {s(sHK)}, 2176
    s_mul_i32 {s(sT1)}, {s(sTB)}, 68
    s_add_u32 {s(sT0)}, {s(sT0)}, {s(sT1)}
    s_add_u32 {s(sT0)}, {s(sT0)}, {WS_KVF}
    s_mov_b64 exec, -1
    s_waitcnt vmcnt(0)
    """)
    for st_ in (2, 4, 8, 16):
        for i in range(0, 32, 2 * st_):
            a(f"v_pk_add_f32 {v(PL+i,2)}, {v(PL+i,2)}, {v(PL+i+st_,2)}")
    a(f"""
    v_mov_b64 {v(PL+2,2)}, {v(PL,2)}
    v_lshlrev_b32 v13, 2, v13
    s_nop 0
    v_permlane32_swap_b32 {v(PL)}, {v(PL+2)}
    v_permlane32_swap_b32 {v(PL+1)}, {v(PL+3)}
    v_pk_add_f32 {v(PL,2)}, {v(PL,2)}, {v(PL+2,2)}
    v_cvt_pk_bf16_f32 {v(PL)}, {v(PL)}, {v(PL+1)}
    s_mov_b64 exec, 0x1ffff
    buffer_store_dword {v(PL)}, v13, {s(rWS,4)}, {s(sT0)} offen sc1
    s_mov_b64 exec, 1
    s_lshl_b32 {s(sT0)}, {s(sHK)}, 7
    s_add_u32 {s(sT0)}, {s(sT0)}, {WS_C3}
    s_waitcnt vmcnt(0)
    buffer_atomic_add v10, v11, {s(rWS,4)}, {s(sT0)} offen sc1
    s_mov_b64 exec, -1
    s_lshl_b32 {s(sT0)}, {s(sHQ)}, 7
    s_add_u32 {s(sT0)}, {s(sT0)}, {WS_C3}
    v_mov_b32 {v(hP3)}, {s(sT0)}
    s_sleep {o.get('sl3a', 32)}
    """)
    gpoll("s3", hP3, 0, 32, sleep=o.get('sl3', 16), r=rWS)
    a(f"s_mov_b64 exec, 1\nds_add_u32 {v(vCA)}, v12\ns_mov_b64 exec, -1\ns_branch L_lp_s3d")
    a.label("L_nol1")
    lpoll("s3", 0, 32)
    stamp("Hs3")
    KF = 60
    DB = [64, 80]
    hOW = [26, 27]
    a(f"""
    v_and_b32 v9, 31, v6
    v_min_u32 v9, 16, v9
    v_lshrrev_b32 v12, 5, v6
    v_mad_u32_u24 v9, v12, 17, v9
    v_lshlrev_b32 v9, 4, v9
    s_lshl2_add_u32 {s(sT0)}, {s(sHQ)}, {s(sI)}
    s_mul_i32 {s(sT0)}, {s(sT0)}, 544
    s_add_u32 {s(sT0)}, {s(sT0)}, {WS_KVF}
    buffer_load_dwordx4 {v(KF,4)}, v9, {s(rWS,4)}, {s(sT0)} offen sc1
    v_lshlrev_b32 v9, 1, {v(vG)}
    v_and_b32 v12, 7, v6
    v_xor_b32 v9, v9, v12
    v_lshlrev_b32 v9, 4, v9
    v_lshrrev_b32 v12, 3, v6
    v_lshl_add_u32 v9, v12, 10, v9
    s_lshr_b32 {s(sT0)}, {s(sI)}, 1
    s_lshl_b32 {s(sT0)}, {s(sT0)}, 18
    s_and_b32 {s(sT1)}, {s(sI)}, 1
    s_lshl_b32 {s(sT1)}, {s(sT1)}, 14
    s_add_u32 {s(sT0)}, {s(sT0)}, {s(sT1)}
    s_lshl_b32 {s(sT1)}, {s(sOC)}, 7
    s_add_u32 {s(sT0)}, {s(sT0)}, {s(sT1)}
    v_add_u32 {v(hOW[0])}, {s(sT0)}, v9
    v_add_u32 {v(hOW[1])}, 7168, {v(hOW[0])}
    s_waitcnt vmcnt(0)
    {mf32(DB[0], KF, hPQ[0], '0')}
    {mf32(DB[1], KF, hPQ[1], '0')}
    """)

    def dma_w(st_):
        r = rBWO if st_ < 8 else rWO
        a(f"""
        s_add_u32 m0, {s(sT9)}, {wbase(st_)}
        s_mov_b32 {s(sT0)}, {(st_ % 8) * 32768}
        buffer_load_dwordx4 {v(hOW[0])}, {s(r,4)}, {s(sT0)} offen lds
        buffer_load_dwordx4 {v(hOW[1])}, {s(r,4)}, {s(sT0)} offen offset:1024 lds
        """)

    for st_ in (13, 14, 15):
        dma_w(st_)
    for th in range(2):
        D = DB[th]
        a(f"""
        v_add_f32 v12, {H(f2u(EPS))}, {v(D+8)}
        v_rcp_f32 v12, v12
        v_sub_f32 v9, 1.0, {v(hG[th])}
        v_mul_f32 v12, v12, v9
        v_mov_b32 v13, v12
        """)
        for i in range(0, 8, 2):
            a(f"v_pk_mul_f32 {v(D+i,2)}, {v(D+i,2)}, v[12:13]")
        for i in range(4):
            a(f"v_cvt_pk_bf16_f32 {v(D+8+i)}, {v(D+2*i)}, {v(D+2*i+1)}")
        a(f"""
        s_add_u32 {s(sT0)}, {s(sOOFF)}, {WS_OB + 32768*th}
        buffer_store_dwordx4 {v(D+8,4)}, {v(vL16)}, {s(rWS,4)}, {s(sT0)} offen sc1
        """)
    stamp("HoB")
    for n_, (lo, hi) in enumerate([(0, 7), (7, 11), (11, 13)]):
        lpoll(f"prog{n_}", 4 + 4 * n_, 8)
        if n_ == 2:
            stamp("Hprog")
        for st_ in range(lo, hi):
            dma_w(st_)
    a("s_waitcnt vmcnt(0)")
    stamp("Hw")
    a("s_barrier")
    dump()
    if o.get('probe', '').startswith('H'):
        a("s_barrier")
        pad()
    a("s_endpgm")
    a.label("L_codeend")
    return a


HEADER = open('cdna_kernels/' + NAME + '.s.ref').read().split('; Override launch geometry')[0]


def wrap(a):
    k = NAME + '_kernel'
    return (HEADER + f"; @launch grid=(256,1,1) block=(768,1,1) lds={LDS_BYTES}\n"
            + f""".amdgcn_target "amdgcn-amd-amdhsa--gfx950"
.text
.globl {k}
.p2align 8
.type {k},@function
{k}:
""" + a.text() + f""".section .rodata,"a"
.p2align 6
.amdhsa_kernel {k}
  .amdhsa_next_free_vgpr {NVGPR}
  .amdhsa_next_free_sgpr 102
  .amdhsa_accum_offset {NVGPR}
  .amdhsa_group_segment_fixed_size 0
  .amdhsa_kernarg_size 96
  .amdhsa_user_sgpr_count 2
  .amdhsa_user_sgpr_kernarg_segment_ptr 1
  .amdhsa_system_sgpr_workgroup_id_x 1
.end_amdhsa_kernel
""")


if __name__ == '__main__':
    import argparse, json
    ap = argparse.ArgumentParser()
    ap.add_argument('out')
    ap.add_argument('--diag', action='store_true')
    ap.add_argument('--opts', default='{}')
    args = ap.parse_args()
    a = gen(args.diag, json.loads(args.opts))
    bad = check(a.lines)
    for b in bad:
        print("HAZARD need", b[0], "have", b[1], "|", b[2], "->", b[3])
    open(args.out, 'w').write(wrap(a))
    print("written", args.out, len(a.lines), "lines")
```

```python
import sys, struct
sys.path.insert(0, 'gen')
from asmlib import *

NAME = 'gated_mix__grouped_kv_mqa__linear_attn_block__prompt'


def f2u(x):
    return struct.unpack('<I', struct.pack('<f', x))[0]


def H(x):
    return f"0x{x & 0xffffffff:08x}"


WS_KV = 0
WS_G = 0x20000
WS_KVF = 0x22000
WS_C3 = 0x27000
WS_KVP = 0x28000
WS_F = 0x140000
WS_OA = 0x200000
WS_OB = 0x400000
WS_SIZE = 0x600000
WS_DIAG = 0x600000
SLOT = 40960
STG = 122880
MISC = 131072
L_SCR = MISC
L_PQ = MISC + 8704
L_CNT = 163776
L_RED = 106496
LDS_BYTES = 163840
sW = 3
pX, pWQ, pWK, pWV, pWO, pBX, pWQKV, pBWO, pGATE, pOUT, pDBG, pWS = 4, 6, 8, 10, 12, 14, 16, 18, 20, 22, 24, 26
rX, rW1, rWKV, rGATE, rWS, rDBG, rOUT, rWO, rBWO = 28, 32, 36, 40, 44, 48, 52, 56, 60
sTB, sHG, sCH, sWSTEP, sOX, sOW, sI = 64, 65, 66, 67, 68, 69, 70
sT0, sT1, sT2, sT3, sKVT, sT5, sT6, sSTR, sT8 = 71, 72, 73, 74, 75, 76, 77, 78, 79
sVM = 80
sCNT = 82
sOOFF = 83
sOB_, sOC = 84, 85
sSV = 86
sST = 88
sH, sTH = 90, 91
sT9, sT10 = 92, 93
sSTG = 94
vL16, vL16H, vIDX, vGT = 1, 2, 3, 4
vQ, vPQ = 16, 20
vNM, vO = 24, 40
vS = [56, 72]
vK = [88, 92]
vVa = [96, 104]
vVb = [100, 108]
vST = 15
aQA, aQB, aKB, aVB = [24, 28], [32, 36], [40, 44], [48, 52]
HA, HB = 56, [112, 136]
vEPS, ONE, cE = 80, 84, 88
vXR = [160, 161]
vWR = 162
vCA, vF = 163, 164
vOA, vSCR, vPQA, vGA = 5, 165, 166, 167
vOW = [14, 160, 161, 162]
sCL, sCQ = 96, 98
sHK, sHQ = 100, 101
vR, vG = 7, 8
NVGPR = 168

LOG2E = 1.4426950408889634
QSCALE = 0.25 * LOG2E
EPS = 1e-6
VSCALE = 32
SPIN = 1 << 16


def gen(diag=False, opts=None):
    o = dict(pub=7, hprio=3, X=94, reb=[8], oa={4: 2, 5: 2, 6: 2, 7: 2}, pf=1, outmod='', dm='')
    if opts:
        o.update(opts)
    o['oa'] = {int(k_): v_ for k_, v_ in o['oa'].items()}
    MARGIN = float(o['X'])
    nb = o.get('nb', 2)
    xq, xk_ = o.get('xq', 1), o.get('xk', 2)
    a = Asm()
    nst = [0]

    def stamp(name, cyc=False):
        if o.get('probe') == name:
            a(f"s_memrealtime {s(sST,2)}\ns_waitcnt lgkmcnt(0)\ns_mov_b32 s95, {s(sST)}")
        if not diag or name in o.get('nostamp', ['B1', 'B2', 'B3', 'B4', 'B5', 'B6']):
            return
        k = nst[0]
        nst[0] += 1
        a.c(f"stamp {k} {name}")
        a(f"{'s_memtime' if cyc else 's_memrealtime'} {s(sST,2)}")
        a("s_waitcnt lgkmcnt(0)")
        a(f"v_writelane_b32 {v(vST)}, {s(sST)}, {k}")

    def dump():
        if diag:
            a(f"""
            s_mul_i32 {s(sT0)}, s2, 12
            s_add_u32 {s(sT0)}, {s(sT0)}, {s(sW)}
            s_lshl_b32 {s(sT0)}, {s(sT0)}, 8
            s_add_u32 {s(sT0)}, {s(sT0)}, {WS_DIAG}
            v_lshrrev_b32 v5, 2, {v(vL16)}
            buffer_store_dword {v(vST)}, v5, {s(rWS,4)}, {s(sT0)} offen
            """)

    def pad():
        a("s_waitcnt vmcnt(0)")
        stamp("end")
        if o['probe'] == 'none':
            a("s_mov_b32 s95, s14")
        a(f"""
        s_sub_u32 s95, s95, s14
        s_mul_i32 s95, s95, {o.get('mult', 10)}
        s_add_u32 s95, s95, 6000
        """)
        a.label("L_pad")
        a(f"""
        s_memrealtime {s(sST,2)}
        s_waitcnt lgkmcnt(0)
        s_sub_u32 {s(sST)}, {s(sST)}, s14
        s_cmp_lt_u32 {s(sST)}, s95
        s_cbranch_scc1 L_pad
        """)

    def flagaddr():
        a(f"""
        s_lshr_b32 {s(sT0)}, s2, 3
        s_lshl_b32 {s(sT0)}, {s(sT0)}, 8
        s_and_b32 {s(sT1)}, s2, 7
        s_lshl2_add_u32 {s(sT0)}, {s(sT1)}, {s(sT0)}
        s_add_u32 {s(sT0)}, {s(sT0)}, {WS_F}
        """)

    def srd(r, p):
        a(f"s_mov_b32 {s(r)}, {s(p)}\ns_mov_b32 {s(r+1)}, {s(p+1)}")

    def srdc(r, n):
        a(f"s_mov_b32 {s(r+2)}, {n}\ns_mov_b32 {s(r+3)}, 0x20000")

    def mf16(d, A, B, C):
        C = C if isinstance(C, str) else v(C, 4)
        return f"v_mfma_f32_16x16x32_bf16 {v(d,4)}, {v(A,4)}, {v(B,4)}, {C}"

    def mf32(d, A, B, C):
        C = C if isinstance(C, str) else v(C, 16)
        return f"v_mfma_f32_32x32x16_bf16 {v(d,16)}, {v(A,4)}, {v(B,4)}, {C}"

    def smf(A, B):
        return f"v_smfmac_f32_32x32x32_bf16 {v(vO,16)}, {v(A,4)}, {v(B,8)}, {v(vIDX)}"

    def slot(it):
        return ((it + 1) % 3) * SLOT

    def wbase(st_):
        return 8192 * st_ if st_ <= 12 else MISC + 8192 * (st_ - 13)

    WSN = WS_SIZE + (0x100000 if diag else 0)

    a(f"""
    s_cmp_ge_u32 s2, 256
    s_cbranch_scc1 L_end
    {'s_memrealtime s[88:89]' if o.get('probe') else ''}
    s_load_dwordx16 s[4:19], s[0:1], 0
    s_load_dwordx8 s[20:27], s[0:1], 64
    v_lshrrev_b32 v5, 6, v0
    v_and_b32 v6, 63, v0
    v_readfirstlane_b32 {s(sW)}, v5
    v_lshlrev_b32 {v(vL16)}, 4, v6
    s_and_b32 {s(sT0)}, s2, 7
    s_lshr_b32 {s(sT2)}, s2, {3+nb}
    s_bfe_u32 {s(sT3)}, s2, {(nb << 16) + 3}
    s_lshr_b32 {s(sTB)}, {s(sT0)}, {3-nb}
    s_lshl{5-nb}_add_u32 {s(sTB)}, {s(sTB)}, {s(sT2)}
    s_and_b32 {s(sHG)}, {s(sT0)}, {(1 << (3-nb)) - 1}
    s_lshl{nb}_add_u32 {s(sHG)}, {s(sHG)}, {s(sT3)}
    s_lshr_b32 {s(sT1)}, s2, 6
    s_lshl2_add_u32 {s(sOB_)}, {s(sT0)}, {s(sT1)}
    s_bfe_u32 {s(sOC)}, s2, 0x30003
    v_lshrrev_b32 {v(vG)}, 4, v6
    v_and_b32 v11, 7, v6
    v_xor_b32 v10, v11, {v(vG)}
    v_lshlrev_b32 v10, 4, v10
    v_lshrrev_b32 v12, 3, v6
    v_lshl_add_u32 v10, v12, 10, v10
    """)
    if diag:
        a(f"v_mov_b32 {v(vST)}, 0")
    srdc(rX, 2097152)
    a(f"s_cmp_ge_u32 {s(sW)}, 8\ns_cbranch_scc1 L_helper")

    a(f"""
    s_lshr_b32 {s(sKVT)}, {s(sHG)}, 1
    s_lshl2_add_u32 {s(sKVT)}, {s(sTB)}, {s(sKVT)}
    s_lshl_b32 {s(sKVT)}, {s(sKVT)}, 4
    s_lshl_b32 {s(sT6)}, {s(sW)}, 7
    s_lshl_b32 {s(sT5)}, {s(sKVT)}, 10
    s_add_u32 {s(sT5)}, {s(sT5)}, {s(sT6)}
    s_lshl_b32 {s(sT9)}, {s(sW)}, 11
    s_lshl_b32 {s(sSTG)}, {s(sW)}, 12
    s_add_u32 {s(sSTG)}, {s(sSTG)}, {STG}
    s_mov_b32 m0, {s(sSTG)}
    v_xor_b32 v11, 64, v10
    v_add_u32 v11, 7168, v11
    v_lshlrev_b32 v9, 4, {v(vG)}
    v_and_b32 {v(vR)}, 15, v0
    s_and_b32 {s(sT8)}, {s(sHG)}, 1
    """)
    srdc(rWKV, 16384)
    srdc(rGATE, 1024)
    a(f"""
    s_cmp_eq_u32 {s(sT8)}, 0
    s_waitcnt lgkmcnt(0)
    s_cselect_b32 {s(rWKV)}, {s(pWK)}, {s(pWV)}
    s_cselect_b32 {s(rWKV+1)}, {s(pWK+1)}, {s(pWV+1)}
    """)
    srd(rX, pX)
    if o.get('probe'):
        a("s_mov_b32 s14, s88")
    xk = [56, 60]
    gk = [64, 68]
    wk = [72, 76]
    dk, dg = 24, 28
    a(f"""
    buffer_load_dwordx4 {v(vL16)}, {s(rWKV,4)}, {s(sT9)} offen lds
    buffer_load_dwordx4 {v(vL16)}, {s(rWKV,4)}, {s(sT9)} offen offset:1024 lds
    s_add_u32 m0, {s(sSTG)}, 2048
    """)
    srd(rGATE, pGATE)
    a(f"""
    buffer_load_dwordx4 v10, {s(rX,4)}, {s(sT5)} offen lds
    buffer_load_dwordx4 v11, {s(rX,4)}, {s(sT5)} offen offset:1024 lds
    buffer_load_dwordx4 {v(gk[0],4)}, v9, {s(rGATE,4)}, {s(sT6)} offen
    buffer_load_dwordx4 {v(gk[1],4)}, v9, {s(rGATE,4)}, {s(sT6)} offen offset:64
    """)
    stamp("start")
    if o['pf']:
        a("s_getpc_b64 s[12:13]")
        a.label("L_pc")
        a(f"""
        s_and_b32 {s(sT0)}, s2, 0xf8
        s_add_u32 {s(sT0)}, {s(sT0)}, {s(sW)}
        s_lshl_b32 {s(sT0)}, {s(sT0)}, 7
        s_min_u32 {s(sT0)}, {s(sT0)}, L_codeend-L_pc-4
        v_mov_b32 v90, {s(sT0)}
        global_load_dword v95, v90, s[12:13]
        """)
    srd(rWS, pWS)
    srdc(rWS, WSN)
    srd(rDBG, pDBG)
    srdc(rDBG, 256)
    srd(rOUT, pOUT)
    srdc(rOUT, 2097152)
    a(f"""
    s_or_b32 {s(sT0)}, s2, {s(sW)}
    s_cbranch_scc1 L_nozero
    v_lshrrev_b32 v90, 1, v6
    v_lshlrev_b32 v90, 8, v90
    v_and_b32 v91, 1, v6
    v_lshl_add_u32 v90, v91, 4, v90
    v_mov_b64 v[16:17], 0
    v_mov_b64 v[18:19], 0
    s_mov_b32 {s(sT0)}, {WS_F}
    buffer_store_dwordx4 v[16:19], v90, {s(rWS,4)}, {s(sT0)} offen sc1
    buffer_store_dwordx4 v[16:19], v90, {s(rWS,4)}, {s(sT0)} offen offset:128 sc1
    """)
    a.label("L_nozero")
    a(f"""
    s_and_b32 {s(sH)}, {s(sW)}, 3
    s_lshr_b32 {s(sTH)}, {s(sW)}, 2
    v_add_u32 {v(vL16H)}, 0x10000, {v(vL16)}
    v_mov_b32 {v(vIDX)}, 0xdddddddd
    s_mov_b32 {s(sVM)}, 0xffff
    s_mov_b32 {s(sVM+1)}, 0xffff
    v_lshrrev_b32 v11, 1, {v(vR)}
    v_xor_b32 v11, v11, {v(vG)}
    v_lshlrev_b32 v11, 4, v11
    v_lshl_add_u32 v11, {v(vR)}, 7, v11
    s_lshl_b32 {s(sT0)}, {s(sTH)}, 12
    s_add_u32 {s(sT0)}, {s(sT0)}, {slot(0)}
    v_add_u32 {v(vXR[0])}, {s(sT0)}, v11
    v_xor_b32 {v(vXR[1])}, 64, {v(vXR[0])}
    v_add_u32 v9, {s(sSTG)}, v11
    v_xor_b32 v10, 64, v9
    v_bfe_u32 v11, v6, 2, 2
    v_lshl_add_u32 v11, {v(vG)}, 3, v11
    v_and_b32 v12, 3, v6
    v_lshlrev_b32 v12, 3, v12
    v_lshl_add_u32 v13, v11, 5, v12
    v_add_u32 v13, {s(sSTG)}, v13
    v_lshl_add_u32 v11, v11, 7, v12
    v_bfe_u32 v12, v6, 3, 2
    v_xor_b32 v12, {s(sH)}, v12
    v_lshl_add_u32 v11, v12, 5, v11
    v_add_u32 {v(vWR)}, {8192 + slot(0)}, v11
    s_lshl1_add_u32 {s(sT0)}, {s(sTB)}, {s(sTH)}
    s_lshl_b32 {s(sT0)}, {s(sT0)}, 5
    s_lshl2_add_u32 {s(sT1)}, {s(sHG)}, {s(sH)}
    s_add_u32 {s(sT0)}, {s(sT0)}, {s(sT1)}
    s_lshl_b32 {s(sOOFF)}, {s(sT0)}, 10
    v_mov_b32 {v(vCA)}, {L_CNT}
    v_add_u32 v11, {s(sSTG)}, {v(vL16)}
    v_lshl_add_u32 v12, v6, 2, {s(sSTG)}
    """)
    for i in range(4):
        a(f"v_mov_b32 {v(vEPS+i)}, {H(f2u(EPS))}")
        a(f"v_mov_b32 {v(ONE+i)}, 0x3f803f80")
    a(f"""
    v_mov_b32 {v(cE)}, {H(f2u(-EPS*LOG2E))}
    v_mov_b32 {v(cE+1)}, {H(f2u(-EPS*LOG2E))}
    s_mov_b32 {s(sCL)}, {H(f2u(LOG2E))}
    s_mov_b32 {s(sCL+1)}, {H(f2u(LOG2E))}
    s_mov_b32 {s(sCQ)}, {H(f2u(QSCALE))}
    s_mov_b32 {s(sCQ+1)}, {H(f2u(QSCALE))}
    v_lshrrev_b32 v90, 1, {v(vG)}
    v_mad_u32_u24 v90, v90, 17, {v(vR)}
    v_and_b32 v91, 1, {v(vG)}
    v_lshlrev_b32 v91, 4, v91
    v_lshl_add_u32 v90, v90, 5, v91
    s_mul_i32 {s(sT0)}, {s(sW)}, 1088
    s_add_u32 {s(sT0)}, {s(sT0)}, {L_SCR}
    v_add_u32 {v(vSCR)}, {s(sT0)}, v90
    s_lshl_b32 {s(sT0)}, {s(sW)}, 10
    s_add_u32 {s(sT0)}, {s(sT0)}, {L_PQ}
    v_add_u32 {v(vPQA)}, {s(sT0)}, {v(vL16)}
    s_lshl1_add_u32 {s(sT1)}, {s(sTB)}, {s(sTH)}
    s_lshl_b32 {s(sT1)}, {s(sT1)}, 7
    s_add_u32 {s(sT1)}, {s(sT1)}, {WS_G}
    v_and_b32 v90, 31, v0
    v_lshl_add_u32 {v(vGA)}, v90, 2, {s(sT1)}
    v_lshlrev_b32 {v(vOA)}, 9, {v(vG)}
    v_lshl_add_u32 {v(vOA)}, {v(vR)}, 4, {v(vOA)}
    s_lshr_b32 {s(sT0)}, {s(sH)}, 1
    s_lshl1_add_u32 {s(sT0)}, {s(sOB_)}, {s(sT0)}
    s_lshl1_add_u32 {s(sT0)}, {s(sT0)}, {s(sTH)}
    s_lshl_b32 {s(sT0)}, {s(sT0)}, 14
    s_and_b32 {s(sT1)}, {s(sH)}, 1
    s_lshl_b32 {s(sT1)}, {s(sT1)}, 8
    s_add_u32 {s(sT10)}, {s(sT0)}, {s(sT1)}
    v_bfe_u32 v90, v0, 2, 2
    v_bfe_u32 v91, v0, 4, 1
    v_lshl_add_u32 v90, v91, 2, v90
    v_bfe_u32 v91, v0, 5, 1
    v_lshl_add_u32 v90, v91, 4, v90
    v_and_b32 v91, 3, v0
    v_lshlrev_b32 v91, 3, v91
    v_lshl_add_u32 v90, v90, 7, v91
    v_bfe_u32 v91, v0, 3, 2
    v_lshl_add_u32 v90, v91, 5, v90
    s_mul_i32 {s(sT0)}, {s(sTH)}, 0x1040
    v_xor_b32 {v(vOW[0])}, {s(sT0)}, v90
    """)
    for i in range(0, 16, 2):
        a(f"v_mov_b64 {v(vVa[0]+i,2)}, 0")
    a("s_mov_b32 exec_lo, 0x00110000\ns_mov_b32 exec_hi, 0x00110000")
    for i in range(0, 16, 2):
        a(f"v_mov_b64 {v(vVa[0]+i,2)}, {v(ONE,2)}")
    a("s_mov_b64 exec, -1")
    a(f"""
    s_or_b32 {s(sT0)}, s2, {s(sW)}
    s_waitcnt vmcnt(0) lgkmcnt(0)
    s_cbranch_scc1 L_nogo0
    s_mov_b64 exec, 1
    buffer_store_dword {v(vIDX)}, off, {s(rDBG,4)}, 0 sc1
    s_mov_b64 exec, -1
    """)
    a.label("L_nogo0")
    stamp("kvloads")
    a(f"""
    ds_read_b128 {v(xk[0],4)}, v9 offset:2048
    ds_read_b128 {v(xk[1],4)}, v10 offset:2048
    ds_read_b64_tr_b16 {v(wk[0],2)}, v13
    ds_read_b64_tr_b16 {v(wk[0]+2,2)}, v13 offset:128
    ds_read_b64_tr_b16 {v(wk[1],2)}, v13 offset:1024
    ds_read_b64_tr_b16 {v(wk[1]+2,2)}, v13 offset:1152
    s_cmp_eq_u32 {s(sT8)}, 0
    s_waitcnt lgkmcnt(4)
    {mf16(dg, gk[0], xk[0], '0')}
    {mf16(dg, gk[1], xk[1], dg)}
    s_waitcnt lgkmcnt(0)
    s_cbranch_scc0 L_isV
    {mf16(dk, wk[0], xk[0], '0')}
    {mf16(dk, wk[1], xk[1], dk)}
    s_branch L_kvj
    """)
    a.label("L_isV")
    a(f"""
    {mf16(dk, xk[0], wk[0], '0')}
    {mf16(dk, xk[1], wk[1], dk)}
    """)
    a.label("L_kvj")
    a(f"""
    s_nop 5
    ds_write_b32 v12, {v(dg)} offset:1024
    s_nop 0
    ds_write_b128 v11, {v(dk,4)}
    s_waitcnt lgkmcnt(0)
    s_barrier
    """)
    stamp("B0")
    stamp("B0c", cyc=True)

    def reads(it):
        L = []
        for ks in range(2):
            b = HB[it % 2] if ks else HA
            L.append(f"ds_read_b128 {v(b,4)}, {v(vXR[ks])}")
            for mt in range(4):
                for u in range(2):
                    L.append(f"ds_read_b64_tr_b16 {v(b+8+4*mt+2*u,2)}, {v(vWR)} offset:{mt*8192+ks*4096+u*512}")
                if mt == 0:
                    L.append(f"ds_read_b128 {v(b+4,4)}, {v(vXR[ks])} offset:2048")
        if o.get('noread') and it > 1:
            return []
        return L

    def mfmas(it, ks):
        b = HB[it % 2] if ks else HA
        x = [b, b + 4]
        W = [b + 8 + 4 * m for m in range(4)]
        f = (it == 0 and ks == 0)
        L = []
        for sub in range(2):
            L.append(mf16(aQA[sub], W[0], x[sub], '0' if f else aQA[sub]))
        for sub in range(2):
            L.append(mf16(aQB[sub], W[1], x[sub], vEPS if f else aQB[sub]))
        for sub in range(2):
            L.append(mf16(aKB[sub], x[sub], W[2], vEPS if f else aKB[sub]))
        for sub in range(2):
            L.append(mf16(aVB[sub], x[sub], W[3], '0' if f else aVB[sub]))
        if o.get('nomfma') and it > 0:
            return ["s_nop 0"] * 8
        return L

    P = 112
    GP = 144
    a(f"s_cmp_eq_u32 {s(sW)}, {o['pub']}\ns_cbranch_scc0 L_nopub")
    a(f"v_add_u32 v11, {STG}, {v(vL16)}\nv_lshlrev_b32 v12, 2, v6\nv_add_u32 v12, {STG}, v12")
    for i in range(8):
        a(f"ds_read_b128 {v(P+4*i,4)}, v11 offset:{4096*i}")
    for i in range(8):
        a(f"ds_read_b32 {v(GP+i)}, v12 offset:{4096*i+1024}")
    a(f"""
    v_lshrrev_b32 v11, 1, {v(vG)}
    v_lshlrev_b32 v11, 9, v11
    v_lshl_add_u32 v11, {v(vR)}, 4, v11
    v_and_b32 v12, 1, {v(vG)}
    v_lshl_add_u32 v11, v12, 3, v11
    s_lshr_b32 {s(sT0)}, {s(sKVT)}, 5
    s_lshl_b32 {s(sT0)}, {s(sT0)}, 11
    s_and_b32 {s(sT1)}, {s(sKVT)}, 16
    s_lshl_b32 {s(sT1)}, {s(sT1)}, 4
    s_add_u32 {s(sT0)}, {s(sT0)}, {s(sT1)}
    s_lshl_b32 {s(sT1)}, {s(sT8)}, 10
    s_add_u32 {s(sT0)}, {s(sT0)}, {s(sT1)}
    s_lshl_b32 {s(sT1)}, {s(sKVT)}, 2
    s_add_u32 {s(sT1)}, {s(sT1)}, {WS_G}
    v_lshlrev_b32 v12, 2, {v(vR)}
    s_waitcnt lgkmcnt(8)
    """)
    for st_ in (4, 8, 16):
        for i in range(0, 32, 2 * st_):
            a(f"v_pk_add_f32 {v(P+i,2)}, {v(P+i,2)}, {v(P+i+st_,2)}")
            a(f"v_pk_add_f32 {v(P+i+2,2)}, {v(P+i+2,2)}, {v(P+i+st_+2,2)}")
    a(f"""
    s_lshl_b32 {s(sT2)}, {s(sT8)}, {VSCALE.bit_length()-1}
    v_ldexp_f32 {v(P)}, {v(P)}, {s(sT2)}
    v_ldexp_f32 {v(P+1)}, {v(P+1)}, {s(sT2)}
    v_ldexp_f32 {v(P+2)}, {v(P+2)}, {s(sT2)}
    v_ldexp_f32 {v(P+3)}, {v(P+3)}, {s(sT2)}
    v_cvt_pk_bf16_f32 v152, {v(P)}, {v(P+1)}
    v_cvt_pk_bf16_f32 v153, {v(P+2)}, {v(P+3)}
    buffer_store_dwordx2 v[152:153], v11, {s(rWS,4)}, {s(sT0)} offen sc1
    s_waitcnt lgkmcnt(0)
    v_pk_add_f32 {v(GP,2)}, {v(GP,2)}, {v(GP+2,2)}
    v_pk_add_f32 {v(GP+4,2)}, {v(GP+4,2)}, {v(GP+6,2)}
    v_pk_add_f32 {v(GP,2)}, {v(GP,2)}, {v(GP+4,2)}
    v_add_f32 {v(GP)}, {v(GP)}, {v(GP+1)}
    v_mul_f32 {v(GP)}, {H(f2u(-LOG2E))}, {v(GP)}
    v_exp_f32 {v(GP)}, {v(GP)}
    s_nop 0
    v_add_f32 {v(GP)}, 1.0, {v(GP)}
    v_rcp_f32 {v(GP)}, {v(GP)}
    s_mov_b64 exec, 0xffff
    buffer_store_dword {v(GP)}, v12, {s(rWS,4)}, {s(sT1)} offen sc1
    s_mov_b64 exec, -1
    buffer_load_dword v11, off, {s(rDBG,4)}, 0 sc1
    s_cmp_lg_u32 {s(sTB)}, 0
    s_cbranch_scc1 L_nopub
    v_mov_b32 v154, 0
    s_lshl_b32 {s(sT1)}, {s(sHG)}, 7
    s_add_u32 {s(sT1)}, {s(sT1)}, {WS_C3}
    s_mov_b64 exec, 1
    buffer_store_dword v154, v154, {s(rWS,4)}, {s(sT1)} offen sc1
    s_mov_b64 exec, -1
    """)
    a.label("L_nopub")
    n1 = o.get('n1', 12)
    nf = o.get('nf', 6)

    def weave(A, B):
        for i, x in enumerate(A):
            a(x)
            if i < nf:
                for ln in B[i * len(B) // nf:(i + 1) * len(B) // nf]:
                    a(ln)

    for ln in reads(0)[:n1]:
        a(ln)

    sig_at = o.get('sig_at', 1)
    for it in range(8):
        n_ = n1 if it < 7 else 20
        a(f"s_waitcnt lgkmcnt({n_-10})")
        weave(mfmas(it, 0), reads(it)[n_:])
        if it < 7:
            d = slot(it + 1) - slot(it)
            op = "v_add_u32" if d > 0 else "v_subrev_u32"
            for r_ in (vXR[0], vXR[1], vWR):
                a(f"{op} {v(r_)}, {abs(d)}, {v(r_)}")
            if it == sig_at:
                a(f"""
                s_cmp_eq_u32 {s(sW)}, {o['pub']}
                s_cbranch_scc0 L_nosig1
                s_mov_b32 {s(sCNT)}, {SPIN}
                """)
                a.label("L_go0")
                a(f"""
                s_waitcnt vmcnt(0)
                v_cmp_ne_u32 vcc, 0, v11
                s_sub_u32 {s(sCNT)}, {s(sCNT)}, 1
                s_cbranch_vccnz L_go0d
                buffer_load_dword v11, off, {s(rDBG,4)}, 0 sc1
                s_cbranch_scc0 L_go0
                """)
                a.label("L_go0d")
                flagaddr()
                a(f"""
                v_mov_b32 v12, 1
                s_mov_b64 exec, 1
                buffer_store_dword v12, off, {s(rWS,4)}, {s(sT0)} sc1
                s_mov_b64 exec, -1
                """)
                a.label("L_nosig1")
            a("s_waitcnt lgkmcnt(0)")
            early = (it == 6 and o.get('early6', 1))
            if early:
                for ln in mfmas(it, 1):
                    a(ln)
            a("s_barrier")
            stamp(f"B{it+1}")
            if it == 6:
                stamp("B7c", cyc=True)
            weave(mfmas(it, 1) if not early else [""] * 8, reads(it + 1)[:n1 if it < 6 else 20])
        else:
            a("s_waitcnt lgkmcnt(0)")
            for ln in mfmas(it, 1):
                a(ln)
    stamp("gemm1")

    def phi(src, dst, tmp):
        for i in range(0, 8, 2):
            a(f"v_pk_fma_f32 {v(tmp+i,2)}, {v(src+i,2)}, {s(sCL,2)}, {v(cE,2)}")
        for i in range(8):
            a(f"v_exp_f32 {v(tmp+i)}, {v(tmp+i)} clamp")
        for i in range(8):
            a(f"v_max_f32 {v(src+i)}, {v(src+i)}, {v(vEPS)}")
        for i in range(0, 8, 2):
            a(f"v_pk_add_f32 {v(src+i,2)}, {v(src+i,2)}, {v(tmp+i,2)}")
        for i in range(4):
            a(f"v_cvt_pk_bf16_f32 {v(dst+i)}, {v(src+2*i)}, {v(src+2*i+1)}")

    PK, VF, TM, DKV, DZ = 56, 60, 64, 72, 76
    a("s_nop 0")
    for i in range(0, 8, 2):
        a(f"v_pk_mul_f32 {v(aQA[0]+i,2)}, {v(aQA[0]+i,2)}, {s(sCQ,2)}")
    for i in range(4):
        a(f"v_cvt_pk_bf16_f32 {v(vQ+i)}, {v(aQA[0]+2*i)}, {v(aQA[0]+2*i+1)}")
    phi(aKB[0], PK, TM)
    for i in range(4):
        a(f"v_cvt_pk_bf16_f32 {v(VF+i)}, {v(aVB[0]+2*i)}, {v(aVB[0]+2*i+1)}")
    a(f"""
    v_permlane16_swap_b32 {v(vQ)}, {v(vQ+2)}
    v_permlane16_swap_b32 {v(vQ+1)}, {v(vQ+3)}
    """)
    a(mf16(DKV, PK, VF, '0'))
    a(mf16(DZ, PK, ONE, '0'))
    phi(aQB[0], vPQ, TM)
    a(f"""
    ds_write_b128 {v(vSCR)}, {v(DKV,4)}
    v_mov_b64 {v(vO,2)}, 0
    v_permlane16_swap_b32 {v(vPQ)}, {v(vPQ+2)}
    v_permlane16_swap_b32 {v(vPQ+1)}, {v(vPQ+3)}
    ds_write_b128 {v(vPQA)}, {v(vPQ,4)}
    s_mov_b32 exec_lo, 0x00010001
    s_mov_b32 exec_hi, 0x00010001
    ds_write_b128 {v(vSCR)}, {v(DZ,4)} offset:512
    s_mov_b64 exec, -1
    """)
    for i in range(2, 10, 2):
        a(f"v_mov_b64 {v(vO+i,2)}, 0")
    a("s_waitcnt lgkmcnt(0)\ns_barrier")
    stamp("X1")

    def tadr(t, off):
        byte = t * 2048 + off
        return (vL16, byte) if byte < 65536 else (vL16H, byte - 65536)

    def rdK(r, t):
        b, off = tadr(t, 0)
        return f"ds_read_b128 {v(r,4)}, {v(b)} offset:{off}"

    def rdV(r, t, blk):
        b, off = tadr(t, 1024 + 256 * blk)
        return f"ds_read_b128 {v(r,4)}, {v(b)} offset:{off}"

    KT = 112
    a("s_setprio 2")
    a(rdK(KT, 0))
    a(rdK(vK[0], 1))
    a(rdK(vK[1], 2))
    a(f"s_mov_b64 exec, {s(sVM,2)}")
    a(rdV(vVa[0], 0, 0))
    a(rdV(vVb[1], 0, 1))
    a(rdV(vVa[1], 1, 0))
    a("s_mov_b64 exec, -1")
    a(f"""
    s_waitcnt lgkmcnt(5)
    {mf32(vS[0], KT, vQ, '0')}
    v_mov_b32 v13, 1
    s_nop 10
    """)

    def rowmax(S, dst, first_):
        if first_:
            a(f"v_max3_f32 {v(dst)}, {v(S)}, {v(S+1)}, {v(S+2)}")
            a(f"v_max3_f32 {v(dst+1)}, {v(S+3)}, {v(S+4)}, {v(S+5)}")
            rest = list(range(6, 16))
        else:
            rest = list(range(16))
        for n, i in enumerate(rest[::2]):
            d = dst + (n % 2)
            a(f"v_max3_f32 {v(d)}, {v(d)}, {v(S+i)}, {v(S+i+1)}")

    def finish_max(dst, margin):
        a(f"""
        v_max_f32 {v(dst)}, {v(dst)}, {v(dst+1)}
        v_mov_b32 {v(dst+1)}, {v(dst)}
        s_nop 1
        v_permlane32_swap_b32 {v(dst)}, {v(dst+1)}
        v_max_f32 {v(dst)}, {v(dst)}, {v(dst+1)}
        v_sub_f32 {v(vNM)}, {H(f2u(-margin))}, {v(dst)}
        v_mov_b32 {v(vNM+1)}, {v(vNM)}
        """)
        for i in range(2, 16, 2):
            a(f"v_mov_b64 {v(vNM+i,2)}, {v(vNM,2)}")

    rowmax(vS[0], 10, True)
    finish_max(10, MARGIN)
    a("s_nop 1")
    a(mf32(vS[0], KT, vQ, vNM))
    a("s_waitcnt lgkmcnt(0)\ns_nop 9")
    stamp("attn0")
    stamp("attn0c", cyc=True)
    a("s_setprio 0")

    def ex(r):
        return f"v_exp_f32 {v(r)}, {v(r)}"

    def block(t, prio):
        b = t % 2
        S, Pn = vS[b], vS[1 - b]
        L = [ex(S)]
        if prio:
            L.append("s_setprio 1")
        if t in o['reb']:
            L += [f"v_frexp_exp_i32_f32 v10, {v(vO+8)}",
                  f"v_sub_u32 v10, {1 - o['X']}, v10",
                  f"v_max_i32 v10, 0xffffff88, v10",
                  f"v_cvt_f32_i32 v11, v10",
                  f"v_add_f32 {v(vNM)}, {v(vNM)}, v11",
                  f"v_ldexp_f32 v10, 1.0, v10",
                  f"v_mov_b32 {v(vNM+1)}, {v(vNM)}",
                  f"v_mov_b32 v11, v10"]
            L += [f"v_mov_b64 {v(vNM+i,2)}, {v(vNM,2)}" for i in range(2, 16, 2)]
        L.append(ex(S + 1))
        if t > 0:
            L.append(smf(vVb[b], Pn + 8))
        L += [ex(S + i) for i in range(2, 5)]
        if t < 63:
            L.append(mf32(Pn, vK[b], vQ, vNM))
        if t - 1 in o['reb']:
            L += [ex(S + i) for i in range(5, 13)]
            L += [f"v_pk_mul_f32 {v(vO+i,2)}, {v(vO+i,2)}, v[10:11]" for i in range(0, 10, 2)]
            L += [ex(S + 13), ex(S + 14), smf(vVa[b], S), ex(S + 15)]
            return L
        L += [ex(S + i) for i in range(5, 10)]
        L.append(smf(vVa[b], S))
        L += [ex(S + i) for i in range(10, 16)]
        return L

    OBF = 112
    OAF = 24
    CKP = [26, 42, 50]

    def load_o(dst, base, frm=0, to=8):
        for i in range(frm, to):
            if i == frm or i % 2 == 0:
                a(f"s_add_u32 {s(sT0)}, {s(sT10)}, {base + 4096*(i//2)}")
            a(f"buffer_load_dwordx4 {v(dst+4*i,4)}, {v(vOA)}, {s(rWS,4)}, {s(sT0)} offen offset:{2048*(i%2)} sc1")

    slow = []

    def flagcheck(name, thr):
        a(f"""
        s_cmp_lt_u32 {s(sT2)}, {thr}
        s_cbranch_scc1 L_spin_{name}
        """)
        a.label(f"L_ok_{name}")
        slow.append((name, thr))

    for t in range(0, 64, 2):
        for ln in block(t, True) + block(t + 1, False):
            a(ln)
        if t in (12, 54):
            a(f"v_readfirstlane_b32 {s(sT2)}, {v(vF)}")
        a("s_setprio 0" if t < 62 else "s_setprio 2")
        if t == 12:
            flagcheck("kv", 4)
        if t == 54:
            flagcheck("s2", 16)
        if t < 62:
            a(f"s_mov_b64 exec, {s(sVM,2)}")
            a(rdV(vVb[0], t + 1, 1))
            a(rdV(vVa[0], t + 2, 0))
            a(rdV(vVb[1], t + 2, 1))
            a(rdV(vVa[1], t + 3, 0))
            a("s_mov_b64 exec, -1")
            a(rdK(vK[0], t + 3))
            if t + 4 < 64:
                a(rdK(vK[1], t + 4))
        else:
            a(f"s_mov_b64 exec, {s(sVM,2)}")
            a(rdV(vVb[0], 63, 1))
            a("s_mov_b64 exec, -1")
        if t == 20:
            a(f"buffer_load_dword {v(vGT)}, {v(vGA)}, {s(rWS,4)}, 0 offen sc1")
        if t in (10, 52):
            a(f"ds_read_b32 {v(vF)}, {v(vCA)}")
        if t in (54, 56, 58, 60):
            k = (t - 54)
            load_o(OBF, WS_OB, k, k + 2)
        a("s_waitcnt lgkmcnt(0)")
        if t in CKP:
            a(f"s_mov_b64 exec, 1\nds_add_u32 {v(vCA)}, v13 offset:{4 + 4*CKP.index(t)}\ns_mov_b64 exec, -1")
    a(smf(vVb[0], vS[1] + 8))
    stamp("attn1c", cyc=True)
    stamp("attn1")
    vRW, vRR, vOUT = 12, 13, 6
    a(f"""
    s_lshl_b32 {s(sT0)}, {s(sW)}, 11
    s_add_u32 {s(sT1)}, {s(sT0)}, {L_RED}
    v_add_u32 {v(vRW)}, {s(sT1)}, {v(vL16)}
    s_xor_b32 {s(sT0)}, {s(sT0)}, 8192
    s_add_u32 {s(sT1)}, {s(sT0)}, {L_RED}
    v_add_u32 {v(vRR)}, {s(sT1)}, {v(vL16)}
    v_bfe_u32 v9, v0, 4, 1
    v_bfe_u32 v10, v0, 5, 1
    v_lshlrev_b32 v9, 5, v9
    v_lshl_add_u32 v9, v10, 4, v9
    v_and_b32 v10, 15, v0
    v_lshl_add_u32 {v(vOUT)}, v10, 10, v9
    """)
    a(f"""
    s_mov_b32 {s(sT2)}, {H(f2u(2.0**-99))}
    v_add_f32 v9, |{v(vO)}|, |{v(vO+1)}|
    v_add_f32 v10, |{v(vO+2)}|, |{v(vO+3)}|
    v_add_f32 v9, v9, |{v(vO+4)}|
    v_add_f32 v10, v10, |{v(vO+5)}|
    v_add_f32 v9, v9, |{v(vO+6)}|
    v_add_f32 v10, v10, |{v(vO+7)}|
    v_add_f32 v9, v9, v10
    v_cmp_gt_f32 {s(sSV,2)}, {s(sT2)}, v9
    v_add_f32 v9, v9, {v(vO+8)}
    v_cmp_ngt_f32 vcc, {H(f2u(2.0**115))}, v9
    s_waitcnt vmcnt(0)
    s_or_b64 vcc, vcc, {s(sSV,2)}
    s_cbranch_vccnz L_fallback
    """)
    a.label("L_norm")
    a(f"""
    v_rcp_f32 v10, {v(vO+8)}
    v_mul_f32 v8, {H(f2u(2.0**-VSCALE))}, {v(vGT)}
    v_mov_b32 v11, v10
    v_mov_b32 v9, v8
    s_add_u32 {s(sT0)}, {s(sOOFF)}, {WS_OA}
    """)
    for i in range(0, 8, 2):
        a(f"v_pk_mul_f32 {v(vO+i,2)}, {v(vO+i,2)}, v[10:11]")
    for i in range(0, 8, 2):
        a(f"v_pk_mul_f32 {v(vO+i,2)}, {v(vO+i,2)}, v[8:9]")
    for i in range(4):
        a(f"v_cvt_pk_bf16_f32 {v(vQ+i)}, {v(vO+2*i)}, {v(vO+2*i+1)}")
    a(f"buffer_store_dwordx4 {v(vQ,4)}, {v(vL16)}, {s(rWS,4)}, {s(sT0)} offen sc1")
    a(f"""
    v_xor_b32 {v(vOW[1])}, 32, {v(vOW[0])}
    v_xor_b32 {v(vOW[2])}, 64, {v(vOW[0])}
    v_xor_b32 {v(vOW[3])}, 0x60, {v(vOW[0])}
    s_barrier
    """)
    stamp("X5")

    acc = [144, 148, 152, 156]
    WR = [56, 72, 88]

    def rdW(st_):
        L = []
        b = wbase(st_)
        if st_ in (8, 13):
            L += [f"v_add_u32 {v(r_)}, 0x10000, {v(r_)}" for r_ in vOW]
        for ct in range(4):
            for u in range(2):
                L.append(f"ds_read_b64_tr_b16 {v(WR[st_%3]+4*ct+2*u,2)}, {v(vOW[ct])} offset:{(b & 0xffff) + 1024*u}")
        return L

    def chk(F, lab):
        a(f"""
        v_max3_u32 v9, {v(F)}, {v(F+1)}, {v(F+2)}
        v_max_u32 v9, v9, {v(F+3)}
        v_cmp_eq_u32 vcc, -1, v9
        s_nop 0
        s_cbranch_vccnz {lab}
        """)

    for ln in rdW(0) + rdW(1):
        a(ln)
    a(f"s_mov_b32 {s(sCNT)}, {SPIN}")
    a.label("L_chkB")
    a(f"v_max3_u32 v9, {v(OBF)}, {v(OBF+1)}, {v(OBF+2)}")
    a(f"v_max_u32 v9, v9, {v(OBF+3)}")
    for i in range(4, 32, 2):
        a(f"v_max3_u32 v9, v9, {v(OBF+i)}, {v(OBF+i+1)}")
    a("v_cmp_eq_u32 vcc, -1, v9\ns_nop 0\ns_cbranch_vccnz L_reB")
    a.label("L_okB")
    nld = 0
    for st_ in range(16):
        F = (OBF if st_ < 8 else OAF) + 4 * (st_ % 8)
        if st_ >= 8:
            a.label(f"L_try{st_}")
            a(f"s_waitcnt vmcnt({15-st_})")
            chk(F, f"L_re{st_}")
            a.label(f"L_go{st_}")
        a(f"s_waitcnt lgkmcnt({8 if st_ < 15 else 0})")
        R_ = rdW(st_ + 2) if st_ + 2 < 16 else []
        for ct in range(4):
            a(mf16(acc[ct], WR[st_ % 3] + 4 * ct, F, '0' if st_ == 0 else acc[ct]))
            for ln in R_[ct * len(R_) // 4:(ct + 1) * len(R_) // 4]:
                a(ln)
        if st_ in o['oa']:
            load_o(OAF, WS_OA, nld, nld + o['oa'][st_])
            nld += o['oa'][st_]
        if st_ == 7:
            stamp("Bpart")
    stamp("outmm")
    a(f"""
    s_lshl_b32 {s(sT0)}, {s(sOB_)}, 16
    s_lshl_b32 {s(sT1)}, {s(sH)}, 14
    s_add_u32 {s(sT0)}, {s(sT0)}, {s(sT1)}
    s_lshl_b32 {s(sT1)}, {s(sOC)}, 7
    s_add_u32 {s(sT0)}, {s(sT0)}, {s(sT1)}
    s_lshl_b32 {s(sT1)}, {s(sTH)}, 6
    s_add_u32 {s(sT0)}, {s(sT0)}, {s(sT1)}
    ds_write_b128 {v(vRW)}, {v(acc[2],4)}
    ds_write_b128 {v(vRW)}, {v(acc[3],4)} offset:1024
    s_waitcnt lgkmcnt(0)
    s_barrier
    ds_read_b128 v[24:27], {v(vRR)}
    ds_read_b128 v[28:31], {v(vRR)} offset:1024
    s_waitcnt lgkmcnt(0)
    """)
    for i in range(0, 8, 2):
        a(f"v_pk_add_f32 {v(acc[0]+i,2)}, {v(acc[0]+i,2)}, {v(24+i,2)}")
    for i in range(4):
        a(f"v_cvt_pk_bf16_f32 {v(32+i)}, {v(acc[0]+2*i)}, {v(acc[0]+2*i+1)}")
    a(f"""
    s_nop 0
    v_permlane16_swap_b32 v32, v34
    v_permlane16_swap_b32 v33, v35
    buffer_store_dwordx4 v[32:35], {v(vOUT)}, {s(rOUT,4)}, {s(sT0)} offen {o['outmod']}
    """)
    if diag:
        a("s_waitcnt vmcnt(0)")
        stamp("end")
        a(f"v_writelane_b32 {v(vST)}, {s(sCNT)}, 63")
        dump()
    if o.get('probe') and not o['probe'].startswith('H'):
        pad()
    a.label("L_end")
    a("s_endpgm")

    a.label("L_reB")
    load_o(OBF, WS_OB)
    a(f"""
    s_sub_u32 {s(sCNT)}, {s(sCNT)}, 1
    s_cmp_eq_u32 {s(sCNT)}, 0
    s_waitcnt vmcnt(0)
    s_cbranch_scc0 L_chkB
    s_branch L_okB
    """)
    for st_ in range(8, 16):
        a.label(f"L_re{st_}")
        a(f"""
        s_cmp_eq_u32 {s(sCNT)}, 0
        s_cbranch_scc1 L_go{st_}
        s_sub_u32 {s(sCNT)}, {s(sCNT)}, 1
        s_waitcnt vmcnt(0)
        """)
        load_o(OAF, WS_OA, st_ - 8, 8)
        a(f"s_branch L_try{st_}")
    for name, thr in slow:
        a.label(f"L_spin_{name}")
        a(f"s_mov_b32 {s(sCNT)}, {SPIN*16}")
        a.label(f"L_spin2_{name}")
        a(f"""
        ds_read_b32 {v(vF)}, {v(vCA)}
        s_sub_u32 {s(sCNT)}, {s(sCNT)}, 1
        s_cmp_eq_u32 {s(sCNT)}, 0
        s_cbranch_scc1 L_ok_{name}
        s_waitcnt lgkmcnt(0)
        v_readfirstlane_b32 {s(sT2)}, {v(vF)}
        s_nop 0
        s_cmp_lt_u32 {s(sT2)}, {thr}
        s_cbranch_scc1 L_spin2_{name}
        s_branch L_ok_{name}
        """)

    a.label("L_fallback")
    a.c("true row max, then the same accumulation, K/V read from the global image")
    a(f"""
    v_mov_b32 v10, 0xff800000
    v_mov_b32 v11, 0xff800000
    s_mov_b32 {s(sT0)}, 0
    """)
    a.label("L_fb1")
    a(f"""
    buffer_load_dwordx4 {v(vK[0],4)}, {v(vL16)}, {s(rWS,4)}, {s(sT0)} offen sc1
    s_waitcnt vmcnt(0)
    {mf32(vS[0], vK[0], vQ, '0')}
    s_nop 11
    """)
    rowmax(vS[0], 10, False)
    a(f"""
    s_add_u32 {s(sT0)}, {s(sT0)}, 2048
    s_cmp_lt_u32 {s(sT0)}, 131072
    s_cbranch_scc1 L_fb1
    """)
    finish_max(10, 0.0)
    for i in range(0, 16, 2):
        a(f"v_mov_b64 {v(vO+i,2)}, 0")
    a(f"s_mov_b32 {s(sT0)}, 0")
    a.label("L_fb2")
    a(f"""
    buffer_load_dwordx4 {v(vK[0],4)}, {v(vL16)}, {s(rWS,4)}, {s(sT0)} offen sc1
    s_mov_b64 exec, {s(sVM,2)}
    buffer_load_dwordx4 {v(vVa[0],4)}, {v(vL16)}, {s(rWS,4)}, {s(sT0)} offen offset:1024 sc1
    buffer_load_dwordx4 {v(vVb[0],4)}, {v(vL16)}, {s(rWS,4)}, {s(sT0)} offen offset:1280 sc1
    s_mov_b64 exec, -1
    s_waitcnt vmcnt(0)
    {mf32(vS[0], vK[0], vQ, vNM)}
    s_nop 11
    """)
    for i in range(16):
        a(ex(vS[0] + i))
    a(f"""
    s_nop 1
    {smf(vVa[0], vS[0])}
    {smf(vVb[0], vS[0]+8)}
    s_add_u32 {s(sT0)}, {s(sT0)}, 2048
    s_cmp_lt_u32 {s(sT0)}, 131072
    s_nop 7
    s_cbranch_scc1 L_fb2
    s_nop 15
    s_branch L_norm
    """)

    a(".p2align 6")
    a.label("L_helper")
    hX0, hX1 = 16, 17
    hW = [18, 19, 20, 21]
    a(f"""
    s_sub_u32 {s(sI)}, {s(sW)}, 8
    s_lshl{1 if nb != 1 else 2}_add_u32 {s(sCH)}, {s(sT3 if nb < 3 else sT2)}, {s(sT2 if nb < 3 else sT3)}
    {f's_add_u32 {s(sCH)}, {s(sT3)}, {s(sT2)}' if o.get('G', 8) < 8 else ''}
    s_and_b32 {s(sCH)}, {s(sCH)}, {o.get('rotmask', 7) & (o.get('G', 8) - 1)}
    s_lshl2_add_u32 {s(sT8)}, {s(sTB)}, {s(sI)}
    s_lshl_b32 {s(sT8)}, {s(sT8)}, 14
    v_add_u32 {v(hX0)}, {s(sT8)}, v10
    v_xor_b32 {v(hX1)}, 64, {v(hX0)}
    v_add_u32 {v(hX1)}, 7168, {v(hX1)}
    s_max_u32 {s(sT0)}, {s(sI)}, 1
    s_sub_u32 {s(sT0)}, {s(sT0)}, 1
    s_lshl_b32 {s(sT1)}, {s(sI)}, 2
    s_lshr_b32 {s(sT1)}, {(xq << 4) + (xk_ << 8) + (xk_ << 12)}, {s(sT1)}
    s_and_b32 {s(sT1)}, {s(sT1)}, 7
    s_xor_b32 {s(sT1)}, {s(sT1)}, {s(sHG)}
    s_lshl3_add_u32 {s(sT0)}, {s(sT0)}, {s(sT1)}
    s_lshl_b32 {s(sT0)}, {s(sT0)}, 7
    s_lshl_b32 {s(sT9)}, {s(sI)}, 11
    s_lshl_b32 {s(sT10)}, {s(sI)}, 13
    s_mov_b32 {s(rW1+3)}, 0x20000
    s_cmp_eq_u32 {s(sI)}, 0
    s_cselect_b32 {s(sSTR)}, 1, 3
    s_lshl_b32 {s(rW1+2)}, {s(sSTR)}, 19
    s_lshl_b32 {s(sWSTEP)}, {s(sSTR)}, 15
    s_lshl_b32 {s(sSTR)}, {s(sSTR)}, 10
    v_bfe_u32 v9, v6, 4, 1
    v_lshlrev_b32 v9, 1, v9
    v_xor_b32 v9, v9, v11
    v_lshl_add_u32 v9, v9, 4, {s(sT0)}
    v_mad_u32_u24 {v(hW[0])}, v12, {s(sSTR)}, v9
    s_lshl_b32 {s(sT1)}, {s(sSTR)}, 3
    s_sub_u32 {s(sT1)}, {s(sT1)}, 1024
    v_xor_b32 {v(hW[1])}, 64, {v(hW[0])}
    v_add_u32 {v(hW[1])}, {s(sT1)}, {v(hW[1])}
    s_lshl_b32 {s(sT1)}, {s(sT1)}, 1
    v_add_u32 {v(hW[2])}, {s(sT1)}, {v(hW[0])}
    v_add_u32 {v(hW[3])}, {s(sT1)}, {v(hW[1])}
    s_cmp_eq_u32 {s(sI)}, 0
    s_waitcnt lgkmcnt(0)
    s_cselect_b32 {s(rW1)}, {s(pWQ)}, {s(pWQKV)}
    s_cselect_b32 {s(rW1+1)}, {s(pWQ+1)}, {s(pWQKV+1)}
    """)
    srd(rX, pX)
    if o.get('probe'):
        a("s_mov_b32 s14, s88")

    def dma_chunk(it):
        sl = slot(it)
        a(f"""
        s_lshl_b32 {s(sOX)}, {s(sCH)}, 7
        s_add_u32 m0, {s(sT9)}, {sl}
        s_lshl_b32 {s(sOW)}, {s(sCH)}, 1
        buffer_load_dwordx4 {v(hX0)}, {s(rX,4)}, {s(sOX)} offen {o['dm']} lds
        buffer_load_dwordx4 {v(hX1)}, {s(rX,4)}, {s(sOX)} offen offset:1024 {o['dm']} lds
        s_add_u32 m0, {s(sT10)}, {sl+8192}
        s_mul_i32 {s(sOW)}, {s(sOW)}, {s(sWSTEP)}
        """)
        for i in range(4):
            a(f"buffer_load_dwordx4 {v(hW[i])}, {s(rW1,4)}, {s(sOW)} offen offset:{1024*i} {o['dm']} lds")
        a(f"""
        s_add_u32 m0, {s(sT10)}, {sl+8192+4096}
        s_add_u32 {s(sOW)}, {s(sOW)}, {s(sWSTEP)}
        """)
        for i in range(4):
            a(f"buffer_load_dwordx4 {v(hW[i])}, {s(rW1,4)}, {s(sOW)} offen offset:{1024*i} {o['dm']} lds")
        G_ = o.get('G', 8)
        a(f"s_add_u32 {s(sCH)}, {s(sCH)}, 1\ns_and_b32 {s(sCH)}, {s(sCH)}, {G_ - 1}")
        if G_ < 8:
            a(f"s_or_b32 {s(sCH)}, {s(sCH)}, {((it + 1) // G_ * G_) & 7}")

    stamp("Hstart")
    dma_chunk(0)
    a(f"""
    v_mov_b32 {v(vCA)}, {L_CNT}
    v_mov_b64 v[28:29], 0
    v_mov_b64 v[30:31], 0
    ds_write_b128 {v(vCA)}, v[28:31]
    s_xor_b32 {s(sHK)}, {s(sHG)}, {xk_}
    s_xor_b32 {s(sHQ)}, {s(sHG)}, {xq}
    """)
    srd(rWS, pWS)
    srdc(rWS, WSN)
    srd(rDBG, pDBG)
    srdc(rDBG, 256)
    srd(rWO, pWO)
    srdc(rWO, 524288)
    srd(rBWO, pBWO)
    srdc(rBWO, 524288)
    dma_chunk(1)
    hPA, hPV = 24, 25
    a(f"""
    v_lshrrev_b32 {v(hPA)}, 1, v6
    v_lshlrev_b32 {v(hPA)}, 8, {v(hPA)}
    v_and_b32 v22, 1, v6
    v_lshl_add_u32 {v(hPA)}, v22, 4, {v(hPA)}
    v_add_u32 {v(hPA)}, {WS_F}, {v(hPA)}
    s_waitcnt vmcnt(10) lgkmcnt(0)
    s_barrier
    """)
    for it in range(7):
        if it + 2 <= 7:
            dma_chunk(it + 2)
            a("s_waitcnt vmcnt(10)")
        else:
            a(f"buffer_load_dwordx4 v[100:103], {v(hPA)}, {s(rWS,4)}, 0 offen sc1")
            a("s_waitcnt vmcnt(1)")
        a("s_barrier")
    a(f"s_setprio {o['hprio']}")

    def gpoll(name, addr, off, thr, pre=False, sleep=0, r=rDBG):
        a(f"s_mov_b32 {s(sCNT)}, {SPIN}")
        if pre:
            a(f"s_branch L_gc_{name}")
        a.label(f"L_gp_{name}")
        if sleep:
            a(f"s_sleep {sleep}")
        a(f"""
        buffer_load_dword{'x4 v[100:103]' if thr == 1 else ' ' + v(hPV)}, {v(addr)}, {s(r,4)}, 0 offen offset:{off} sc1
        s_sub_u32 {s(sCNT)}, {s(sCNT)}, 1
        s_cmp_eq_u32 {s(sCNT)}, 0
        s_cbranch_scc1 L_gd_{name}
        """)
        a.label(f"L_gc_{name}")
        a(f"""
        s_waitcnt vmcnt(0)
        {f'v_min3_u32 {v(hPV)}, v100, v101, v102' if thr == 1 else ''}
        {f'v_min_u32 {v(hPV)}, {v(hPV)}, v103' if thr == 1 else ''}
        v_cmp_gt_u32 vcc, {thr}, {v(hPV)}
        s_nop 0
        s_cbranch_vccnz L_gp_{name}
        """)
        a.label(f"L_gd_{name}")

    def lpoll(name, off, thr):
        a(f"s_mov_b32 {s(sCNT)}, {SPIN*4}")
        a.label(f"L_lp_{name}")
        a(f"""
        s_sleep {o.get('lsl', 16)}
        ds_read_b32 v9, {v(vCA)} offset:{off}
        s_sub_u32 {s(sCNT)}, {s(sCNT)}, 1
        s_cmp_eq_u32 {s(sCNT)}, 0
        s_cbranch_scc1 L_lp_{name}d
        s_waitcnt lgkmcnt(0)
        v_readfirstlane_b32 {s(sT1)}, v9
        s_nop 0
        s_cmp_lt_u32 {s(sT1)}, {thr}
        s_cbranch_scc1 L_lp_{name}
        """)
        a.label(f"L_lp_{name}d")

    gpoll("s1", hPA, 0, 1, pre=True, sleep=2, r=rWS)
    stamp("Hs1")

    def kv_group(G):
        a(f"s_add_u32 {s(sT0)}, {s(sT8)}, {16384*G}\ns_mov_b32 m0, {s(sT0)}\ns_nop 0")
        for i in range(4):
            a(f"buffer_load_dwordx4 {v(vL16)}, {s(rWS,4)}, {s(sT0)} offen offset:{1024*i} sc1 lds")

    a(f"s_lshl_b32 {s(sT8)}, {s(sI)}, 12")
    npre = o.get('npre', 2)
    for G in range(npre):
        kv_group(G)
    hA, hB = 26, 27
    a(f"""
    s_mul_i32 {s(sT0)}, {s(sI)}, 1088
    s_add_u32 {s(sT0)}, {s(sT0)}, {L_SCR}
    v_add_u32 {v(hA)}, {s(sT0)}, {v(vL16)}
    s_lshl_b32 {s(sT0)}, {s(sI)}, 10
    s_add_u32 {s(sT0)}, {s(sT0)}, {L_PQ}
    v_add_u32 {v(hB)}, {s(sT0)}, {v(vL16)}
    v_mov_b64 v[28:29], -1
    v_mov_b64 v[30:31], -1
    v_and_b32 v9, 31, v6
    v_lshlrev_b32 v9, 2, v9
    s_waitcnt vmcnt({4*(npre-2)})
    s_barrier
    """)
    stamp("HX1")
    hPQ = [32, 36]
    hS = [40, 44, 48, 52]
    hG = [56, 57]
    a(f"""
    ds_read_b128 {v(hS[0],4)}, {v(hA)}
    ds_read_b128 {v(hS[1],4)}, {v(hA)} offset:4352
    ds_read_b128 {v(hS[2],4)}, {v(hA)} offset:1024
    ds_read_b128 {v(hS[3],4)}, {v(hA)} offset:5376
    ds_read_b128 {v(hPQ[0],4)}, {v(hB)}
    ds_read_b128 {v(hPQ[1],4)}, {v(hB)} offset:4096
    """)
    for G in range(npre, 8):
        kv_group(G)
    a(f"""
    s_lshl_b32 {s(sT0)}, {s(sTB)}, 8
    s_add_u32 {s(sT0)}, {s(sT0)}, {WS_G}
    buffer_load_dword {v(hG[0])}, v9, {s(rWS,4)}, {s(sT0)} offen sc1
    buffer_load_dword {v(hG[1])}, v9, {s(rWS,4)}, {s(sT0)} offen offset:128 sc1
    s_lshl_b32 {s(sT0)}, {s(sTB)}, 6
    s_lshl2_add_u32 {s(sT1)}, {s(sHG)}, {s(sI)}
    s_add_u32 {s(sT0)}, {s(sT0)}, {s(sT1)}
    s_lshl_b32 {s(sOOFF)}, {s(sT0)}, 10
    """)
    for base in (WS_OA, WS_OA + 32768, WS_OB, WS_OB + 32768):
        if base == WS_OB:
            a(f"s_xor_b32 {s(sOOFF)}, {s(sOOFF)}, {4096*xq}")
        a(f"s_add_u32 {s(sT0)}, {s(sOOFF)}, {base}")
        a(f"buffer_store_dwordx4 v[28:31], {v(vL16)}, {s(rWS,4)}, {s(sT0)} offen sc1")
    a(f"""
    s_lshl_b32 {s(sT0)}, {s(sHK)}, 5
    s_add_u32 {s(sT0)}, {s(sT0)}, {s(sTB)}
    s_lshl2_add_u32 {s(sT0)}, {s(sT0)}, {s(sI)}
    s_mul_i32 {s(sT0)}, {s(sT0)}, 1088
    s_add_u32 {s(sT0)}, {s(sT0)}, {WS_KVP}
    s_waitcnt lgkmcnt(0)
    v_pk_add_f32 {v(hS[0],2)}, {v(hS[0],2)}, {v(hS[1],2)}
    v_pk_add_f32 {v(hS[0]+2,2)}, {v(hS[0]+2,2)}, {v(hS[1]+2,2)}
    v_pk_add_f32 {v(hS[2],2)}, {v(hS[2],2)}, {v(hS[3],2)}
    v_pk_add_f32 {v(hS[2]+2,2)}, {v(hS[2]+2,2)}, {v(hS[3]+2,2)}
    v_mov_b32 v10, 1
    v_mov_b32 v11, 0
    buffer_store_dwordx4 {v(hS[0],4)}, {v(vL16)}, {s(rWS,4)}, {s(sT0)} offen sc1
    s_mov_b64 exec, 15
    buffer_store_dwordx4 {v(hS[2],4)}, {v(vL16)}, {s(rWS,4)}, {s(sT0)} offen offset:1024 sc1
    s_mov_b64 exec, 1
    s_waitcnt vmcnt(0)
    ds_add_rtn_u32 v12, {v(vCA)}, v10
    """)
    flagaddr()
    a(f"""
    s_waitcnt lgkmcnt(0)
    v_readfirstlane_b32 {s(sT1)}, v12
    s_nop 0
    s_cmp_eq_u32 {s(sT1)}, 3
    s_cbranch_scc0 L_nosig2
    buffer_store_dword v10, off, {s(rWS,4)}, {s(sT0)} offset:128 sc1
    """)
    a.label("L_nosig2")
    a("s_mov_b64 exec, -1")
    stamp("Hkv")
    hP3 = 26
    a(f"""
    s_cmp_eq_u32 {s(sI)}, 0
    s_cbranch_scc0 L_nol1
    s_sleep {o.get('sl2a', 48)}
    """)
    gpoll("s2", hPA, 128, 1, sleep=o.get('sl2', 16), r=rWS)
    stamp("Hs2")
    PL = 64
    a(f"""
    v_mov_b32 v12, 16
    v_and_b32 v13, 31, v6
    v_lshrrev_b32 v14, 5, v6
    s_mov_b64 exec, 1
    ds_add_u32 {v(vCA)}, v12
    s_mov_b32 exec_lo, 0x1ffff
    s_mov_b32 exec_hi, 0x1ffff
    v_mul_u32_u24 v14, {16*4352}, v14
    v_lshl_add_u32 v14, v13, 3, v14
    s_mul_i32 {s(sT0)}, {s(sHK)}, {32*4352}
    s_mul_i32 {s(sT1)}, {s(sTB)}, 136
    s_add_u32 {s(sT0)}, {s(sT0)}, {s(sT1)}
    s_add_u32 {s(sT0)}, {s(sT0)}, {WS_KVP}
    """)
    for p in range(16):
        a(f"buffer_load_dwordx2 {v(PL+2*p,2)}, v14, {s(rWS,4)}, {s(sT0)} offen sc1")
        if p < 15:
            a(f"s_add_u32 {s(sT0)}, {s(sT0)}, 4352")
    a(f"""
    s_mul_i32 {s(sT0)}, {s(sHK)}, 2176
    s_mul_i32 {s(sT1)}, {s(sTB)}, 68
    s_add_u32 {s(sT0)}, {s(sT0)}, {s(sT1)}
    s_add_u32 {s(sT0)}, {s(sT0)}, {WS_KVF}
    s_mov_b64 exec, -1
    s_waitcnt vmcnt(0)
    """)
    for st_ in (2, 4, 8, 16):
        for i in range(0, 32, 2 * st_):
            a(f"v_pk_add_f32 {v(PL+i,2)}, {v(PL+i,2)}, {v(PL+i+st_,2)}")
    a(f"""
    v_mov_b64 {v(PL+2,2)}, {v(PL,2)}
    v_lshlrev_b32 v13, 2, v13
    s_nop 0
    v_permlane32_swap_b32 {v(PL)}, {v(PL+2)}
    v_permlane32_swap_b32 {v(PL+1)}, {v(PL+3)}
    v_pk_add_f32 {v(PL,2)}, {v(PL,2)}, {v(PL+2,2)}
    v_cvt_pk_bf16_f32 {v(PL)}, {v(PL)}, {v(PL+1)}
    s_mov_b64 exec, 0x1ffff
    buffer_store_dword {v(PL)}, v13, {s(rWS,4)}, {s(sT0)} offen sc1
    s_mov_b64 exec, 1
    s_lshl_b32 {s(sT0)}, {s(sHK)}, 7
    s_add_u32 {s(sT0)}, {s(sT0)}, {WS_C3}
    s_waitcnt vmcnt(0)
    buffer_atomic_add v10, v11, {s(rWS,4)}, {s(sT0)} offen sc1
    s_mov_b64 exec, -1
    s_lshl_b32 {s(sT0)}, {s(sHQ)}, 7
    s_add_u32 {s(sT0)}, {s(sT0)}, {WS_C3}
    v_mov_b32 {v(hP3)}, {s(sT0)}
    s_sleep {o.get('sl3a', 32)}
    """)
    gpoll("s3", hP3, 0, 32, sleep=o.get('sl3', 16), r=rWS)
    a(f"s_mov_b64 exec, 1\nds_add_u32 {v(vCA)}, v12\ns_mov_b64 exec, -1\ns_branch L_lp_s3d")
    a.label("L_nol1")
    lpoll("s3", 0, 32)
    stamp("Hs3")
    KF = 60
    DB = [64, 80]
    hOW = [26, 27]
    a(f"""
    v_and_b32 v9, 31, v6
    v_min_u32 v9, 16, v9
    v_lshrrev_b32 v12, 5, v6
    v_mad_u32_u24 v9, v12, 17, v9
    v_lshlrev_b32 v9, 4, v9
    s_lshl2_add_u32 {s(sT0)}, {s(sHQ)}, {s(sI)}
    s_mul_i32 {s(sT0)}, {s(sT0)}, 544
    s_add_u32 {s(sT0)}, {s(sT0)}, {WS_KVF}
    buffer_load_dwordx4 {v(KF,4)}, v9, {s(rWS,4)}, {s(sT0)} offen sc1
    v_lshlrev_b32 v9, 1, {v(vG)}
    v_and_b32 v12, 7, v6
    v_xor_b32 v9, v9, v12
    v_lshlrev_b32 v9, 4, v9
    v_lshrrev_b32 v12, 3, v6
    v_lshl_add_u32 v9, v12, 10, v9
    s_lshr_b32 {s(sT0)}, {s(sI)}, 1
    s_lshl_b32 {s(sT0)}, {s(sT0)}, 18
    s_and_b32 {s(sT1)}, {s(sI)}, 1
    s_lshl_b32 {s(sT1)}, {s(sT1)}, 14
    s_add_u32 {s(sT0)}, {s(sT0)}, {s(sT1)}
    s_lshl_b32 {s(sT1)}, {s(sOC)}, 7
    s_add_u32 {s(sT0)}, {s(sT0)}, {s(sT1)}
    v_add_u32 {v(hOW[0])}, {s(sT0)}, v9
    v_add_u32 {v(hOW[1])}, 7168, {v(hOW[0])}
    s_waitcnt vmcnt(0)
    {mf32(DB[0], KF, hPQ[0], '0')}
    {mf32(DB[1], KF, hPQ[1], '0')}
    """)

    def dma_w(st_):
        r = rBWO if st_ < 8 else rWO
        a(f"""
        s_add_u32 m0, {s(sT9)}, {wbase(st_)}
        s_mov_b32 {s(sT0)}, {(st_ % 8) * 32768}
        buffer_load_dwordx4 {v(hOW[0])}, {s(r,4)}, {s(sT0)} offen lds
        buffer_load_dwordx4 {v(hOW[1])}, {s(r,4)}, {s(sT0)} offen offset:1024 lds
        """)

    for st_ in (13, 14, 15):
        dma_w(st_)
    for th in range(2):
        D = DB[th]
        a(f"""
        v_add_f32 v12, {H(f2u(EPS))}, {v(D+8)}
        v_rcp_f32 v12, v12
        v_sub_f32 v9, 1.0, {v(hG[th])}
        v_mul_f32 v12, v12, v9
        v_mov_b32 v13, v12
        """)
        for i in range(0, 8, 2):
            a(f"v_pk_mul_f32 {v(D+i,2)}, {v(D+i,2)}, v[12:13]")
        for i in range(4):
            a(f"v_cvt_pk_bf16_f32 {v(D+8+i)}, {v(D+2*i)}, {v(D+2*i+1)}")
        a(f"""
        s_add_u32 {s(sT0)}, {s(sOOFF)}, {WS_OB + 32768*th}
        buffer_store_dwordx4 {v(D+8,4)}, {v(vL16)}, {s(rWS,4)}, {s(sT0)} offen sc1
        """)
    stamp("HoB")
    for n_, (lo, hi) in enumerate([(0, 7), (7, 11), (11, 13)]):
        lpoll(f"prog{n_}", 4 + 4 * n_, 8)
        if n_ == 2:
            stamp("Hprog")
        for st_ in range(lo, hi):
            dma_w(st_)
    a("s_waitcnt vmcnt(0)")
    stamp("Hw")
    a("s_barrier")
    dump()
    if o.get('probe', '').startswith('H'):
        a("s_barrier")
        pad()
    a("s_endpgm")
    a.label("L_codeend")
    return a


HEADER = open('cdna_kernels/' + NAME + '.s.ref').read().split('; Override launch geometry')[0]


def wrap(a):
    k = NAME + '_kernel'
    return (HEADER + f"; @launch grid=(256,1,1) block=(768,1,1) lds={LDS_BYTES}\n"
            + f""".amdgcn_target "amdgcn-amd-amdhsa--gfx950"
.text
.globl {k}
.p2align 8
.type {k},@function
{k}:
""" + a.text() + f""".section .rodata,"a"
.p2align 6
.amdhsa_kernel {k}
  .amdhsa_next_free_vgpr {NVGPR}
  .amdhsa_next_free_sgpr 102
  .amdhsa_accum_offset {NVGPR}
  .amdhsa_group_segment_fixed_size 0
  .amdhsa_kernarg_size 96
  .amdhsa_user_sgpr_count 2
  .amdhsa_user_sgpr_kernarg_segment_ptr 1
  .amdhsa_system_sgpr_workgroup_id_x 1
.end_amdhsa_kernel
""")


if __name__ == '__main__':
    import argparse, json
    ap = argparse.ArgumentParser()
    ap.add_argument('out')
    ap.add_argument('--diag', action='store_true')
    ap.add_argument('--opts', default='{}')
    args = ap.parse_args()
    a = gen(args.diag, json.loads(args.opts))
    bad = check(a.lines)
    for b in bad:
        print("HAZARD need", b[0], "have", b[1], "|", b[2], "->", b[3])
    open(args.out, 'w').write(wrap(a))
    print("written", args.out, len(a.lines), "lines")
```

```python
import sys, struct
sys.path.insert(0, 'gen')
from asmlib import *

NAME = 'gated_mix__grouped_kv_mqa__linear_attn_block__prompt'


def f2u(x):
    return struct.unpack('<I', struct.pack('<f', x))[0]


def H(x):
    return f"0x{x & 0xffffffff:08x}"


WS_KV = 0
WS_G = 0x20000
WS_KVF = 0x22000
WS_C3 = 0x27000
WS_KVP = 0x28000
WS_F = 0x140000
WS_OA = 0x200000
WS_OB = 0x400000
WS_WT = 0x700000
WS_SIZE = 0x800000
WS_DIAG = 0x600000
SLOT = 40960
STG = 122880
MISC = 131072
L_SCR = MISC
L_PQ = MISC + 8704
L_TS = MISC + 20480
L_CNT = 163776
L_RED = 106496
LDS_BYTES = 163840
sW = 3
pX, pWQ, pWK, pWV, pWO, pBX, pWQKV, pBWO, pGATE, pOUT, pDBG, pWS = 4, 6, 8, 10, 12, 14, 16, 18, 20, 22, 24, 26
rX, rW1, rWKV, rGATE, rWS, rDBG, rOUT, rWO, rBWO = 28, 32, 36, 40, 44, 48, 52, 56, 60
sTB, sHG, sCH, sWSTEP, sOX, sOW, sI = 64, 65, 66, 67, 68, 69, 70
sT0, sT1, sT2, sT3, sKVT, sT5, sT6, sSTR, sT8 = 71, 72, 73, 74, 75, 76, 77, 78, 79
sVM = 80
sCNT = 82
sOOFF = 83
sOB_, sOC = 84, 85
sSV = 86
sST = 88
sH, sTH = 90, 91
sT9, sT10 = 92, 93
sSTG = 94
vL16, vL16H, vIDX, vGT = 1, 2, 3, 4
vQ, vPQ = 16, 20
vNM, vO = 24, 40
vS = [56, 72]
vK = [88, 92]
vVa = [96, 104]
vVb = [100, 108]
vST = 15
aQA, aQB, aKB, aVB = [24, 28], [32, 36], [40, 44], [48, 52]
HA, HB = 56, [112, 136]
vEPS, ONE, cE = 80, 84, 88
vXR = [160, 161]
vWR = 162
vCA, vF = 163, 164
vOA, vSCR, vPQA, vGA = 5, 165, 166, 167
vOW = [14, 160, 161]
sCL, sCQ = 96, 98
sC272 = 100
sHK, sHQ = 100, 101
vR, vG = 7, 8
NVGPR = 168

LOG2E = 1.4426950408889634
QSCALE = 0.25 * LOG2E
EPS = 1e-6
VSCALE = 32
SPIN = 1 << 16


def gen(diag=False, opts=None):
    o = dict(pub=7, hprio=3, X=94, reb=[8], oa={4: 2, 5: 2, 6: 2, 7: 2}, pf=1, outmod='sc1', nox5=0, vb63=1, dm='')
    if opts:
        o.update(opts)
    o['oa'] = {int(k_): v_ for k_, v_ in o['oa'].items()}
    MARGIN = float(o['X'])
    nb = o.get('nb', 2)
    xq, xk_ = o.get('xq', 1), o.get('xk', 2)
    a = Asm()
    nst = [0]

    def stamp(name, cyc=False):
        if o.get('probe') == name:
            a(f"s_memrealtime {s(sST,2)}\ns_waitcnt lgkmcnt(0)\ns_mov_b32 s95, {s(sST)}")
        if not diag or name in o.get('nostamp', ['B1', 'B2', 'B3', 'B4', 'B5', 'B6']):
            return
        k = nst[0]
        nst[0] += 1
        a.c(f"stamp {k} {name}")
        a(f"{'s_memtime' if cyc else 's_memrealtime'} {s(sST,2)}")
        a("s_waitcnt lgkmcnt(0)")
        a(f"v_writelane_b32 {v(vST)}, {s(sST)}, {k}")

    def dump():
        if diag:
            a(f"""
            s_mul_i32 {s(sT0)}, s2, 12
            s_add_u32 {s(sT0)}, {s(sT0)}, {s(sW)}
            s_lshl_b32 {s(sT0)}, {s(sT0)}, 8
            s_add_u32 {s(sT0)}, {s(sT0)}, {WS_DIAG}
            v_lshrrev_b32 v5, 2, {v(vL16)}
            buffer_store_dword {v(vST)}, v5, {s(rWS,4)}, {s(sT0)} offen
            """)

    def pad():
        a("s_waitcnt vmcnt(0)")
        stamp("end")
        if o['probe'] == 'none':
            a("s_mov_b32 s95, s14")
        a(f"""
        s_sub_u32 s95, s95, s14
        s_mul_i32 s95, s95, {o.get('mult', 10)}
        s_add_u32 s95, s95, 6000
        """)
        a.label("L_pad")
        a(f"""
        s_memrealtime {s(sST,2)}
        s_waitcnt lgkmcnt(0)
        s_sub_u32 {s(sST)}, {s(sST)}, s14
        s_cmp_lt_u32 {s(sST)}, s95
        s_cbranch_scc1 L_pad
        """)

    def flagaddr():
        a(f"""
        s_lshr_b32 {s(sT0)}, s2, 3
        s_lshl_b32 {s(sT0)}, {s(sT0)}, 8
        s_and_b32 {s(sT1)}, s2, 7
        s_lshl2_add_u32 {s(sT0)}, {s(sT1)}, {s(sT0)}
        s_add_u32 {s(sT0)}, {s(sT0)}, {WS_F}
        """)

    def srd(r, p):
        a(f"s_mov_b32 {s(r)}, {s(p)}\ns_mov_b32 {s(r+1)}, {s(p+1)}")

    def srdc(r, n):
        a(f"s_mov_b32 {s(r+2)}, {n}\ns_mov_b32 {s(r+3)}, 0x20000")

    def mf16(d, A, B, C):
        C = C if isinstance(C, str) else v(C, 4)
        return f"v_mfma_f32_16x16x32_bf16 {v(d,4)}, {v(A,4)}, {v(B,4)}, {C}"

    def mf32(d, A, B, C):
        C = C if isinstance(C, str) else v(C, 16)
        return f"v_mfma_f32_32x32x16_bf16 {v(d,16)}, {v(A,4)}, {v(B,4)}, {C}"

    def smf(A, B):
        return f"v_smfmac_f32_32x32x32_bf16 {v(vO,16)}, {v(A,4)}, {v(B,8)}, {v(vIDX)}"

    def slot(it):
        return ((it + 1) % 3) * SLOT

    def wbase(st_):
        return 8192 * st_ if st_ <= 12 else MISC + 8192 * (st_ - 13)

    WSN = WS_SIZE

    a(f"""
    s_cmp_ge_u32 s2, 256
    s_cbranch_scc1 L_end
    {'s_memrealtime s[88:89]' if o.get('probe') else ''}
    s_load_dwordx16 s[4:19], s[0:1], 0
    s_load_dwordx8 s[20:27], s[0:1], 64
    v_lshrrev_b32 v5, 6, v0
    v_and_b32 v6, 63, v0
    v_readfirstlane_b32 {s(sW)}, v5
    v_lshlrev_b32 {v(vL16)}, 4, v6
    s_and_b32 {s(sT0)}, s2, 7
    s_lshr_b32 {s(sT2)}, s2, {3+nb}
    s_bfe_u32 {s(sT3)}, s2, {(nb << 16) + 3}
    s_lshr_b32 {s(sTB)}, {s(sT0)}, {3-nb}
    s_lshl{5-nb}_add_u32 {s(sTB)}, {s(sTB)}, {s(sT2)}
    s_and_b32 {s(sHG)}, {s(sT0)}, {(1 << (3-nb)) - 1}
    s_lshl{nb}_add_u32 {s(sHG)}, {s(sHG)}, {s(sT3)}
    s_lshr_b32 {s(sT1)}, s2, 6
    s_lshl2_add_u32 {s(sOB_)}, {s(sT0)}, {s(sT1)}
    s_bfe_u32 {s(sOC)}, s2, 0x30003
    v_lshrrev_b32 {v(vG)}, 4, v6
    v_and_b32 v11, 7, v6
    v_xor_b32 v10, v11, {v(vG)}
    v_lshlrev_b32 v10, 4, v10
    v_lshrrev_b32 v12, 3, v6
    v_lshl_add_u32 v10, v12, 10, v10
    """)
    if diag:
        a(f"v_mov_b32 {v(vST)}, 0")
    srdc(rX, 2097152)
    a(f"s_cmp_ge_u32 {s(sW)}, 8\ns_cbranch_scc1 L_helper")

    a(f"""
    s_lshr_b32 {s(sKVT)}, {s(sHG)}, 1
    s_lshl2_add_u32 {s(sKVT)}, {s(sTB)}, {s(sKVT)}
    s_lshl_b32 {s(sKVT)}, {s(sKVT)}, 4
    s_lshl_b32 {s(sT6)}, {s(sW)}, 7
    s_lshl_b32 {s(sT5)}, {s(sKVT)}, 10
    s_add_u32 {s(sT5)}, {s(sT5)}, {s(sT6)}
    s_lshl_b32 {s(sT9)}, {s(sW)}, 11
    s_lshl_b32 {s(sSTG)}, {s(sW)}, 12
    s_add_u32 {s(sSTG)}, {s(sSTG)}, {STG}
    s_mov_b32 m0, {s(sSTG)}
    v_xor_b32 v11, 64, v10
    v_add_u32 v11, 7168, v11
    v_lshlrev_b32 v9, 4, {v(vG)}
    v_and_b32 {v(vR)}, 15, v0
    s_and_b32 {s(sT8)}, {s(sHG)}, 1
    """)
    srdc(rWKV, 16384)
    srdc(rGATE, 1024)
    a(f"""
    s_cmp_eq_u32 {s(sT8)}, 0
    s_waitcnt lgkmcnt(0)
    s_cselect_b32 {s(rWKV)}, {s(pWK)}, {s(pWV)}
    s_cselect_b32 {s(rWKV+1)}, {s(pWK+1)}, {s(pWV+1)}
    """)
    srd(rX, pX)
    if o.get('probe'):
        a("s_mov_b32 s14, s88")
    xk = [56, 60]
    gk = [64, 68]
    wk = [72, 76]
    dk, dg = 24, 28
    a(f"""
    buffer_load_dwordx4 {v(vL16)}, {s(rWKV,4)}, {s(sT9)} offen lds
    buffer_load_dwordx4 {v(vL16)}, {s(rWKV,4)}, {s(sT9)} offen offset:1024 lds
    s_add_u32 m0, {s(sSTG)}, 2048
    """)
    srd(rGATE, pGATE)
    a(f"""
    buffer_load_dwordx4 v10, {s(rX,4)}, {s(sT5)} offen lds
    buffer_load_dwordx4 v11, {s(rX,4)}, {s(sT5)} offen offset:1024 lds
    buffer_load_dwordx4 {v(gk[0],4)}, v9, {s(rGATE,4)}, {s(sT6)} offen
    buffer_load_dwordx4 {v(gk[1],4)}, v9, {s(rGATE,4)}, {s(sT6)} offen offset:64
    """)
    stamp("start")
    if o['pf']:
        a("s_getpc_b64 s[12:13]")
        a.label("L_pc")
        a(f"""
        s_and_b32 {s(sT0)}, s2, 0xf8
        s_add_u32 {s(sT0)}, {s(sT0)}, {s(sW)}
        s_lshl_b32 {s(sT0)}, {s(sT0)}, 7
        s_min_u32 {s(sT0)}, {s(sT0)}, L_codeend-L_pc-4
        v_mov_b32 v90, {s(sT0)}
        global_load_dword v95, v90, s[12:13]
        """)
    srd(rWS, pWS)
    srdc(rWS, WSN)
    srd(rDBG, pDBG)
    srdc(rDBG, 256)
    srd(rOUT, pOUT)
    srdc(rOUT, 2097152)
    a(f"""
    s_or_b32 {s(sT0)}, s2, {s(sW)}
    s_cbranch_scc1 L_nozero
    v_lshrrev_b32 v90, 1, v6
    v_lshlrev_b32 v90, 8, v90
    v_and_b32 v91, 1, v6
    v_lshl_add_u32 v90, v91, 4, v90
    v_mov_b64 v[16:17], 0
    v_mov_b64 v[18:19], 0
    s_mov_b32 {s(sT0)}, {WS_F}
    buffer_store_dwordx4 v[16:19], v90, {s(rWS,4)}, {s(sT0)} offen sc1
    buffer_store_dwordx4 v[16:19], v90, {s(rWS,4)}, {s(sT0)} offen offset:128 sc1
    """)
    a.label("L_nozero")
    a(f"""
    s_and_b32 {s(sH)}, {s(sW)}, 3
    s_lshr_b32 {s(sTH)}, {s(sW)}, 2
    v_add_u32 {v(vL16H)}, 0x10000, {v(vL16)}
    v_mov_b32 {v(vIDX)}, 0xdddddddd
    s_mov_b32 {s(sVM)}, 0xffff
    s_mov_b32 {s(sVM+1)}, 0xffff
    v_lshrrev_b32 v11, 1, {v(vR)}
    v_xor_b32 v11, v11, {v(vG)}
    v_lshlrev_b32 v11, 4, v11
    v_lshl_add_u32 v11, {v(vR)}, 7, v11
    s_lshl_b32 {s(sT0)}, {s(sTH)}, 12
    s_add_u32 {s(sT0)}, {s(sT0)}, {slot(0)}
    v_add_u32 {v(vXR[0])}, {s(sT0)}, v11
    v_xor_b32 {v(vXR[1])}, 64, {v(vXR[0])}
    v_add_u32 v9, {s(sSTG)}, v11
    v_xor_b32 v10, 64, v9
    v_bfe_u32 v11, v6, 2, 2
    v_lshl_add_u32 v11, {v(vG)}, 3, v11
    v_and_b32 v12, 3, v6
    v_lshlrev_b32 v12, 3, v12
    v_lshl_add_u32 v13, v11, 5, v12
    v_add_u32 v13, {s(sSTG)}, v13
    v_lshl_add_u32 v11, v11, 7, v12
    v_bfe_u32 v12, v6, 3, 2
    v_xor_b32 v12, {s(sH)}, v12
    v_lshl_add_u32 v11, v12, 5, v11
    v_add_u32 {v(vWR)}, {8192 + slot(0)}, v11
    s_lshl1_add_u32 {s(sT0)}, {s(sTB)}, {s(sTH)}
    s_lshl_b32 {s(sT0)}, {s(sT0)}, 5
    s_lshl2_add_u32 {s(sT1)}, {s(sHG)}, {s(sH)}
    s_add_u32 {s(sT0)}, {s(sT0)}, {s(sT1)}
    s_lshl_b32 {s(sOOFF)}, {s(sT0)}, 10
    v_mov_b32 {v(vCA)}, {L_CNT}
    v_add_u32 v11, {s(sSTG)}, {v(vL16)}
    v_lshl_add_u32 v12, v6, 2, {s(sSTG)}
    """)
    for i in range(4):
        a(f"v_mov_b32 {v(vEPS+i)}, {H(f2u(EPS))}")
        a(f"v_mov_b32 {v(ONE+i)}, 0x3f803f80")
    a(f"""
    v_mov_b32 {v(cE)}, {H(f2u(-EPS*LOG2E))}
    v_mov_b32 {v(cE+1)}, {H(f2u(-EPS*LOG2E))}
    s_mov_b32 {s(sC272)}, 272
    s_mov_b32 {s(sCL)}, {H(f2u(LOG2E))}
    s_mov_b32 {s(sCL+1)}, {H(f2u(LOG2E))}
    s_mov_b32 {s(sCQ)}, {H(f2u(QSCALE))}
    s_mov_b32 {s(sCQ+1)}, {H(f2u(QSCALE))}
    v_lshrrev_b32 v90, 1, {v(vG)}
    v_mad_u32_u24 v90, v90, 17, {v(vR)}
    v_and_b32 v91, 1, {v(vG)}
    v_lshlrev_b32 v91, 4, v91
    v_lshl_add_u32 v90, v90, 5, v91
    s_mul_i32 {s(sT0)}, {s(sW)}, 1088
    s_add_u32 {s(sT0)}, {s(sT0)}, {L_SCR}
    v_add_u32 {v(vSCR)}, {s(sT0)}, v90
    s_lshl_b32 {s(sT0)}, {s(sW)}, 10
    s_add_u32 {s(sT0)}, {s(sT0)}, {L_PQ}
    v_add_u32 {v(vPQA)}, {s(sT0)}, {v(vL16)}
    s_lshl1_add_u32 {s(sT1)}, {s(sTB)}, {s(sTH)}
    s_lshl_b32 {s(sT1)}, {s(sT1)}, 7
    s_add_u32 {s(sT1)}, {s(sT1)}, {WS_G}
    v_and_b32 v90, 31, v0
    v_lshl_add_u32 {v(vGA)}, v90, 2, {s(sT1)}
    v_lshlrev_b32 {v(vOA)}, 9, {v(vG)}
    v_lshl_add_u32 {v(vOA)}, {v(vR)}, 4, {v(vOA)}
    s_lshr_b32 {s(sT0)}, {s(sH)}, 1
    s_lshl1_add_u32 {s(sT0)}, {s(sOB_)}, {s(sT0)}
    s_lshl1_add_u32 {s(sT0)}, {s(sT0)}, {s(sTH)}
    s_lshl_b32 {s(sT0)}, {s(sT0)}, 14
    s_and_b32 {s(sT1)}, {s(sH)}, 1
    s_lshl_b32 {s(sT1)}, {s(sT1)}, 8
    s_add_u32 {s(sT10)}, {s(sT0)}, {s(sT1)}
    s_lshl_b32 {s(sT0)}, {s(sTH)}, 12
    v_add_u32 {v(vOW[0])}, {s(sT0)}, {v(vL16)}
    """)
    for i in range(0, 16, 2):
        a(f"v_mov_b64 {v(vVa[0]+i,2)}, 0")
    a("s_mov_b32 exec_lo, 0x00110000\ns_mov_b32 exec_hi, 0x00110000")
    for i in range(0, 16, 2):
        a(f"v_mov_b64 {v(vVa[0]+i,2)}, {v(ONE,2)}")
    a("s_mov_b64 exec, -1")
    a(f"""
    s_or_b32 {s(sT0)}, s2, {s(sW)}
    s_waitcnt vmcnt(0) lgkmcnt(0)
    s_cbranch_scc1 L_nogo0
    s_mov_b64 exec, 1
    buffer_store_dword {v(vIDX)}, off, {s(rDBG,4)}, 0 sc1
    s_mov_b64 exec, -1
    """)
    a.label("L_nogo0")
    stamp("kvloads")
    a(f"""
    ds_read_b128 {v(xk[0],4)}, v9 offset:2048
    ds_read_b128 {v(xk[1],4)}, v10 offset:2048
    ds_read_b64_tr_b16 {v(wk[0],2)}, v13
    ds_read_b64_tr_b16 {v(wk[0]+2,2)}, v13 offset:128
    ds_read_b64_tr_b16 {v(wk[1],2)}, v13 offset:1024
    ds_read_b64_tr_b16 {v(wk[1]+2,2)}, v13 offset:1152
    s_cmp_eq_u32 {s(sT8)}, 0
    s_waitcnt lgkmcnt(4)
    {mf16(dg, gk[0], xk[0], '0')}
    {mf16(dg, gk[1], xk[1], dg)}
    s_waitcnt lgkmcnt(0)
    s_cbranch_scc0 L_isV
    {mf16(dk, wk[0], xk[0], '0')}
    {mf16(dk, wk[1], xk[1], dk)}
    s_branch L_kvj
    """)
    a.label("L_isV")
    a(f"""
    {mf16(dk, xk[0], wk[0], '0')}
    {mf16(dk, xk[1], wk[1], dk)}
    """)
    a.label("L_kvj")
    a(f"""
    s_nop 5
    ds_write_b32 v12, {v(dg)} offset:1024
    s_nop 0
    ds_write_b128 v11, {v(dk,4)}
    s_waitcnt lgkmcnt(0)
    s_barrier
    """)
    stamp("B0")
    stamp("B0c", cyc=True)

    def reads(it):
        L = []
        for ks in range(2):
            b = HB[it % 2] if ks else HA
            L.append(f"ds_read_b128 {v(b,4)}, {v(vXR[ks])}")
            for mt in range(4):
                for u in range(2):
                    L.append(f"ds_read_b64_tr_b16 {v(b+8+4*mt+2*u,2)}, {v(vWR)} offset:{mt*8192+ks*4096+u*512}")
                if mt == 0:
                    L.append(f"ds_read_b128 {v(b+4,4)}, {v(vXR[ks])} offset:2048")
        if o.get('noread') and it > 1:
            return []
        return L

    def mfmas(it, ks):
        b = HB[it % 2] if ks else HA
        x = [b, b + 4]
        W = [b + 8 + 4 * m for m in range(4)]
        f = (it == 0 and ks == 0)
        L = []
        for sub in range(2):
            L.append(mf16(aQA[sub], W[0], x[sub], '0' if f else aQA[sub]))
        for sub in range(2):
            L.append(mf16(aQB[sub], W[1], x[sub], vEPS if f else aQB[sub]))
        for sub in range(2):
            L.append(mf16(aKB[sub], x[sub], W[2], vEPS if f else aKB[sub]))
        for sub in range(2):
            L.append(mf16(aVB[sub], x[sub], W[3], '0' if f else aVB[sub]))
        if o.get('nomfma') and it > 0:
            return ["s_nop 0"] * 8
        return L

    P = 112
    GP = 144
    a(f"s_cmp_eq_u32 {s(sW)}, {o['pub']}\ns_cbranch_scc0 L_nopub")
    a(f"v_add_u32 v11, {STG}, {v(vL16)}\nv_lshlrev_b32 v12, 2, v6\nv_add_u32 v12, {STG}, v12")
    for i in range(8):
        a(f"ds_read_b128 {v(P+4*i,4)}, v11 offset:{4096*i}")
    for i in range(8):
        a(f"ds_read_b32 {v(GP+i)}, v12 offset:{4096*i+1024}")
    a(f"""
    v_lshrrev_b32 v11, 1, {v(vG)}
    v_lshlrev_b32 v11, 9, v11
    v_lshl_add_u32 v11, {v(vR)}, 4, v11
    v_and_b32 v12, 1, {v(vG)}
    v_lshl_add_u32 v11, v12, 3, v11
    s_lshr_b32 {s(sT0)}, {s(sKVT)}, 5
    s_lshl_b32 {s(sT0)}, {s(sT0)}, 11
    s_and_b32 {s(sT1)}, {s(sKVT)}, 16
    s_lshl_b32 {s(sT1)}, {s(sT1)}, 4
    s_add_u32 {s(sT0)}, {s(sT0)}, {s(sT1)}
    s_lshl_b32 {s(sT1)}, {s(sT8)}, 10
    s_add_u32 {s(sT0)}, {s(sT0)}, {s(sT1)}
    s_lshl_b32 {s(sT1)}, {s(sKVT)}, 2
    s_add_u32 {s(sT1)}, {s(sT1)}, {WS_G}
    v_lshlrev_b32 v12, 2, {v(vR)}
    s_waitcnt lgkmcnt(8)
    """)
    for st_ in (4, 8, 16):
        for i in range(0, 32, 2 * st_):
            a(f"v_pk_add_f32 {v(P+i,2)}, {v(P+i,2)}, {v(P+i+st_,2)}")
            a(f"v_pk_add_f32 {v(P+i+2,2)}, {v(P+i+2,2)}, {v(P+i+st_+2,2)}")
    a(f"""
    s_lshl_b32 {s(sT2)}, {s(sT8)}, {VSCALE.bit_length()-1}
    v_ldexp_f32 {v(P)}, {v(P)}, {s(sT2)}
    v_ldexp_f32 {v(P+1)}, {v(P+1)}, {s(sT2)}
    v_ldexp_f32 {v(P+2)}, {v(P+2)}, {s(sT2)}
    v_ldexp_f32 {v(P+3)}, {v(P+3)}, {s(sT2)}
    v_cvt_pk_bf16_f32 v152, {v(P)}, {v(P+1)}
    v_cvt_pk_bf16_f32 v153, {v(P+2)}, {v(P+3)}
    buffer_store_dwordx2 v[152:153], v11, {s(rWS,4)}, {s(sT0)} offen sc1
    s_waitcnt lgkmcnt(0)
    v_pk_add_f32 {v(GP,2)}, {v(GP,2)}, {v(GP+2,2)}
    v_pk_add_f32 {v(GP+4,2)}, {v(GP+4,2)}, {v(GP+6,2)}
    v_pk_add_f32 {v(GP,2)}, {v(GP,2)}, {v(GP+4,2)}
    v_add_f32 {v(GP)}, {v(GP)}, {v(GP+1)}
    v_mul_f32 {v(GP)}, {H(f2u(-LOG2E))}, {v(GP)}
    v_exp_f32 {v(GP)}, {v(GP)}
    s_nop 0
    v_add_f32 {v(GP)}, 1.0, {v(GP)}
    v_rcp_f32 {v(GP)}, {v(GP)}
    s_mov_b64 exec, 0xffff
    buffer_store_dword {v(GP)}, v12, {s(rWS,4)}, {s(sT1)} offen sc1
    s_mov_b64 exec, -1
    buffer_load_dword v11, off, {s(rDBG,4)}, 0 sc1
    s_cmp_lg_u32 {s(sTB)}, 0
    s_cbranch_scc1 L_nopub
    v_mov_b32 v154, 0
    s_lshl_b32 {s(sT1)}, {s(sHG)}, 7
    s_add_u32 {s(sT1)}, {s(sT1)}, {WS_C3}
    s_mov_b64 exec, 1
    buffer_store_dword v154, v154, {s(rWS,4)}, {s(sT1)} offen sc1
    s_mov_b64 exec, -1
    """)
    a.label("L_nopub")
    n1 = o.get('n1', 12)
    nf = o.get('nf', 6)

    def weave(A, B):
        for i, x in enumerate(A):
            a(x)
            if i < nf:
                for ln in B[i * len(B) // nf:(i + 1) * len(B) // nf]:
                    a(ln)

    for ln in reads(0)[:n1]:
        a(ln)

    sig_at = o.get('sig_at', 1)
    for it in range(8):
        n_ = n1 if it < 7 else 20
        a(f"s_waitcnt lgkmcnt({n_-10})")
        weave(mfmas(it, 0), reads(it)[n_:])
        if it < 7:
            d = slot(it + 1) - slot(it)
            op = "v_add_u32" if d > 0 else "v_subrev_u32"
            for r_ in (vXR[0], vXR[1], vWR):
                a(f"{op} {v(r_)}, {abs(d)}, {v(r_)}")
            if it == sig_at:
                a(f"""
                s_cmp_eq_u32 {s(sW)}, {o['pub']}
                s_cbranch_scc0 L_nosig1
                s_mov_b32 {s(sCNT)}, {SPIN}
                """)
                a.label("L_go0")
                a(f"""
                s_waitcnt vmcnt(0)
                v_cmp_ne_u32 vcc, 0, v11
                s_sub_u32 {s(sCNT)}, {s(sCNT)}, 1
                s_cbranch_vccnz L_go0d
                buffer_load_dword v11, off, {s(rDBG,4)}, 0 sc1
                s_cbranch_scc0 L_go0
                """)
                a.label("L_go0d")
                flagaddr()
                a(f"""
                v_mov_b32 v12, 1
                s_mov_b64 exec, 1
                buffer_store_dword v12, off, {s(rWS,4)}, {s(sT0)} sc1
                s_mov_b64 exec, -1
                """)
                a.label("L_nosig1")
            a("s_waitcnt lgkmcnt(0)")
            early = (it == 6 and o.get('early6', 1))
            if early:
                for ln in mfmas(it, 1):
                    a(ln)
            a("s_barrier")
            stamp(f"B{it+1}")
            if it == 6:
                stamp("B7c", cyc=True)
            weave(mfmas(it, 1) if not early else [""] * 8, reads(it + 1)[:n1 if it < 6 else 20])
        else:
            a("s_waitcnt lgkmcnt(0)")
            for ln in mfmas(it, 1):
                a(ln)
    stamp("gemm1")

    def phi(src, dst, tmp):
        for i in range(0, 8, 2):
            a(f"v_pk_fma_f32 {v(tmp+i,2)}, {v(src+i,2)}, {s(sCL,2)}, {v(cE,2)}")
        for i in range(8):
            a(f"v_exp_f32 {v(tmp+i)}, {v(tmp+i)} clamp")
        for i in range(8):
            a(f"v_max_f32 {v(src+i)}, {v(src+i)}, {v(vEPS)}")
        for i in range(0, 8, 2):
            a(f"v_pk_add_f32 {v(src+i,2)}, {v(src+i,2)}, {v(tmp+i,2)}")
        for i in range(4):
            a(f"v_cvt_pk_bf16_f32 {v(dst+i)}, {v(src+2*i)}, {v(src+2*i+1)}")

    PK, VF, TM, DKV, DZ = 56, 60, 64, 72, 76
    a("s_nop 0")
    for i in range(0, 8, 2):
        a(f"v_pk_mul_f32 {v(aQA[0]+i,2)}, {v(aQA[0]+i,2)}, {s(sCQ,2)}")
    for i in range(4):
        a(f"v_cvt_pk_bf16_f32 {v(vQ+i)}, {v(aQA[0]+2*i)}, {v(aQA[0]+2*i+1)}")
    phi(aKB[0], PK, TM)
    for i in range(4):
        a(f"v_cvt_pk_bf16_f32 {v(VF+i)}, {v(aVB[0]+2*i)}, {v(aVB[0]+2*i+1)}")
    a(f"""
    v_permlane16_swap_b32 {v(vQ)}, {v(vQ+2)}
    v_permlane16_swap_b32 {v(vQ+1)}, {v(vQ+3)}
    """)
    a(mf16(DKV, PK, VF, '0'))
    a(mf16(DZ, PK, ONE, '0'))
    phi(aQB[0], vPQ, TM)
    a(f"""
    ds_write_b128 {v(vSCR)}, {v(DKV,4)}
    v_mov_b64 {v(vO,2)}, 0
    v_permlane16_swap_b32 {v(vPQ)}, {v(vPQ+2)}
    v_permlane16_swap_b32 {v(vPQ+1)}, {v(vPQ+3)}
    ds_write_b128 {v(vPQA)}, {v(vPQ,4)}
    s_mov_b32 exec_lo, 0x00010001
    s_mov_b32 exec_hi, 0x00010001
    ds_write_b128 {v(vSCR)}, {v(DZ,4)} offset:512
    s_mov_b64 exec, -1
    """)
    for i in range(2, 10, 2):
        a(f"v_mov_b64 {v(vO+i,2)}, 0")
    a("s_waitcnt lgkmcnt(0)\ns_barrier")
    stamp("X1")

    def tadr(t, off):
        byte = t * 2048 + off
        return (vL16, byte) if byte < 65536 else (vL16H, byte - 65536)

    def rdK(r, t):
        b, off = tadr(t, 0)
        return f"ds_read_b128 {v(r,4)}, {v(b)} offset:{off}"

    def rdV(r, t, blk):
        b, off = tadr(t, 1024 + 256 * blk)
        return f"ds_read_b128 {v(r,4)}, {v(b)} offset:{off}"

    KT = 112
    a("s_setprio 2")
    a(rdK(KT, 0))
    a(rdK(vK[0], 1))
    a(rdK(vK[1], 2))
    a(f"s_mov_b64 exec, {s(sVM,2)}")
    a(rdV(vVa[0], 0, 0))
    a(rdV(vVb[1], 0, 1))
    a(rdV(vVa[1], 1, 0))
    a("s_mov_b64 exec, -1")
    a(f"""
    s_waitcnt lgkmcnt(5)
    {mf32(vS[0], KT, vQ, '0')}
    v_mov_b32 v13, 1
    s_nop 10
    """)

    def rowmax(S, dst, first_):
        if first_:
            a(f"v_max3_f32 {v(dst)}, {v(S)}, {v(S+1)}, {v(S+2)}")
            a(f"v_max3_f32 {v(dst+1)}, {v(S+3)}, {v(S+4)}, {v(S+5)}")
            rest = list(range(6, 16))
        else:
            rest = list(range(16))
        for n, i in enumerate(rest[::2]):
            d = dst + (n % 2)
            a(f"v_max3_f32 {v(d)}, {v(d)}, {v(S+i)}, {v(S+i+1)}")

    def finish_max(dst, margin):
        a(f"""
        v_max_f32 {v(dst)}, {v(dst)}, {v(dst+1)}
        v_mov_b32 {v(dst+1)}, {v(dst)}
        s_nop 1
        v_permlane32_swap_b32 {v(dst)}, {v(dst+1)}
        v_max_f32 {v(dst)}, {v(dst)}, {v(dst+1)}
        v_sub_f32 {v(vNM)}, {H(f2u(-margin))}, {v(dst)}
        v_mov_b32 {v(vNM+1)}, {v(vNM)}
        """)
        for i in range(2, 16, 2):
            a(f"v_mov_b64 {v(vNM+i,2)}, {v(vNM,2)}")

    rowmax(vS[0], 10, True)
    finish_max(10, MARGIN)
    a("s_nop 1")
    a(mf32(vS[0], KT, vQ, vNM))
    a("s_waitcnt lgkmcnt(0)\ns_nop 9")
    stamp("attn0")
    stamp("attn0c", cyc=True)
    if 'al' in o:
        a(".p2align 3")
        a("s_nop 0\n" * o['al'])
    a("s_setprio 0")

    def ex(r):
        return f"v_exp_f32 {v(r)}, {v(r)}"

    def block(t, prio):
        b = t % 2
        S, Pn = vS[b], vS[1 - b]
        L = [ex(S)]
        if prio:
            L.append("s_setprio 1")
        if t in o['reb']:
            L += [f"v_frexp_exp_i32_f32 v10, {v(vO+8)}",
                  f"v_sub_u32 v10, {1 - o['X']}, v10",
                  f"v_max_i32 v10, 0xffffff88, v10",
                  f"v_cvt_f32_i32 v11, v10",
                  f"v_add_f32 {v(vNM)}, {v(vNM)}, v11",
                  f"v_ldexp_f32 v10, 1.0, v10",
                  f"v_mov_b32 {v(vNM+1)}, {v(vNM)}",
                  f"v_mov_b32 v11, v10"]
            L += [f"v_mov_b64 {v(vNM+i,2)}, {v(vNM,2)}" for i in range(2, 16, 2)]
        L.append(ex(S + 1))
        if t > 0:
            L.append(smf(vVb[b], Pn + 8))
        L += [ex(S + i) for i in range(2, 5)]
        if t < 63:
            L.append(mf32(Pn, vK[b], vQ, vNM))
        if t - 1 in o['reb']:
            L += [ex(S + i) for i in range(5, 13)]
            L += [f"v_pk_mul_f32 {v(vO+i,2)}, {v(vO+i,2)}, v[10:11]" for i in range(0, 10, 2)]
            L += [ex(S + 13), ex(S + 14), smf(vVa[b], S), ex(S + 15)]
            return L
        L += [ex(S + i) for i in range(5, 10)]
        L.append(smf(vVa[b], S))
        L += [ex(S + i) for i in range(10, 16)]
        return L

    OBF = 112
    OAF = 24
    CKP = [26, 42, 50]

    def load_o(dst, base, frm=0, to=8):
        for i in range(frm, to):
            if i == frm or i % 2 == 0:
                a(f"s_add_u32 {s(sT0)}, {s(sT10)}, {base + 4096*(i//2)}")
            a(f"buffer_load_dwordx4 {v(dst+4*i,4)}, {v(vOA)}, {s(rWS,4)}, {s(sT0)} offen offset:{2048*(i%2)} sc1")

    slow = []

    def flagcheck(name, thr, off=0):
        a(f"""
        s_cmp_lt_u32 {s(sT2)}, {thr}
        s_cbranch_scc1 L_spin_{name}
        """)
        a.label(f"L_ok_{name}")
        slow.append((name, thr, off))

    for t in range(0, 64, 2):
        B_ = block(t, True) + block(t + 1, False)
        if t == 62 and o['vb63']:
            B_[4:4] = [f"s_mov_b64 exec, {s(sVM,2)}", rdV(vVb[0], 63, 1), "s_mov_b64 exec, -1"]
        for ln in B_:
            a(ln)
        if t in (12, 28, 54):
            a(f"v_readfirstlane_b32 {s(sT2)}, {v(vF)}")
        a("s_setprio 0" if t < 62 else "s_setprio 2")
        if t == 12:
            flagcheck("kv", 4, 20)
        if t == 28:
            flagcheck("kv2", 4)
        if t == 54:
            flagcheck("s2", 16)

        if t < 62:
            a(f"s_mov_b64 exec, {s(sVM,2)}")
            a(rdV(vVb[0], t + 1, 1))
            a(rdV(vVa[0], t + 2, 0))
            a(rdV(vVb[1], t + 2, 1))
            a(rdV(vVa[1], t + 3, 0))
            a("s_mov_b64 exec, -1")
            a(rdK(vK[0], t + 3))
            if t + 4 < 64:
                a(rdK(vK[1], t + 4))
        elif not o['vb63']:
            a(f"s_mov_b64 exec, {s(sVM,2)}")
            a(rdV(vVb[0], 63, 1))
            a("s_mov_b64 exec, -1")
        if t == 20:
            a(f"buffer_load_dword {v(vGT)}, {v(vGA)}, {s(rWS,4)}, 0 offen sc1")
        if t in (10, 26, 52):
            a(f"ds_read_b32 {v(vF)}, {v(vCA)} offset:{20 if t == 10 else 0}")
        if t == 60 and o['nox5']:
            a(f"ds_read_b32 {v(vF)}, {v(vCA)} offset:16")
        if t in (54, 56, 58, 60):
            k = (t - 54)
            load_o(OBF, WS_OB, k, k + 2)
        a("s_waitcnt lgkmcnt(0)")
        if t in CKP:
            a(f"s_mov_b64 exec, 1\nds_add_u32 {v(vCA)}, v13 offset:{4 + 4*CKP.index(t)}\ns_mov_b64 exec, -1")
    a(smf(vVb[0], vS[1] + 8))
    stamp("attn1c", cyc=True)
    stamp("attn1")
    vRW, vRR, vOUT = 12, 13, 6
    a(f"""
    s_lshl1_add_u32 {s(sT0)}, {s(sH)}, {s(sTH)}
    s_mul_i32 {s(sT0)}, {s(sT0)}, {16*272}
    v_bfe_u32 v9, v0, 4, 1
    v_bfe_u32 v10, v0, 5, 1
    v_lshl_add_u32 v9, v9, 3, v10
    v_lshl_add_u32 v9, v9, 4, {s(sT0)}
    v_mad_u32_u24 {v(vRW)}, {v(vR)}, {s(sC272)}, v9
    s_lshl2_add_u32 {s(sT0)}, {s(sH)}, {s(sTH)}
    s_mul_i32 {s(sT0)}, {s(sT0)}, {8*272}
    v_bfe_u32 v9, v0, 3, 3
    v_and_b32 v10, 7, v0
    v_lshlrev_b32 v10, 4, v10
    v_lshl_add_u32 {v(vOUT)}, v9, 10, v10
    v_mad_u32_u24 v9, v9, {s(sC272)}, v10
    v_add_u32 {v(vRR)}, {s(sT0)}, v9
    """)
    a(f"""
    s_mov_b32 {s(sT2)}, {H(f2u(2.0**-99))}
    v_add_f32 v9, |{v(vO)}|, |{v(vO+1)}|
    v_add_f32 v10, |{v(vO+2)}|, |{v(vO+3)}|
    v_add_f32 v9, v9, |{v(vO+4)}|
    v_add_f32 v10, v10, |{v(vO+5)}|
    v_add_f32 v9, v9, |{v(vO+6)}|
    v_add_f32 v10, v10, |{v(vO+7)}|
    v_add_f32 v9, v9, v10
    v_cmp_gt_f32 {s(sSV,2)}, {s(sT2)}, v9
    v_add_f32 v9, v9, {v(vO+8)}
    v_cmp_ngt_f32 vcc, {H(f2u(2.0**115))}, v9
    s_waitcnt vmcnt(0)
    s_or_b64 vcc, vcc, {s(sSV,2)}
    s_cbranch_vccnz L_fallback
    """)
    a.label("L_norm")
    a(f"""
    v_rcp_f32 v10, {v(vO+8)}
    v_mul_f32 v8, {H(f2u(2.0**-VSCALE))}, {v(vGT)}
    v_mov_b32 v11, v10
    v_mov_b32 v9, v8
    s_add_u32 {s(sT0)}, {s(sOOFF)}, {WS_OA}
    """)
    for i in range(0, 8, 2):
        a(f"v_pk_mul_f32 {v(vO+i,2)}, {v(vO+i,2)}, v[10:11]")
    for i in range(0, 8, 2):
        a(f"v_pk_mul_f32 {v(vO+i,2)}, {v(vO+i,2)}, v[8:9]")
    for i in range(4):
        a(f"v_cvt_pk_bf16_f32 {v(vQ+i)}, {v(vO+2*i)}, {v(vO+2*i+1)}")
    a(f"buffer_store_dwordx4 {v(vQ,4)}, {v(vL16)}, {s(rWS,4)}, {s(sT0)} offen sc1")
    a(f"""
    v_add_u32 {v(vOW[1])}, 0x10000, {v(vOW[0])}
    v_add_u32 {v(vOW[2])}, 0x20000, {v(vOW[0])}
    """)
    if o['nox5']:
        a(f"v_readfirstlane_b32 {s(sT2)}, {v(vF)}\ns_setprio {o.get('tp', 0)}")
        flagcheck("w", 4, 16)
    else:
        a("s_barrier")
    stamp("X5")

    acc = [144, 148, 152, 156]
    WR = [56, 72, 88]

    def rdW(st_):
        L = []
        b = wbase(st_)
        for ct in range(4):
            L.append(f"ds_read_b128 {v(WR[st_%3]+4*ct,4)}, {v(vOW[b >> 16])} offset:{(b & 0xffff) + 1024*ct}")
        return L

    def chk(F, lab):
        a(f"""
        v_max3_u32 v9, {v(F)}, {v(F+1)}, {v(F+2)}
        v_max_u32 v9, v9, {v(F+3)}
        v_cmp_eq_u32 vcc, -1, v9
        s_nop 0
        s_cbranch_vccnz {lab}
        """)

    for ln in rdW(0) + rdW(1):
        a(ln)
    a(f"s_mov_b32 {s(sCNT)}, {SPIN}")
    a.label("L_chkB")
    a(f"v_max3_u32 v9, {v(OBF)}, {v(OBF+1)}, {v(OBF+2)}")
    a(f"v_max_u32 v9, v9, {v(OBF+3)}")
    for i in range(4, 32, 2):
        a(f"v_max3_u32 v9, v9, {v(OBF+i)}, {v(OBF+i+1)}")
    a("v_cmp_eq_u32 vcc, -1, v9\ns_nop 0\ns_cbranch_vccnz L_reB")
    a.label("L_okB")
    nld = 0
    for st_ in range(16):
        F = (OBF if st_ < 8 else OAF) + 4 * (st_ % 8)
        if st_ >= 8:
            a.label(f"L_try{st_}")
            a(f"s_waitcnt vmcnt({15-st_})")
            chk(F, f"L_re{st_}")
            a.label(f"L_go{st_}")
        a(f"s_waitcnt lgkmcnt({4 if st_ < 15 else 0})")
        R_ = rdW(st_ + 2) if st_ + 2 < 16 else []
        for ct in range(4):
            a(mf16(acc[ct], WR[st_ % 3] + 4 * ct, F, '0' if st_ == 0 else acc[ct]))
            for ln in R_[ct * len(R_) // 4:(ct + 1) * len(R_) // 4]:
                a(ln)
        if st_ == o.get('midb', 7):
            a("s_barrier")
        if st_ in o['oa']:
            load_o(OAF, WS_OA, nld, nld + o['oa'][st_])
            nld += o['oa'][st_]
        if st_ == 7:
            stamp("Bpart")
    stamp("outmm")
    a(f"""
    s_lshl_b32 {s(sT0)}, {s(sOB_)}, 16
    s_lshl1_add_u32 {s(sT1)}, {s(sH)}, {s(sTH)}
    s_lshl_b32 {s(sT1)}, {s(sT1)}, 13
    s_add_u32 {s(sT0)}, {s(sT0)}, {s(sT1)}
    s_lshl_b32 {s(sT1)}, {s(sOC)}, 7
    ds_write_b128 {v(vRW)}, {v(acc[0],4)}
    ds_write_b128 {v(vRW)}, {v(acc[1],4)} offset:32
    ds_write_b128 {v(vRW)}, {v(acc[2],4)} offset:64
    ds_write_b128 {v(vRW)}, {v(acc[3],4)} offset:96
    s_add_u32 {s(sT0)}, {s(sT0)}, {s(sT1)}
    s_waitcnt lgkmcnt(0)
    s_barrier
    ds_read_b128 v[24:27], {v(vRR)}
    ds_read_b128 v[32:35], {v(vRR)} offset:{16*272}
    ds_read_b128 v[28:31], {v(vRR)} offset:128
    ds_read_b128 v[36:39], {v(vRR)} offset:{16*272+128}
    s_waitcnt lgkmcnt(2)
    v_pk_add_f32 v[24:25], v[24:25], v[32:33]
    v_pk_add_f32 v[26:27], v[26:27], v[34:35]
    v_cvt_pk_bf16_f32 v40, v24, v25
    v_cvt_pk_bf16_f32 v41, v26, v27
    s_waitcnt lgkmcnt(0)
    v_pk_add_f32 v[28:29], v[28:29], v[36:37]
    v_pk_add_f32 v[30:31], v[30:31], v[38:39]
    v_cvt_pk_bf16_f32 v42, v28, v29
    v_cvt_pk_bf16_f32 v43, v30, v31
    buffer_store_dwordx4 v[40:43], {v(vOUT)}, {s(rOUT,4)}, {s(sT0)} offen {o['outmod']}
    """)
    if diag:
        a("s_waitcnt vmcnt(0)")
        stamp("end")
        a(f"v_writelane_b32 {v(vST)}, {s(sCNT)}, 63")
        dump()
    if o.get('probe') and not o['probe'].startswith('H'):
        pad()
    a.label("L_end")
    a("s_endpgm")

    a.label("L_reB")
    load_o(OBF, WS_OB)
    a(f"""
    s_sub_u32 {s(sCNT)}, {s(sCNT)}, 1
    s_cmp_eq_u32 {s(sCNT)}, 0
    s_waitcnt vmcnt(0)
    s_cbranch_scc0 L_chkB
    s_branch L_okB
    """)
    for st_ in range(8, 16):
        a.label(f"L_re{st_}")
        a(f"""
        s_cmp_eq_u32 {s(sCNT)}, 0
        s_cbranch_scc1 L_go{st_}
        s_sub_u32 {s(sCNT)}, {s(sCNT)}, 1
        s_waitcnt vmcnt(0)
        """)
        load_o(OAF, WS_OA, st_ - 8, 8)
        a(f"s_branch L_try{st_}")
    for name, thr, off in slow:
        a.label(f"L_spin_{name}")
        if diag:
            a(f"s_mov_b32 {s(sT2)}, 1\nv_writelane_b32 {v(vST)}, {s(sT2)}, {37 + ['kv', 's2', 'w', 'kv2'].index(name)}")
        a(f"s_mov_b32 {s(sCNT)}, {SPIN*16}")
        a.label(f"L_spin2_{name}")
        a(f"""
        ds_read_b32 {v(vF)}, {v(vCA)} offset:{off}
        s_sub_u32 {s(sCNT)}, {s(sCNT)}, 1
        s_cmp_eq_u32 {s(sCNT)}, 0
        s_cbranch_scc1 L_ok_{name}
        s_waitcnt lgkmcnt(0)
        v_readfirstlane_b32 {s(sT2)}, {v(vF)}
        s_nop 0
        s_cmp_lt_u32 {s(sT2)}, {thr}
        s_cbranch_scc1 L_spin2_{name}
        s_branch L_ok_{name}
        """)

    a.label("L_fallback")
    a.c("true row max, then the same accumulation, K/V read from the global image")
    a(f"""
    v_mov_b32 v10, 0xff800000
    v_mov_b32 v11, 0xff800000
    s_mov_b32 {s(sT0)}, 0
    """)
    a.label("L_fb1")
    a(f"""
    buffer_load_dwordx4 {v(vK[0],4)}, {v(vL16)}, {s(rWS,4)}, {s(sT0)} offen sc1
    s_waitcnt vmcnt(0)
    {mf32(vS[0], vK[0], vQ, '0')}
    s_nop 11
    """)
    rowmax(vS[0], 10, False)
    a(f"""
    s_add_u32 {s(sT0)}, {s(sT0)}, 2048
    s_cmp_lt_u32 {s(sT0)}, 131072
    s_cbranch_scc1 L_fb1
    """)
    finish_max(10, 0.0)
    for i in range(0, 16, 2):
        a(f"v_mov_b64 {v(vO+i,2)}, 0")
    a(f"s_mov_b32 {s(sT0)}, 0")
    a.label("L_fb2")
    a(f"""
    buffer_load_dwordx4 {v(vK[0],4)}, {v(vL16)}, {s(rWS,4)}, {s(sT0)} offen sc1
    s_mov_b64 exec, {s(sVM,2)}
    buffer_load_dwordx4 {v(vVa[0],4)}, {v(vL16)}, {s(rWS,4)}, {s(sT0)} offen offset:1024 sc1
    buffer_load_dwordx4 {v(vVb[0],4)}, {v(vL16)}, {s(rWS,4)}, {s(sT0)} offen offset:1280 sc1
    s_mov_b64 exec, -1
    s_waitcnt vmcnt(0)
    {mf32(vS[0], vK[0], vQ, vNM)}
    s_nop 11
    """)
    for i in range(16):
        a(ex(vS[0] + i))
    a(f"""
    s_nop 1
    {smf(vVa[0], vS[0])}
    {smf(vVb[0], vS[0]+8)}
    s_add_u32 {s(sT0)}, {s(sT0)}, 2048
    s_cmp_lt_u32 {s(sT0)}, 131072
    s_nop 7
    s_cbranch_scc1 L_fb2
    s_nop 15
    s_branch L_norm
    """)

    a(".p2align 6")
    a.label("L_helper")
    hX0, hX1 = 16, 17
    hW = [18, 19, 20, 21]
    a(f"""
    s_sub_u32 {s(sI)}, {s(sW)}, 8
    s_lshl{1 if nb != 1 else 2}_add_u32 {s(sCH)}, {s(sT3 if nb < 3 else sT2)}, {s(sT2 if nb < 3 else sT3)}
    {f's_add_u32 {s(sCH)}, {s(sT3)}, {s(sT2)}' if o.get('G', 4) < 8 else ''}
    s_and_b32 {s(sCH)}, {s(sCH)}, {o.get('rotmask', 7) & (o.get('G', 4) - 1)}
    s_lshl2_add_u32 {s(sT8)}, {s(sTB)}, {s(sI)}
    s_lshl_b32 {s(sT8)}, {s(sT8)}, 14
    v_add_u32 {v(hX0)}, {s(sT8)}, v10
    v_xor_b32 {v(hX1)}, 64, {v(hX0)}
    v_add_u32 {v(hX1)}, 7168, {v(hX1)}
    s_max_u32 {s(sT0)}, {s(sI)}, 1
    s_sub_u32 {s(sT0)}, {s(sT0)}, 1
    s_lshl_b32 {s(sT1)}, {s(sI)}, 2
    s_lshr_b32 {s(sT1)}, {(xq << 4) + (xk_ << 8) + (xk_ << 12)}, {s(sT1)}
    s_and_b32 {s(sT1)}, {s(sT1)}, 7
    s_xor_b32 {s(sT1)}, {s(sT1)}, {s(sHG)}
    s_lshl3_add_u32 {s(sT0)}, {s(sT0)}, {s(sT1)}
    s_lshl_b32 {s(sT0)}, {s(sT0)}, 7
    s_lshl_b32 {s(sT9)}, {s(sI)}, 11
    s_lshl_b32 {s(sT10)}, {s(sI)}, 13
    s_mov_b32 {s(rW1+3)}, 0x20000
    s_cmp_eq_u32 {s(sI)}, 0
    s_cselect_b32 {s(sSTR)}, 1, 3
    s_lshl_b32 {s(rW1+2)}, {s(sSTR)}, 19
    s_lshl_b32 {s(sWSTEP)}, {s(sSTR)}, 15
    s_lshl_b32 {s(sSTR)}, {s(sSTR)}, 10
    v_bfe_u32 v9, v6, 4, 1
    v_lshlrev_b32 v9, 1, v9
    v_xor_b32 v9, v9, v11
    v_lshl_add_u32 v9, v9, 4, {s(sT0)}
    v_mad_u32_u24 {v(hW[0])}, v12, {s(sSTR)}, v9
    s_lshl_b32 {s(sT1)}, {s(sSTR)}, 3
    s_sub_u32 {s(sT1)}, {s(sT1)}, 1024
    v_xor_b32 {v(hW[1])}, 64, {v(hW[0])}
    v_add_u32 {v(hW[1])}, {s(sT1)}, {v(hW[1])}
    s_lshl_b32 {s(sT1)}, {s(sT1)}, 1
    v_add_u32 {v(hW[2])}, {s(sT1)}, {v(hW[0])}
    v_add_u32 {v(hW[3])}, {s(sT1)}, {v(hW[1])}
    s_cmp_eq_u32 {s(sI)}, 0
    s_waitcnt lgkmcnt(0)
    s_cselect_b32 {s(rW1)}, {s(pWQ)}, {s(pWQKV)}
    s_cselect_b32 {s(rW1+1)}, {s(pWQ+1)}, {s(pWQKV+1)}
    """)
    srd(rX, pX)
    if o.get('probe'):
        a("s_mov_b32 s14, s88")

    def dma_chunk(it):
        sl = slot(it)
        a(f"""
        s_lshl_b32 {s(sOX)}, {s(sCH)}, 7
        s_add_u32 m0, {s(sT9)}, {sl}
        s_lshl_b32 {s(sOW)}, {s(sCH)}, 1
        buffer_load_dwordx4 {v(hX0)}, {s(rX,4)}, {s(sOX)} offen {o['dm']} lds
        buffer_load_dwordx4 {v(hX1)}, {s(rX,4)}, {s(sOX)} offen offset:1024 {o['dm']} lds
        s_add_u32 m0, {s(sT10)}, {sl+8192}
        s_mul_i32 {s(sOW)}, {s(sOW)}, {s(sWSTEP)}
        """)
        for i in range(4):
            a(f"buffer_load_dwordx4 {v(hW[i])}, {s(rW1,4)}, {s(sOW)} offen offset:{1024*i} {o['dm']} lds")
        a(f"""
        s_add_u32 m0, {s(sT10)}, {sl+8192+4096}
        s_add_u32 {s(sOW)}, {s(sOW)}, {s(sWSTEP)}
        """)
        for i in range(4):
            a(f"buffer_load_dwordx4 {v(hW[i])}, {s(rW1,4)}, {s(sOW)} offen offset:{1024*i} {o['dm']} lds")
        G_ = o.get('G', 4)
        a(f"s_add_u32 {s(sCH)}, {s(sCH)}, 1\ns_and_b32 {s(sCH)}, {s(sCH)}, {G_ - 1}")
        if G_ < 8:
            a(f"s_or_b32 {s(sCH)}, {s(sCH)}, {((it + 1) // G_ * G_) & 7}")

    stamp("Hstart")
    dma_chunk(0)
    a(f"""
    v_mov_b32 {v(vCA)}, {L_CNT}
    v_mov_b64 v[28:29], 0
    v_mov_b64 v[30:31], 0
    ds_write_b128 {v(vCA)}, v[28:31]
    ds_write_b128 {v(vCA)}, v[28:31] offset:16
    s_xor_b32 {s(sHK)}, {s(sHG)}, {xk_}
    s_xor_b32 {s(sHQ)}, {s(sHG)}, {xq}
    """)
    srd(rWS, pWS)
    srdc(rWS, WSN)
    srd(rDBG, pDBG)
    srdc(rDBG, 256)
    a(f"""
    s_bitcmp1_b32 s2, 4
    s_cselect_b32 {s(rWO)}, {s(pWO)}, {s(pBWO)}
    s_cselect_b32 {s(rWO+1)}, {s(pWO+1)}, {s(pBWO+1)}
    """)
    srdc(rWO, 524288)
    dma_chunk(1)
    hPA, hPV = 24, 25
    hA, hB, hL4, hL1, hKF, hTD, hTR, hP3 = 26, 27, 104, 105, 106, 107, 108, 109
    a(f"""
    v_lshrrev_b32 {v(hPA)}, 1, v6
    v_lshlrev_b32 {v(hPA)}, 8, {v(hPA)}
    v_and_b32 v22, 1, v6
    v_lshl_add_u32 {v(hPA)}, v22, 4, {v(hPA)}
    v_add_u32 {v(hPA)}, {WS_F}, {v(hPA)}
    s_mul_i32 {s(sT0)}, {s(sI)}, 1088
    s_add_u32 {s(sT0)}, {s(sT0)}, {L_SCR}
    v_add_u32 {v(hA)}, {s(sT0)}, {v(vL16)}
    s_lshl_b32 {s(sT0)}, {s(sI)}, 10
    s_add_u32 {s(sT0)}, {s(sT0)}, {L_PQ}
    v_add_u32 {v(hB)}, {s(sT0)}, {v(vL16)}
    v_and_b32 v22, 31, v6
    v_lshlrev_b32 {v(hL4)}, 2, v22
    v_lshrrev_b32 v23, 5, v6
    v_mul_u32_u24 {v(hL1)}, {16*4352}, v23
    v_lshl_add_u32 {v(hL1)}, v22, 3, {v(hL1)}
    v_min_u32 v22, 16, v22
    v_mad_u32_u24 v22, v23, 17, v22
    v_lshlrev_b32 {v(hKF)}, 4, v22
    v_lshlrev_b32 {v(hTD)}, 4, v11
    v_lshl_add_u32 {v(hTD)}, v12, 10, {v(hTD)}
    v_bfe_u32 v22, v6, 2, 3
    v_lshl_add_u32 v22, v23, 4, v22
    v_and_b32 v23, 3, v6
    v_lshlrev_b32 v23, 3, v23
    v_lshl_add_u32 v22, v22, 7, v23
    v_add_u32 {v(hTR)}, {L_TS}, v22
    s_lshl_b32 {s(sT0)}, {s(sHQ)}, 7
    s_add_u32 {s(sT0)}, {s(sT0)}, {WS_C3}
    v_mov_b32 {v(hP3)}, {s(sT0)}
    v_mov_b32 v10, 1
    v_mov_b32 v14, 16
    s_waitcnt vmcnt(10) lgkmcnt(0)
    v_mov_b64 v[28:29], -1
    v_mov_b64 v[30:31], -1
    s_barrier
    """)
    for it in range(7):
        if it + 2 <= 7:
            dma_chunk(it + 2)
            a("s_waitcnt vmcnt(10)")
        else:
            a(f"buffer_load_dwordx4 v[100:103], {v(hPA)}, {s(rWS,4)}, 0 offen sc1")
            a("s_waitcnt vmcnt(1)")
        a("s_barrier")
    a(f"s_setprio {o['hprio']}")

    def gpoll(name, addr, off, thr, pre=False, sleep=0, r=rDBG):
        a(f"s_mov_b32 {s(sCNT)}, {SPIN}")
        if pre:
            a(f"s_branch L_gc_{name}")
        a.label(f"L_gp_{name}")
        if sleep:
            a(f"s_sleep {sleep}")
        a(f"""
        buffer_load_dword{'x4 v[100:103]' if thr == 1 else ' ' + v(hPV)}, {v(addr)}, {s(r,4)}, 0 offen offset:{off} sc1
        s_sub_u32 {s(sCNT)}, {s(sCNT)}, 1
        s_cmp_eq_u32 {s(sCNT)}, 0
        s_cbranch_scc1 L_gd_{name}
        """)
        a.label(f"L_gc_{name}")
        a(f"""
        s_waitcnt vmcnt(0)
        {f'v_min3_u32 {v(hPV)}, v100, v101, v102' if thr == 1 else ''}
        {f'v_min_u32 {v(hPV)}, {v(hPV)}, v103' if thr == 1 else ''}
        v_cmp_gt_u32 vcc, {thr}, {v(hPV)}
        s_nop 0
        s_cbranch_vccnz L_gp_{name}
        """)
        a.label(f"L_gd_{name}")

    def lpoll(name, off, thr):
        a(f"s_mov_b32 {s(sCNT)}, {SPIN*4}")
        a.label(f"L_lp_{name}")
        a(f"""
        s_sleep {o.get('lsl', 16)}
        ds_read_b32 v9, {v(vCA)} offset:{off}
        s_sub_u32 {s(sCNT)}, {s(sCNT)}, 1
        s_cmp_eq_u32 {s(sCNT)}, 0
        s_cbranch_scc1 L_lp_{name}d
        s_waitcnt lgkmcnt(0)
        v_readfirstlane_b32 {s(sT1)}, v9
        s_nop 0
        s_cmp_lt_u32 {s(sT1)}, {thr}
        s_cbranch_scc1 L_lp_{name}
        """)
        a.label(f"L_lp_{name}d")

    gpoll("s1", hPA, 0, 1, pre=True, sleep=2, r=rWS)
    stamp("Hs1")

    def kv_group(G):
        a(f"s_add_u32 {s(sT0)}, {s(sT8)}, {16384*G}\ns_mov_b32 m0, {s(sT0)}\ns_nop 0")
        for i in range(4):
            a(f"buffer_load_dwordx4 {v(vL16)}, {s(rWS,4)}, {s(sT0)} offen offset:{1024*i} sc1 lds")

    a(f"s_lshl_b32 {s(sT8)}, {s(sI)}, 12")
    npre = o.get('npre', 2)
    for G in range(npre):
        kv_group(G)
    a(f"""
    s_waitcnt vmcnt({4*(npre-2)})
    s_barrier
    """)
    stamp("HX1")
    hPQ = [32, 36]
    hS = [40, 44, 48, 52]
    hG = [56, 57]
    a(f"""
    ds_read_b128 {v(hS[0],4)}, {v(hA)}
    ds_read_b128 {v(hS[1],4)}, {v(hA)} offset:4352
    ds_read_b128 {v(hS[2],4)}, {v(hA)} offset:1024
    ds_read_b128 {v(hS[3],4)}, {v(hA)} offset:5376
    ds_read_b128 {v(hPQ[0],4)}, {v(hB)}
    ds_read_b128 {v(hPQ[1],4)}, {v(hB)} offset:4096
    """)
    for G in range(npre, 8):
        kv_group(G)
        if G == 5:
            a(f"s_mov_b64 exec, 1\ns_waitcnt vmcnt(8)\nds_add_u32 {v(vCA)}, v10 offset:20\ns_mov_b64 exec, -1")
    a(f"""
    s_lshl_b32 {s(sT0)}, {s(sTB)}, 8
    s_add_u32 {s(sT0)}, {s(sT0)}, {WS_G}
    buffer_load_dword {v(hG[0])}, {v(hL4)}, {s(rWS,4)}, {s(sT0)} offen sc1
    buffer_load_dword {v(hG[1])}, {v(hL4)}, {s(rWS,4)}, {s(sT0)} offen offset:128 sc1
    s_lshl_b32 {s(sT0)}, {s(sTB)}, 6
    s_lshl2_add_u32 {s(sT1)}, {s(sHG)}, {s(sI)}
    s_add_u32 {s(sT0)}, {s(sT0)}, {s(sT1)}
    s_lshl_b32 {s(sOOFF)}, {s(sT0)}, 10
    """)
    for base in (WS_OA, WS_OA + 32768, WS_OB, WS_OB + 32768):
        if base == WS_OB:
            a(f"s_xor_b32 {s(sOOFF)}, {s(sOOFF)}, {4096*xq}")
        a(f"s_add_u32 {s(sT0)}, {s(sOOFF)}, {base}")
        a(f"buffer_store_dwordx4 v[28:31], {v(vL16)}, {s(rWS,4)}, {s(sT0)} offen sc1")
    a(f"""
    s_lshl_b32 {s(sT0)}, {s(sHK)}, 5
    s_add_u32 {s(sT0)}, {s(sT0)}, {s(sTB)}
    s_lshl2_add_u32 {s(sT0)}, {s(sT0)}, {s(sI)}
    s_mul_i32 {s(sT0)}, {s(sT0)}, 1088
    s_add_u32 {s(sT0)}, {s(sT0)}, {WS_KVP}
    s_waitcnt lgkmcnt(0)
    v_pk_add_f32 {v(hS[0],2)}, {v(hS[0],2)}, {v(hS[1],2)}
    v_pk_add_f32 {v(hS[0]+2,2)}, {v(hS[0]+2,2)}, {v(hS[1]+2,2)}
    v_pk_add_f32 {v(hS[2],2)}, {v(hS[2],2)}, {v(hS[3],2)}
    v_pk_add_f32 {v(hS[2]+2,2)}, {v(hS[2]+2,2)}, {v(hS[3]+2,2)}
    buffer_store_dwordx4 {v(hS[0],4)}, {v(vL16)}, {s(rWS,4)}, {s(sT0)} offen sc1
    s_mov_b64 exec, 15
    buffer_store_dwordx4 {v(hS[2],4)}, {v(vL16)}, {s(rWS,4)}, {s(sT0)} offen offset:1024 sc1
    s_mov_b64 exec, -1
    s_cmp_eq_u32 {s(sI)}, 1
    s_cbranch_scc0 L_notr
    s_and_b32 {s(sT0)}, s2, 1
    s_lshl_b32 {s(sT0)}, {s(sT0)}, 3
    s_bfe_u32 {s(sT1)}, s2, 0x30001
    s_add_u32 {s(sT0)}, {s(sT0)}, {s(sT1)}
    s_lshl_b32 {s(sT0)}, {s(sT0)}, 8
    s_lshr_b32 {s(sT1)}, s2, 5
    s_add_u32 {s(sT0)}, {s(sT0)}, {s(sT1)}
    s_lshl_b32 {s(sT0)}, {s(sT0)}, 7
    """)
    for q in range(4):
        a(f"s_mov_b32 m0, {L_TS + 1024*q}")
        a(f"s_add_u32 {s(sT0)}, {s(sT0)}, {8192 if q else 0}")
        a(f"buffer_load_dwordx4 {v(hTD)}, {s(rWO,4)}, {s(sT0)} offen lds")
    a(f"s_lshl_b32 {s(sT0)}, s2, 12\ns_add_u32 {s(sT0)}, {s(sT0)}, {WS_WT}\ns_waitcnt vmcnt(0)")
    for ct in range(4):
        for u in range(2):
            a(f"ds_read_b64_tr_b16 {v(64+4*ct+2*u,2)}, {v(hTR)} offset:{32*ct + 1024*u}")
    a("s_waitcnt lgkmcnt(0)")
    for ct in range(4):
        a(f"buffer_store_dwordx4 {v(64+4*ct,4)}, {v(vL16)}, {s(rWS,4)}, {s(sT0)} offen offset:{1024*ct} sc1")
    a.label("L_notr")
    a(f"""
    s_mov_b64 exec, 1
    s_waitcnt vmcnt(0)
    ds_add_rtn_u32 v12, {v(vCA)}, v10
    """)
    flagaddr()
    a(f"""
    s_waitcnt lgkmcnt(0)
    v_readfirstlane_b32 {s(sT1)}, v12
    s_nop 0
    s_cmp_eq_u32 {s(sT1)}, 3
    s_cbranch_scc0 L_nosig2
    buffer_store_dword v10, off, {s(rWS,4)}, {s(sT0)} offset:128 sc1
    """)
    a.label("L_nosig2")
    a("s_mov_b64 exec, -1")
    stamp("Hkv")
    a(f"""
    s_cmp_eq_u32 {s(sI)}, 0
    s_cbranch_scc0 L_nol1
    s_sleep {o.get('sl2a', 48)}
    """)
    gpoll("s2", hPA, 128, 1, sleep=o.get('sl2', 16), r=rWS)
    stamp("Hs2")
    PL = 64
    a(f"""
    s_mov_b64 exec, 1
    ds_add_u32 {v(vCA)}, v14
    s_mov_b32 exec_lo, 0x1ffff
    s_mov_b32 exec_hi, 0x1ffff
    s_mul_i32 {s(sT0)}, {s(sHK)}, {32*4352}
    s_mul_i32 {s(sT1)}, {s(sTB)}, 136
    s_add_u32 {s(sT0)}, {s(sT0)}, {s(sT1)}
    s_add_u32 {s(sT0)}, {s(sT0)}, {WS_KVP}
    """)
    for p in range(16):
        a(f"buffer_load_dwordx2 {v(PL+2*p,2)}, {v(hL1)}, {s(rWS,4)}, {s(sT0)} offen sc1")
        if p < 15:
            a(f"s_add_u32 {s(sT0)}, {s(sT0)}, 4352")
    a(f"""
    s_mul_i32 {s(sT0)}, {s(sHK)}, 2176
    s_mul_i32 {s(sT1)}, {s(sTB)}, 68
    s_add_u32 {s(sT0)}, {s(sT0)}, {s(sT1)}
    s_add_u32 {s(sT0)}, {s(sT0)}, {WS_KVF}
    s_mov_b64 exec, -1
    s_waitcnt vmcnt(0)
    """)
    for st_ in (2, 4, 8, 16):
        for i in range(0, 32, 2 * st_):
            a(f"v_pk_add_f32 {v(PL+i,2)}, {v(PL+i,2)}, {v(PL+i+st_,2)}")
    a(f"""
    v_mov_b64 {v(PL+2,2)}, {v(PL,2)}
    s_nop 1
    v_permlane32_swap_b32 {v(PL)}, {v(PL+2)}
    v_permlane32_swap_b32 {v(PL+1)}, {v(PL+3)}
    v_pk_add_f32 {v(PL,2)}, {v(PL,2)}, {v(PL+2,2)}
    v_cvt_pk_bf16_f32 {v(PL)}, {v(PL)}, {v(PL+1)}
    s_mov_b64 exec, 0x1ffff
    buffer_store_dword {v(PL)}, {v(hL4)}, {s(rWS,4)}, {s(sT0)} offen sc1
    s_mov_b64 exec, 1
    s_lshl_b32 {s(sT0)}, {s(sHK)}, 7
    s_add_u32 {s(sT0)}, {s(sT0)}, {WS_C3}
    s_waitcnt vmcnt(0)
    buffer_atomic_add v10, off, {s(rWS,4)}, {s(sT0)} sc1
    s_mov_b64 exec, -1
    s_sleep {o.get('sl3a', 32)}
    """)
    gpoll("s3", hP3, 0, 32, sleep=o.get('sl3', 16), r=rWS)
    a(f"s_mov_b64 exec, 1\nds_add_u32 {v(vCA)}, v14\ns_mov_b64 exec, -1\ns_branch L_lp_s3d")
    a.label("L_nol1")
    lpoll("s3", 0, 32)
    stamp("Hs3")
    KF = 60
    DB = [64, 80]
    a(f"""
    s_lshl2_add_u32 {s(sT0)}, {s(sHQ)}, {s(sI)}
    s_mul_i32 {s(sT0)}, {s(sT0)}, 544
    s_add_u32 {s(sT0)}, {s(sT0)}, {WS_KVF}
    buffer_load_dwordx4 {v(KF,4)}, {v(hKF)}, {s(rWS,4)}, {s(sT0)} offen sc1
    s_lshl_b32 {s(sT10)}, {s(sOC)}, 17
    s_add_u32 {s(sT10)}, {s(sT10)}, {s(sT9)}
    s_waitcnt vmcnt(0)
    {mf32(DB[0], KF, hPQ[0], '0')}
    {mf32(DB[1], KF, hPQ[1], '0')}
    """)

    def dma_w(st_):
        a(f"""
        s_add_u32 m0, {s(sT9)}, {wbase(st_)}
        s_add_u32 {s(sT0)}, {s(sT10)}, {WS_WT + 8192*st_}
        buffer_load_dwordx4 {v(vL16)}, {s(rWS,4)}, {s(sT0)} offen sc1 lds
        buffer_load_dwordx4 {v(vL16)}, {s(rWS,4)}, {s(sT0)} offen offset:1024 sc1 lds
        """)

    for st_ in (13, 14, 15):
        dma_w(st_)
    for th in range(2):
        D = DB[th]
        a(f"""
        v_add_f32 v12, {H(f2u(EPS))}, {v(D+8)}
        v_rcp_f32 v12, v12
        v_sub_f32 v9, 1.0, {v(hG[th])}
        v_mul_f32 v12, v12, v9
        v_mov_b32 v13, v12
        """)
        for i in range(0, 8, 2):
            a(f"v_pk_mul_f32 {v(D+i,2)}, {v(D+i,2)}, v[12:13]")
        for i in range(4):
            a(f"v_cvt_pk_bf16_f32 {v(D+8+i)}, {v(D+2*i)}, {v(D+2*i+1)}")
        a(f"""
        s_add_u32 {s(sT0)}, {s(sOOFF)}, {WS_OB + 32768*th}
        buffer_store_dwordx4 {v(D+8,4)}, {v(vL16)}, {s(rWS,4)}, {s(sT0)} offen sc1
        """)
    stamp("HoB")
    for n_, (lo, hi) in enumerate([(0, 7), (7, 11), (11, 13)]):
        lpoll(f"prog{n_}", 4 + 4 * n_, 8)
        if n_ == 2:
            stamp("Hprog")
        for st_ in range(lo, hi):
            dma_w(st_)
    a("s_waitcnt vmcnt(0)")
    stamp("Hw")
    if o['nox5']:
        a(f"s_mov_b64 exec, 1\nds_add_u32 {v(vCA)}, v10 offset:16\ns_mov_b64 exec, -1")
    else:
        a("s_barrier")
    dump()
    if o.get('probe', '').startswith('H'):
        a("s_barrier\ns_barrier")
        pad()
    a("s_endpgm")
    a.label("L_codeend")
    return a


HEADER = open('cdna_kernels/' + NAME + '.s.ref').read().split('; Override launch geometry')[0]


def wrap(a):
    k = NAME + '_kernel'
    return (HEADER + f"; @launch grid=(256,1,1) block=(768,1,1) lds={LDS_BYTES}\n"
            + f""".amdgcn_target "amdgcn-amd-amdhsa--gfx950"
.text
.globl {k}
.p2align 8
.type {k},@function
{k}:
""" + a.text() + f""".section .rodata,"a"
.p2align 6
.amdhsa_kernel {k}
  .amdhsa_next_free_vgpr {NVGPR}
  .amdhsa_next_free_sgpr 102
  .amdhsa_accum_offset {NVGPR}
  .amdhsa_group_segment_fixed_size 0
  .amdhsa_kernarg_size 96
  .amdhsa_user_sgpr_count 2
  .amdhsa_user_sgpr_kernarg_segment_ptr 1
  .amdhsa_system_sgpr_workgroup_id_x 1
.end_amdhsa_kernel
""")


if __name__ == '__main__':
    import argparse, json
    ap = argparse.ArgumentParser()
    ap.add_argument('out')
    ap.add_argument('--diag', action='store_true')
    ap.add_argument('--opts', default='{}')
    args = ap.parse_args()
    a = gen(args.diag, json.loads(args.opts))
    bad = check(a.lines)
    for b in bad:
        print("HAZARD need", b[0], "have", b[1], "|", b[2], "->", b[3])
    open(args.out, 'w').write(wrap(a))
    print("written", args.out, len(a.lines), "lines")
```

```python
import sys, struct
sys.path.insert(0, 'gen')
from asmlib import *

NAME = 'gated_mix__grouped_kv_mqa__linear_attn_block__prompt'


def f2u(x):
    return struct.unpack('<I', struct.pack('<f', x))[0]


def H(x):
    return f"0x{x & 0xffffffff:08x}"


WS_KV = 0
WS_G = 0x20000
WS_KVF = 0x22000
WS_C3 = 0x27000
WS_KVP = 0x28000
WS_F = 0x140000
WS_OA = 0x200000
WS_OB = 0x400000
WS_WT = 0x700000
WS_SIZE = 0x800000
WS_DIAG = 0x600000
SLOT = 40960
STG = 122880
MISC = 131072
L_SCR = MISC
L_PQ = MISC + 8704
L_TS = MISC + 20480
L_CNT = 163776
L_RED = 106496
LDS_BYTES = 163840
sW = 3
pX, pWQ, pWK, pWV, pWO, pBX, pWQKV, pBWO, pGATE, pOUT, pDBG, pWS = 4, 6, 8, 10, 12, 14, 16, 18, 20, 22, 24, 26
rX, rW1, rWKV, rGATE, rWS, rDBG, rOUT, rWO, rBWO = 28, 32, 36, 40, 44, 48, 52, 56, 60
sTB, sHG, sCH, sWSTEP, sOX, sOW, sI = 64, 65, 66, 67, 68, 69, 70
sT0, sT1, sT2, sT3, sKVT, sT5, sT6, sSTR, sT8 = 71, 72, 73, 74, 75, 76, 77, 78, 79
sVM = 80
sCNT = 82
sOOFF = 83
sOB_, sOC = 84, 85
sSV = 86
sST = 88
sH, sTH = 90, 91
sT9, sT10 = 92, 93
sSTG = 94
vL16, vL16H, vIDX, vGT = 1, 2, 3, 4
vQ, vPQ = 16, 20
vNM, vO = 24, 40
vS = [56, 72]
vK = [88, 92]
vVa = [96, 104]
vVb = [100, 108]
vST = 15
aQA, aQB, aKB, aVB = [24, 28], [32, 36], [40, 44], [48, 52]
HA, HB = 56, [112, 112]
vEPS, ONE, cE = 80, 84, 88
vXR = [160, 161]
vXS = [158, 159]
sSQ, sD0, sD1 = 66, 67, 68
vWR = 162
vCA, vF = 163, 164
vOA, vSCR, vPQA, vGA = 5, 165, 166, 167
vOW = [14, 160, 161]
vBIG = 12
sCL, sCQ = 96, 98
sC272 = 100
sHK, sHQ = 100, 101
vR, vG = 7, 8
NVGPR = 168

LOG2E = 1.4426950408889634
QSCALE = 0.25 * LOG2E
EPS = 1e-6
VSCALE = 32
SPIN = 1 << 16


def gen(diag=False, opts=None):
    o = dict(pub=7, hprio=3, X=100, reb=[8], oa={5: 3, 6: 3, 7: 2}, pf=1, outmod='sc1', nox5=0, D=5, defer=0, vb63=1, dm='')
    if opts:
        o.update(opts)
    o['oa'] = {int(k_): v_ for k_, v_ in o['oa'].items()}
    MARGIN = float(o['X'])
    nb = o.get('nb', 2)
    xq, xk_ = o.get('xq', 1), o.get('xk', 2)
    a = Asm()
    nst = [0]

    def stamp(name, cyc=False):
        if o.get('probe') == name:
            a(f"s_memrealtime {s(sST,2)}\ns_waitcnt lgkmcnt(0)\ns_mov_b32 s95, {s(sST)}")
        if not diag or name in o.get('nostamp', ['B1', 'B2', 'B3', 'B4', 'B5', 'B6']):
            return
        k = nst[0]
        nst[0] += 1
        a.c(f"stamp {k} {name}")
        a(f"{'s_memtime' if cyc else 's_memrealtime'} {s(sST,2)}")
        a("s_waitcnt lgkmcnt(0)")
        a(f"v_writelane_b32 {v(vST)}, {s(sST)}, {k}")

    def dump():
        if diag:
            a(f"""
            s_mul_i32 {s(sT0)}, s2, 12
            s_add_u32 {s(sT0)}, {s(sT0)}, {s(sW)}
            s_lshl_b32 {s(sT0)}, {s(sT0)}, 8
            s_add_u32 {s(sT0)}, {s(sT0)}, {WS_DIAG}
            v_lshrrev_b32 v5, 2, {v(vL16)}
            buffer_store_dword {v(vST)}, v5, {s(rWS,4)}, {s(sT0)} offen
            """)

    def pad():
        a("s_waitcnt vmcnt(0)")
        stamp("end")
        if o['probe'] == 'none':
            a("s_mov_b32 s95, s14")
        a(f"""
        s_sub_u32 s95, s95, s14
        s_mul_i32 s95, s95, {o.get('mult', 10)}
        s_add_u32 s95, s95, 6000
        """)
        a.label("L_pad")
        a(f"""
        s_memrealtime {s(sST,2)}
        s_waitcnt lgkmcnt(0)
        s_sub_u32 {s(sST)}, {s(sST)}, s14
        s_cmp_lt_u32 {s(sST)}, s95
        s_cbranch_scc1 L_pad
        """)

    def flagaddr():
        a(f"""
        s_lshr_b32 {s(sT0)}, s2, 3
        s_lshl_b32 {s(sT0)}, {s(sT0)}, 8
        s_and_b32 {s(sT1)}, s2, 7
        s_lshl2_add_u32 {s(sT0)}, {s(sT1)}, {s(sT0)}
        s_add_u32 {s(sT0)}, {s(sT0)}, {WS_F}
        """)

    def srd(r, p):
        a(f"s_mov_b32 {s(r)}, {s(p)}\ns_mov_b32 {s(r+1)}, {s(p+1)}")

    def srdc(r, n):
        a(f"s_mov_b32 {s(r+2)}, {n}\ns_mov_b32 {s(r+3)}, 0x20000")

    def mf16(d, A, B, C):
        C = C if isinstance(C, str) else v(C, 4)
        return f"v_mfma_f32_16x16x32_bf16 {v(d,4)}, {v(A,4)}, {v(B,4)}, {C}"

    def mf32(d, A, B, C):
        C = C if isinstance(C, str) else v(C, 16)
        return f"v_mfma_f32_32x32x16_bf16 {v(d,16)}, {v(A,4)}, {v(B,4)}, {C}"

    def smf(A, B):
        return f"v_smfmac_f32_32x32x32_bf16 {v(vO,16)}, {v(A,4)}, {v(B,8)}, {v(vIDX)}"

    def slot(it):
        return ((it + 1) % 3) * SLOT

    def wbase(st_):
        return 8192 * st_ if st_ <= 12 else MISC + 8192 * (st_ - 13)

    WSN = WS_SIZE

    a(f"""
    s_cmp_ge_u32 s2, 256
    s_cbranch_scc1 L_end
    {'s_memrealtime s[88:89]' if o.get('probe') else ''}
    s_load_dwordx16 s[4:19], s[0:1], 0
    s_load_dwordx8 s[20:27], s[0:1], 64
    v_lshrrev_b32 v5, 6, v0
    v_and_b32 v6, 63, v0
    v_readfirstlane_b32 {s(sW)}, v5
    v_lshlrev_b32 {v(vL16)}, 4, v6
    s_and_b32 {s(sT0)}, s2, 7
    s_lshr_b32 {s(sT2)}, s2, {3+nb}
    s_bfe_u32 {s(sT3)}, s2, {(nb << 16) + 3}
    s_lshr_b32 {s(sTB)}, {s(sT0)}, {3-nb}
    s_lshl{5-nb}_add_u32 {s(sTB)}, {s(sTB)}, {s(sT2)}
    s_and_b32 {s(sHG)}, {s(sT0)}, {(1 << (3-nb)) - 1}
    s_lshl{nb}_add_u32 {s(sHG)}, {s(sHG)}, {s(sT3)}
    s_lshr_b32 {s(sT1)}, s2, 6
    s_lshl2_add_u32 {s(sOB_)}, {s(sT0)}, {s(sT1)}
    s_bfe_u32 {s(sOC)}, s2, 0x30003
    v_lshrrev_b32 {v(vG)}, 4, v6
    v_and_b32 v11, 7, v6
    v_xor_b32 v10, v11, {v(vG)}
    v_lshlrev_b32 v10, 4, v10
    v_lshrrev_b32 v12, 3, v6
    v_lshl_add_u32 v10, v12, 10, v10
    """)
    if diag:
        a(f"v_mov_b32 {v(vST)}, 0")
    srdc(rX, 2097152)
    a(f"s_cmp_ge_u32 {s(sW)}, 8\ns_cbranch_scc1 L_helper")

    a(f"""
    {f's_lshr_b32 {s(sSQ)}, {s(sHG)}, 1' if not o.get('newshare') else f's_and_b32 {s(sSQ)}, {s(sHG)}, 3'}
    s_lshl2_add_u32 {s(sKVT)}, {s(sTB)}, {s(sSQ)}
    s_lshl_b32 {s(sKVT)}, {s(sKVT)}, 4
    s_add_u32 {s(sT6)}, {s(sT3)}, {s(sT2)}
    s_add_u32 {s(sT6)}, {s(sT6)}, {s(sW)}
    s_and_b32 {s(sT6)}, {s(sT6)}, 3
    s_and_b32 {s(sT5)}, {s(sW)}, 4
    s_or_b32 {s(sT6)}, {s(sT6)}, {s(sT5)}
    s_lshl_b32 {s(sT9)}, {s(sT6)}, 11
    s_lshl_b32 {s(sT6)}, {s(sT6)}, 7
    s_lshl_b32 {s(sT5)}, {s(sKVT)}, 10
    s_add_u32 {s(sT5)}, {s(sT5)}, {s(sT6)}
    s_lshl_b32 {s(sSTG)}, {s(sW)}, 12
    s_add_u32 {s(sSTG)}, {s(sSTG)}, {STG}
    s_mov_b32 m0, {s(sSTG)}
    v_xor_b32 v11, 64, v10
    v_add_u32 v11, 7168, v11
    v_lshlrev_b32 v9, 4, {v(vG)}
    v_and_b32 {v(vR)}, 15, v0
    {f's_and_b32 {s(sT8)}, {s(sHG)}, 1' if not o.get('newshare') else f's_lshr_b32 {s(sT8)}, {s(sHG)}, 2'}
    """)
    srdc(rWKV, 16384)
    srdc(rGATE, 1024)
    a(f"""
    s_cmp_eq_u32 {s(sT8)}, 0
    s_waitcnt lgkmcnt(0)
    s_cselect_b32 {s(rWKV)}, {s(pWK)}, {s(pWV)}
    s_cselect_b32 {s(rWKV+1)}, {s(pWK+1)}, {s(pWV+1)}
    """)
    srd(rX, pX)
    if o.get('probe'):
        a("s_mov_b32 s14, s88")
    xk = [56, 60]
    gk = [64, 68]
    wk = [72, 76]
    dk, dg = 24, 28
    a(f"""
    buffer_load_dwordx4 {v(vL16)}, {s(rWKV,4)}, {s(sT9)} offen lds
    buffer_load_dwordx4 {v(vL16)}, {s(rWKV,4)}, {s(sT9)} offen offset:1024 lds
    s_add_u32 m0, {s(sSTG)}, 2048
    """)
    srd(rGATE, pGATE)
    a(f"""
    buffer_load_dwordx4 v10, {s(rX,4)}, {s(sT5)} offen lds
    buffer_load_dwordx4 v11, {s(rX,4)}, {s(sT5)} offen offset:1024 lds
    buffer_load_dwordx4 {v(gk[0],4)}, v9, {s(rGATE,4)}, {s(sT6)} offen
    buffer_load_dwordx4 {v(gk[1],4)}, v9, {s(rGATE,4)}, {s(sT6)} offen offset:64
    """)
    a.c("@INS")
    stamp("start")
    if o['pf']:
        a("s_getpc_b64 s[12:13]")
        a.label("L_pc")
        a(f"""
        s_and_b32 {s(sT0)}, s2, 0xf8
        s_add_u32 {s(sT0)}, {s(sT0)}, {s(sW)}
        s_lshl_b32 {s(sT0)}, {s(sT0)}, 7
        s_min_u32 {s(sT0)}, {s(sT0)}, L_codeend-L_pc-4
        v_mov_b32 v90, {s(sT0)}
        global_load_dword v95, v90, s[12:13]
        """)
    srd(rWS, pWS)
    srdc(rWS, WSN)
    srd(rDBG, pDBG)
    srdc(rDBG, 256)
    srd(rOUT, pOUT)
    srdc(rOUT, 2097152)
    a(f"""
    s_or_b32 {s(sT0)}, s2, {s(sW)}
    s_cbranch_scc1 L_nozero
    v_lshrrev_b32 v90, 1, v6
    v_lshlrev_b32 v90, 8, v90
    v_and_b32 v91, 1, v6
    v_lshl_add_u32 v90, v91, 4, v90
    v_mov_b64 v[16:17], 0
    v_mov_b64 v[18:19], 0
    s_mov_b32 {s(sT0)}, {WS_F}
    buffer_store_dwordx4 v[16:19], v90, {s(rWS,4)}, {s(sT0)} offen sc1
    buffer_store_dwordx4 v[16:19], v90, {s(rWS,4)}, {s(sT0)} offen offset:128 sc1
    """)
    a.label("L_nozero")
    a(f"""
    s_and_b32 {s(sH)}, {s(sW)}, 3
    s_lshr_b32 {s(sTH)}, {s(sW)}, 2
    v_add_u32 {v(vL16H)}, 0x10000, {v(vL16)}
    v_mov_b32 {v(vIDX)}, 0xdddddddd
    s_mov_b32 {s(sVM)}, 0xffff
    s_mov_b32 {s(sVM+1)}, 0xffff
    v_lshrrev_b32 v11, 1, {v(vR)}
    v_xor_b32 v11, v11, {v(vG)}
    v_lshlrev_b32 v11, 4, v11
    v_lshl_add_u32 v11, {v(vR)}, 7, v11
    s_lshl_b32 {s(sT0)}, {s(sTH)}, 12
    s_add_u32 {s(sT0)}, {s(sT0)}, {slot(0)}
    s_add_u32 {s(sT1)}, {s(sT0)}, 2048
    s_lshl_b32 {s(sD0)}, {s(sTH)}, 1
    s_sub_u32 {s(sSQ)}, {s(sSQ)}, {s(sD0)}
    s_cmp_eq_u32 {s(sSQ)}, 0
    s_cselect_b32 {s(sT0)}, {STG + 2048}, {s(sT0)}
    s_cmp_eq_u32 {s(sSQ)}, 1
    s_cselect_b32 {s(sT1)}, {STG + 2048}, {s(sT1)}
    v_add_u32 {v(vXR[0])}, {s(sT0)}, v11
    v_xor_b32 {v(vXR[1])}, 64, {v(vXR[0])}
    v_add_u32 {v(vXS[0])}, {s(sT1)}, v11
    v_xor_b32 {v(vXS[1])}, 64, {v(vXS[0])}
    v_add_u32 v9, {s(sSTG)}, v11
    v_xor_b32 v10, 64, v9
    v_bfe_u32 v11, v6, 2, 2
    v_lshl_add_u32 v11, {v(vG)}, 3, v11
    v_and_b32 v12, 3, v6
    v_lshlrev_b32 v12, 3, v12
    v_lshl_add_u32 v13, v11, 5, v12
    v_add_u32 v13, {s(sSTG)}, v13
    v_lshl_add_u32 v11, v11, 7, v12
    v_bfe_u32 v12, v6, 3, 2
    v_xor_b32 v12, {s(sH)}, v12
    v_lshl_add_u32 v11, v12, 5, v11
    v_add_u32 {v(vWR)}, {8192 + slot(0)}, v11
    s_lshl1_add_u32 {s(sT0)}, {s(sTB)}, {s(sTH)}
    s_lshl_b32 {s(sT0)}, {s(sT0)}, 5
    s_lshl2_add_u32 {s(sT1)}, {s(sHG)}, {s(sH)}
    s_add_u32 {s(sT0)}, {s(sT0)}, {s(sT1)}
    s_lshl_b32 {s(sOOFF)}, {s(sT0)}, 10
    v_mov_b32 {v(vCA)}, {L_CNT}
    v_add_u32 v11, {s(sSTG)}, {v(vL16)}
    v_lshl_add_u32 v12, v6, 2, {s(sSTG)}
    """)
    for i in range(4):
        a(f"v_mov_b32 {v(vEPS+i)}, {H(f2u(EPS))}")
        a(f"v_mov_b32 {v(ONE+i)}, 0x3f803f80")
    a(f"""
    v_mov_b32 {v(cE)}, {H(f2u(-EPS*LOG2E))}
    v_mov_b32 {v(cE+1)}, {H(f2u(-EPS*LOG2E))}
    s_mov_b32 {s(sCL)}, {H(f2u(LOG2E))}
    s_mov_b32 {s(sCL+1)}, {H(f2u(LOG2E))}
    s_mov_b32 {s(sCQ)}, {H(f2u(QSCALE))}
    s_mov_b32 {s(sCQ+1)}, {H(f2u(QSCALE))}
    v_lshrrev_b32 v90, 1, {v(vG)}
    v_mad_u32_u24 v90, v90, 17, {v(vR)}
    v_and_b32 v91, 1, {v(vG)}
    v_lshlrev_b32 v91, 4, v91
    v_lshl_add_u32 v90, v90, 5, v91
    s_mul_i32 {s(sT0)}, {s(sW)}, 1088
    s_add_u32 {s(sT0)}, {s(sT0)}, {L_SCR}
    v_add_u32 {v(vSCR)}, {s(sT0)}, v90
    s_lshl_b32 {s(sT0)}, {s(sW)}, 10
    s_add_u32 {s(sT0)}, {s(sT0)}, {L_PQ}
    v_add_u32 {v(vPQA)}, {s(sT0)}, {v(vL16)}
    s_lshl1_add_u32 {s(sT1)}, {s(sTB)}, {s(sTH)}
    s_lshl_b32 {s(sT1)}, {s(sT1)}, 7
    s_add_u32 {s(sT1)}, {s(sT1)}, {WS_G}
    v_and_b32 v90, 31, v0
    v_lshl_add_u32 {v(vGA)}, v90, 2, {s(sT1)}
    v_lshlrev_b32 {v(vOA)}, 9, {v(vG)}
    v_lshl_add_u32 {v(vOA)}, {v(vR)}, 4, {v(vOA)}
    s_lshr_b32 {s(sT0)}, {s(sH)}, 1
    s_lshl1_add_u32 {s(sT0)}, {s(sOB_)}, {s(sT0)}
    s_lshl1_add_u32 {s(sT0)}, {s(sT0)}, {s(sTH)}
    s_lshl_b32 {s(sT0)}, {s(sT0)}, 14
    s_and_b32 {s(sT1)}, {s(sH)}, 1
    s_lshl_b32 {s(sT1)}, {s(sT1)}, 8
    s_add_u32 {s(sT10)}, {s(sT0)}, {s(sT1)}
    s_lshl_b32 {s(sT0)}, {s(sTH)}, 12
    v_add_u32 {v(vOW[0])}, {s(sT0)}, {v(vL16)}
    """)
    for i in range(0, 16, 2):
        a(f"v_mov_b64 {v(vVa[0]+i,2)}, 0")
    a("s_mov_b32 exec_lo, 0x00110000\ns_mov_b32 exec_hi, 0x00110000")
    for i in range(0, 16, 2):
        a(f"v_mov_b64 {v(vVa[0]+i,2)}, {v(ONE,2)}")
    a("s_mov_b64 exec, -1")
    a(f"""
    s_or_b32 {s(sT0)}, s2, {s(sW)}
    s_waitcnt vmcnt(0) lgkmcnt(0)
    s_cbranch_scc1 L_nogo0
    s_mov_b64 exec, 1
    buffer_store_dword {v(vIDX)}, off, {s(rDBG,4)}, 0 sc1
    s_mov_b64 exec, -1
    """)
    a.label("L_nogo0")
    stamp("kvloads")
    a(f"""
    ds_read_b128 {v(xk[0],4)}, v9 offset:2048
    ds_read_b128 {v(xk[1],4)}, v10 offset:2048
    ds_read_b64_tr_b16 {v(wk[0],2)}, v13
    ds_read_b64_tr_b16 {v(wk[0]+2,2)}, v13 offset:128
    ds_read_b64_tr_b16 {v(wk[1],2)}, v13 offset:1024
    ds_read_b64_tr_b16 {v(wk[1]+2,2)}, v13 offset:1152
    s_cmp_eq_u32 {s(sT8)}, 0
    s_waitcnt lgkmcnt(4)
    {mf16(dg, gk[0], xk[0], '0')}
    {mf16(dg, gk[1], xk[1], dg)}
    s_waitcnt lgkmcnt(0)
    s_cbranch_scc0 L_isV
    {mf16(dk, wk[0], xk[0], '0')}
    {mf16(dk, wk[1], xk[1], dk)}
    s_branch L_kvj
    """)
    a.label("L_isV")
    a(f"""
    {mf16(dk, xk[0], wk[0], '0')}
    {mf16(dk, xk[1], wk[1], dk)}
    """)
    a.label("L_kvj")
    a(f"""
    s_nop 5
    ds_write_b32 v12, {v(dg)} offset:1024
    s_nop 0
    ds_write_b128 v11, {v(dk,4)}
    s_waitcnt lgkmcnt(0)
    """)
    stamp("pre0")
    a("s_barrier")
    stamp("B0")
    stamp("B0c", cyc=True)

    def reads(it):
        L = []
        for ks in range(2):
            b = HB[it % 2] if ks else HA
            L.append(f"ds_read_b128 {v(b,4)}, {v(vXR[ks])}")
            for mt in range(4):
                for u in range(2):
                    L.append(f"ds_read_b64_tr_b16 {v(b+8+4*mt+2*u,2)}, {v(vWR)} offset:{mt*8192+ks*4096+u*512}")
                if mt == 0:
                    L.append(f"ds_read_b128 {v(b+4,4)}, {v(vXS[ks])}")
        if o.get('noread') and it > 1:
            return []
        return L

    def mfmas(it, ks):
        b = HB[it % 2] if ks else HA
        x = [b, b + 4]
        W = [b + 8 + 4 * m for m in range(4)]
        f = (it == 0 and ks == 0)
        L = []
        for sub in range(2):
            L.append(mf16(aQA[sub], W[0], x[sub], '0' if f else aQA[sub]))
        for sub in range(2):
            L.append(mf16(aQB[sub], W[1], x[sub], vEPS if f else aQB[sub]))
        for sub in range(2):
            L.append(mf16(aKB[sub], x[sub], W[2], vEPS if f else aKB[sub]))
        for sub in range(2):
            L.append(mf16(aVB[sub], x[sub], W[3], '0' if f else aVB[sub]))
        if o.get('nomfma') and it > 0:
            return ["s_nop 0"] * 8
        return L

    P = 112
    GP = 144
    a(f"s_cmp_eq_u32 {s(sW)}, {o['pub']}\ns_cbranch_scc0 L_nopub")
    a(f"v_add_u32 v11, {STG}, {v(vL16)}\nv_lshlrev_b32 v12, 2, v6\nv_add_u32 v12, {STG}, v12")
    for i in range(8):
        a(f"ds_read_b128 {v(P+4*i,4)}, v11 offset:{4096*i}")
    for i in range(8):
        a(f"ds_read_b32 {v(GP+i)}, v12 offset:{4096*i+1024}")
    a(f"""
    v_lshrrev_b32 v11, 1, {v(vG)}
    v_lshlrev_b32 v11, 9, v11
    v_lshl_add_u32 v11, {v(vR)}, 4, v11
    v_and_b32 v12, 1, {v(vG)}
    v_lshl_add_u32 v11, v12, 3, v11
    s_lshr_b32 {s(sT0)}, {s(sKVT)}, 5
    s_lshl_b32 {s(sT0)}, {s(sT0)}, 11
    s_and_b32 {s(sT1)}, {s(sKVT)}, 16
    s_lshl_b32 {s(sT1)}, {s(sT1)}, 4
    s_add_u32 {s(sT0)}, {s(sT0)}, {s(sT1)}
    s_lshl_b32 {s(sT1)}, {s(sT8)}, 10
    s_add_u32 {s(sT0)}, {s(sT0)}, {s(sT1)}
    s_lshl_b32 {s(sT1)}, {s(sKVT)}, 2
    s_add_u32 {s(sT1)}, {s(sT1)}, {WS_G}
    v_lshlrev_b32 v12, 2, {v(vR)}
    s_waitcnt lgkmcnt(8)
    """)
    for st_ in (4, 8, 16):
        for i in range(0, 32, 2 * st_):
            a(f"v_pk_add_f32 {v(P+i,2)}, {v(P+i,2)}, {v(P+i+st_,2)}")
            a(f"v_pk_add_f32 {v(P+i+2,2)}, {v(P+i+2,2)}, {v(P+i+st_+2,2)}")
    a(f"""
    s_lshl_b32 {s(sT2)}, {s(sT8)}, {VSCALE.bit_length()-1}
    v_ldexp_f32 {v(P)}, {v(P)}, {s(sT2)}
    v_ldexp_f32 {v(P+1)}, {v(P+1)}, {s(sT2)}
    v_ldexp_f32 {v(P+2)}, {v(P+2)}, {s(sT2)}
    v_ldexp_f32 {v(P+3)}, {v(P+3)}, {s(sT2)}
    v_cvt_pk_bf16_f32 v152, {v(P)}, {v(P+1)}
    v_cvt_pk_bf16_f32 v153, {v(P+2)}, {v(P+3)}
    buffer_store_dwordx2 v[152:153], v11, {s(rWS,4)}, {s(sT0)} offen sc1
    s_waitcnt lgkmcnt(0)
    v_pk_add_f32 {v(GP,2)}, {v(GP,2)}, {v(GP+2,2)}
    v_pk_add_f32 {v(GP+4,2)}, {v(GP+4,2)}, {v(GP+6,2)}
    v_pk_add_f32 {v(GP,2)}, {v(GP,2)}, {v(GP+4,2)}
    v_add_f32 {v(GP)}, {v(GP)}, {v(GP+1)}
    v_mul_f32 {v(GP)}, {H(f2u(-LOG2E))}, {v(GP)}
    v_exp_f32 {v(GP)}, {v(GP)}
    s_nop 0
    v_add_f32 {v(GP)}, 1.0, {v(GP)}
    v_rcp_f32 {v(GP)}, {v(GP)}
    s_mov_b64 exec, 0xffff
    buffer_store_dword {v(GP)}, v12, {s(rWS,4)}, {s(sT1)} offen sc1
    s_mov_b64 exec, -1
    buffer_load_dword v11, off, {s(rDBG,4)}, 0 sc1
    s_cmp_lg_u32 {s(sTB)}, 0
    s_cbranch_scc1 L_nopub
    v_mov_b32 v154, 0
    s_lshl_b32 {s(sT1)}, {s(sHG)}, 7
    s_add_u32 {s(sT1)}, {s(sT1)}, {WS_C3}
    s_mov_b64 exec, 1
    buffer_store_dword v154, v154, {s(rWS,4)}, {s(sT1)} offen sc1
    s_mov_b64 exec, -1
    """)
    a.label("L_nopub")
    n1 = o.get('n1', 12)
    nf = o.get('nf', 6)

    def weave(A, B):
        for i, x in enumerate(A):
            a(x)
            if i < nf:
                for ln in B[i * len(B) // nf:(i + 1) * len(B) // nf]:
                    a(ln)

    EARLY = o.get('early', [6])
    ne = o.get('ne', 20)
    nrd = lambda it: ne if (it - 1 in EARLY or it == 0 and o.get('e0', 0)) else n1
    sig_at = o.get('sig_at', 1)
    if 'D' in o:
        for it in range(8):
            R_ = reads(it)
            M_ = mfmas(it, 0) + mfmas(it, 1)
            dep = [d + 10 * ks for ks in range(2) for d in (2, 3, 5, 5, 7, 7, 9, 9)]
            n, done = 0, -1
            for m_, d in zip(M_, dep):
                while n < min(20, d + 1 + o['D']):
                    a(R_[n])
                    n += 1
                    if n == 20 and it < 7:
                        dl = slot(it + 1) - slot(it)
                        a(f"""
                        s_mov_b32 {s(sT0)}, {H(dl)}
                        s_cmp_eq_u32 {s(sSQ)}, 0
                        s_cselect_b32 {s(sD0)}, 0x1000, {s(sT0)}
                        s_cmp_eq_u32 {s(sSQ)}, 1
                        s_cselect_b32 {s(sD1)}, 0x1000, {s(sT0)}
                        v_add_u32 {v(vWR)}, {s(sT0)}, {v(vWR)}
                        v_add_u32 {v(vXR[0])}, {s(sD0)}, {v(vXR[0])}
                        v_add_u32 {v(vXR[1])}, {s(sD0)}, {v(vXR[1])}
                        v_add_u32 {v(vXS[0])}, {s(sD1)}, {v(vXS[0])}
                        v_add_u32 {v(vXS[1])}, {s(sD1)}, {v(vXS[1])}
                        """)
                if d > done:
                    a(f"s_waitcnt lgkmcnt({n - d - 1})")
                    done = d
                if d == 19 and it < 7 and o.get('eb', 0) and m_ is M_[14]:
                    pend = M_[14:]
                    break
                a(m_)
            else:
                pend = []
            if it == sig_at:
                a(f"""
                s_cmp_eq_u32 {s(sW)}, {o['pub']}
                s_cbranch_scc0 L_nosig1
                s_mov_b32 {s(sCNT)}, {SPIN}
                """)
                a.label("L_go0")
                a(f"""
                s_waitcnt vmcnt(0)
                v_cmp_ne_u32 vcc, 0, v11
                s_sub_u32 {s(sCNT)}, {s(sCNT)}, 1
                s_cbranch_vccnz L_go0d
                buffer_load_dword v11, off, {s(rDBG,4)}, 0 sc1
                s_cbranch_scc0 L_go0
                """)
                a.label("L_go0d")
                flagaddr()
                a(f"""
                v_mov_b32 v12, 1
                s_mov_b64 exec, 1
                buffer_store_dword v12, off, {s(rWS,4)}, {s(sT0)} sc1
                s_mov_b64 exec, -1
                """)
                a.label("L_nosig1")
            if it < 7:
                a("s_barrier")
                stamp(f"B{it+1}")
            for m_ in pend:
                a(m_)
    else:
        for ln in reads(0)[:nrd(0)]:
            a(ln)

        sig_at = o.get('sig_at', 1)
        for it in range(8):
            n_ = nrd(it)
            a(f"s_waitcnt lgkmcnt({n_-10})")
            weave(mfmas(it, 0), reads(it)[n_:])
            if it < 7:
                d = slot(it + 1) - slot(it)
                op = "v_add_u32" if d > 0 else "v_subrev_u32"
                for r_ in (vXR[0], vXR[1], vWR):
                    a(f"{op} {v(r_)}, {abs(d)}, {v(r_)}")
                if it == sig_at:
                    a(f"""
                    s_cmp_eq_u32 {s(sW)}, {o['pub']}
                    s_cbranch_scc0 L_nosig1
                    s_mov_b32 {s(sCNT)}, {SPIN}
                    """)
                    a.label("L_go0")
                    a(f"""
                    s_waitcnt vmcnt(0)
                    v_cmp_ne_u32 vcc, 0, v11
                    s_sub_u32 {s(sCNT)}, {s(sCNT)}, 1
                    s_cbranch_vccnz L_go0d
                    buffer_load_dword v11, off, {s(rDBG,4)}, 0 sc1
                    s_cbranch_scc0 L_go0
                    """)
                    a.label("L_go0d")
                    flagaddr()
                    a(f"""
                    v_mov_b32 v12, 1
                    s_mov_b64 exec, 1
                    buffer_store_dword v12, off, {s(rWS,4)}, {s(sT0)} sc1
                    s_mov_b64 exec, -1
                    """)
                    a.label("L_nosig1")
                a("s_waitcnt lgkmcnt(0)")
                early = it in EARLY
                if early:
                    for ln in mfmas(it, 1):
                        a(ln)
                a("s_barrier")
                stamp(f"B{it+1}")
                if it == 6:
                    stamp("B7c", cyc=True)
                weave(mfmas(it, 1) if not early else [""] * 8, reads(it + 1)[:nrd(it + 1)])
            else:
                a("s_waitcnt lgkmcnt(0)")
                for ln in mfmas(it, 1):
                    a(ln)
    stamp("gemm1")

    def phi(src, dst, tmp):
        for i in range(0, 8, 2):
            a(f"v_pk_fma_f32 {v(tmp+i,2)}, {v(src+i,2)}, {s(sCL,2)}, {v(cE,2)}")
        for i in range(8):
            a(f"v_exp_f32 {v(tmp+i)}, {v(tmp+i)} clamp")
        for i in range(8):
            a(f"v_max_f32 {v(src+i)}, {v(src+i)}, {v(vEPS)}")
        for i in range(0, 8, 2):
            a(f"v_pk_add_f32 {v(src+i,2)}, {v(src+i,2)}, {v(tmp+i,2)}")
        for i in range(4):
            a(f"v_cvt_pk_bf16_f32 {v(dst+i)}, {v(src+2*i)}, {v(src+2*i+1)}")

    PK, VF, TM, DKV, DZ = 56, 60, 64, 72, 76
    a("s_nop 0")
    for i in range(0, 8, 2):
        a(f"v_pk_mul_f32 {v(aQA[0]+i,2)}, {v(aQA[0]+i,2)}, {s(sCQ,2)}")
    for i in range(4):
        a(f"v_cvt_pk_bf16_f32 {v(vQ+i)}, {v(aQA[0]+2*i)}, {v(aQA[0]+2*i+1)}")
    phi(aKB[0], PK, TM)
    for i in range(4):
        a(f"v_cvt_pk_bf16_f32 {v(VF+i)}, {v(aVB[0]+2*i)}, {v(aVB[0]+2*i+1)}")
    a(f"""
    v_permlane16_swap_b32 {v(vQ)}, {v(vQ+2)}
    v_permlane16_swap_b32 {v(vQ+1)}, {v(vQ+3)}
    """)
    a(mf16(DKV, PK, VF, '0'))
    a(mf16(DZ, PK, ONE, '0'))
    phi(aQB[0], vPQ, TM)
    a(f"""
    ds_write_b128 {v(vSCR)}, {v(DKV,4)}
    v_mov_b64 {v(vO,2)}, 0
    v_permlane16_swap_b32 {v(vPQ)}, {v(vPQ+2)}
    v_permlane16_swap_b32 {v(vPQ+1)}, {v(vPQ+3)}
    ds_write_b128 {v(vPQA)}, {v(vPQ,4)}
    s_mov_b32 exec_lo, 0x00010001
    s_mov_b32 exec_hi, 0x00010001
    ds_write_b128 {v(vSCR)}, {v(DZ,4)} offset:512
    s_mov_b64 exec, -1
    """)
    for i in range(2, 10, 2):
        a(f"v_mov_b64 {v(vO+i,2)}, 0")
    a("s_waitcnt lgkmcnt(0)\ns_barrier")
    stamp("X1")

    def tadr(t, off):
        byte = t * 2048 + off
        return (vL16, byte) if byte < 65536 else (vL16H, byte - 65536)

    def rdK(r, t):
        b, off = tadr(t, 0)
        return f"ds_read_b128 {v(r,4)}, {v(b)} offset:{off}"

    def rdV(r, t, blk):
        b, off = tadr(t, 1024 + 256 * blk)
        return f"ds_read_b128 {v(r,4)}, {v(b)} offset:{off}"

    KT = 112
    a("s_setprio 2")
    a(rdK(KT, 0))
    a(rdK(vK[0], 1))
    a(rdK(vK[1], 2))
    a(f"s_mov_b64 exec, {s(sVM,2)}")
    a(rdV(vVa[0], 0, 0))
    a(rdV(vVb[1], 0, 1))
    a(rdV(vVa[1], 1, 0))
    a("s_mov_b64 exec, -1")
    a(f"""
    s_waitcnt lgkmcnt(5)
    {mf32(vS[0], KT, vQ, '0')}
    v_mov_b32 v13, 1
    v_mov_b32 {v(vBIG)}, {H(f2u(2.0**115))}
    s_nop 9
    """)

    def rowmax(S, dst, first_):
        if first_:
            a(f"v_max3_f32 {v(dst)}, {v(S)}, {v(S+1)}, {v(S+2)}")
            a(f"v_max3_f32 {v(dst+1)}, {v(S+3)}, {v(S+4)}, {v(S+5)}")
            rest = list(range(6, 16))
        else:
            rest = list(range(16))
        for n, i in enumerate(rest[::2]):
            d = dst + (n % 2)
            a(f"v_max3_f32 {v(d)}, {v(d)}, {v(S+i)}, {v(S+i+1)}")

    def finish_max(dst, margin):
        a(f"""
        v_max_f32 {v(dst)}, {v(dst)}, {v(dst+1)}
        v_mov_b32 {v(dst+1)}, {v(dst)}
        s_nop 1
        v_permlane32_swap_b32 {v(dst)}, {v(dst+1)}
        v_max_f32 {v(dst)}, {v(dst)}, {v(dst+1)}
        v_sub_f32 {v(vNM)}, {H(f2u(-margin))}, {v(dst)}
        v_mov_b32 {v(vNM+1)}, {v(vNM)}
        """)
        for i in range(2, 16, 2):
            a(f"v_mov_b64 {v(vNM+i,2)}, {v(vNM,2)}")

    rowmax(vS[0], 10, True)
    finish_max(10, MARGIN)
    a("s_nop 1")
    a(mf32(vS[0], KT, vQ, vNM))
    a("s_waitcnt lgkmcnt(0)\ns_nop 9")
    stamp("attn0")
    stamp("attn0c", cyc=True)
    if 'al' in o:
        a(".p2align 3")
        a("s_nop 0\n" * o['al'])
    a("s_setprio 0")

    def ex(r):
        return f"v_exp_f32 {v(r)}, {v(r)}"

    def block(t, prio):
        b = t % 2
        S, Pn = vS[b], vS[1 - b]
        L = [ex(S)]
        if prio:
            L.append("s_setprio 1")
        if t in o['reb']:
            L += [f"v_frexp_exp_i32_f32 v10, {v(vO+8)}",
                  f"v_sub_u32 v10, {1 - o['X']}, v10",
                  f"v_max_i32 v10, 0xffffff88, v10",
                  f"v_cvt_f32_i32 v11, v10",
                  f"v_add_f32 {v(vNM)}, {v(vNM)}, v11",
                  f"v_ldexp_f32 v10, 1.0, v10",
                  f"v_mov_b32 {v(vNM+1)}, {v(vNM)}"]
            L += [f"v_mov_b64 {v(vNM+i,2)}, {v(vNM,2)}" for i in range(2, 16, 2)]
        L.append(ex(S + 1))
        if t > 0:
            L.append(smf(vVb[b], Pn + 8))
        L += [ex(S + i) for i in range(2, 5)]
        if t < 63:
            L.append(mf32(Pn, vK[b], vQ, vNM))
        if t - 1 in o['reb']:
            L += [ex(S + i) for i in range(5, 13)]
            L += [f"v_pk_mul_f32 {v(vO+i,2)}, {v(vO+i,2)}, v[10:11] op_sel_hi:[1,0]" for i in range(0, 10, 2)]
            L += [ex(S + 13), ex(S + 14), smf(vVa[b], S), ex(S + 15)]
            return L
        L += [ex(S + i) for i in range(5, 10)]
        L.append(smf(vVa[b], S))
        L += [ex(S + i) for i in range(10, 16)]
        return L

    OBF = 112
    OAF = 24
    CKP = [26, 42, 50]

    def load_o(dst, base, frm=0, to=8):
        for i in range(frm, to):
            if i == frm or i % 2 == 0:
                a(f"s_add_u32 {s(sT0)}, {s(sT10)}, {base + 4096*(i//2)}")
            a(f"buffer_load_dwordx4 {v(dst+4*i,4)}, {v(vOA)}, {s(rWS,4)}, {s(sT0)} offen offset:{2048*(i%2)} sc1")

    slow = []

    def flagcheck(name, thr, off=0):
        a(f"""
        s_cmp_lt_u32 {s(sT2)}, {thr}
        s_cbranch_scc1 L_spin_{name}
        """)
        a.label(f"L_ok_{name}")
        slow.append((name, thr, off))

    for t in range(0, 64, 2):
        B_ = block(t, True) + block(t + 1, False)
        if t == 62 and o['vb63']:
            B_[4:4] = [f"s_mov_b64 exec, {s(sVM,2)}", rdV(vVb[0], 63, 1), "s_mov_b64 exec, -1"]
        for ln in B_:
            a(ln)
        if t in (12, 28, 54):
            a(f"v_readfirstlane_b32 {s(sT2)}, {v(vF)}")
        a("s_setprio 0" if t < 62 else "s_setprio 2")
        if t == 12:
            flagcheck("kv", 4, 20)
        if t == 28:
            flagcheck("kv2", 4)
        if t == 54:
            flagcheck("s2", 16)

        if t < 62:
            a(f"s_mov_b64 exec, {s(sVM,2)}")
            a(rdV(vVb[0], t + 1, 1))
            a(rdV(vVa[0], t + 2, 0))
            a(rdV(vVb[1], t + 2, 1))
            a(rdV(vVa[1], t + 3, 0))
            a("s_mov_b64 exec, -1")
            a(rdK(vK[0], t + 3))
            if t + 4 < 64:
                a(rdK(vK[1], t + 4))
        elif not o['vb63']:
            a(f"s_mov_b64 exec, {s(sVM,2)}")
            a(rdV(vVb[0], 63, 1))
            a("s_mov_b64 exec, -1")
        if t == 20:
            a(f"buffer_load_dword {v(vGT)}, {v(vGA)}, {s(rWS,4)}, 0 offen sc1")
        if t in (10, 26, 52):
            a(f"ds_read_b32 {v(vF)}, {v(vCA)} offset:{20 if t == 10 else 0}")
        if t == 60 and o['nox5']:
            a(f"ds_read_b32 {v(vF)}, {v(vCA)} offset:16")
        if t in (54, 56, 58, 60):
            k = (t - 54)
            load_o(OBF, WS_OB, k, k + 2)
        a("s_waitcnt lgkmcnt(0)")
        if t in CKP:
            a(f"s_mov_b64 exec, 1\nds_add_u32 {v(vCA)}, v13 offset:{4 + 4*CKP.index(t)}\ns_mov_b64 exec, -1")
    a(smf(vVb[0], vS[1] + 8))
    stamp("attn1c", cyc=True)
    stamp("attn1")
    vRW, vRR, vOUT = [12, 165, 166, 167], 13, 6
    a(f"""
    s_waitcnt vmcnt(8)
    v_mul_f32 v8, {H(f2u(2.0**-VSCALE))}, {v(vGT)}
    s_mov_b32 {s(sT2)}, {H(f2u(2.0**-99))}
    s_mov_b32 {s(sT3)}, {H(f2u(2.0**64))}
    v_add_u32 {v(vOW[1])}, 0x10000, {v(vOW[0])}
    v_add_u32 {v(vOW[2])}, 0x20000, {v(vOW[0])}
    s_add_u32 {s(sT0)}, {s(sOOFF)}, {WS_OA}
    s_nop 4
    """)
    a(f"""
    v_rcp_f32 v10, {v(vO+8)}
    v_add_f32 v9, |{v(vO)}|, |{v(vO+1)}|
    v_add_f32 v11, |{v(vO+2)}|, |{v(vO+3)}|
    v_add_f32 v9, v9, |{v(vO+4)}|
    v_add_f32 v11, v11, |{v(vO+5)}|
    v_add_f32 v9, v9, |{v(vO+6)}|
    v_add_f32 v11, v11, |{v(vO+7)}|
    v_add_f32 v9, v9, v11
    v_cmp_ngt_f32 {s(sSV,2)}, {s(sT3)}, {v(vO+8)}
    v_med3_f32 v11, v9, {s(sT2)}, {v(vBIG)}
    v_cmp_neq_f32 vcc, v9, v11
    v_mul_f32 v10, v10, v8
    s_or_b64 vcc, vcc, {s(sSV,2)}
    s_cbranch_vccnz L_fallback
    """)
    a.label("L_norm")
    for i in range(0, 8, 2):
        a(f"v_pk_mul_f32 {v(vO+i,2)}, {v(vO+i,2)}, v[10:11] op_sel_hi:[1,0]")
    for i in range(4):
        a(f"v_cvt_pk_bf16_f32 {v(vQ+i)}, {v(vO+2*i)}, {v(vO+2*i+1)}")
    a(f"buffer_store_dwordx4 {v(vQ,4)}, {v(vL16)}, {s(rWS,4)}, {s(sT0)} offen sc1")
    if o['nox5']:
        a(f"v_readfirstlane_b32 {s(sT2)}, {v(vF)}\ns_setprio {o.get('tp', 0)}")
        flagcheck("w", 4, 16)
    else:
        a("s_barrier")
    stamp("X5")

    acc = [144, 148, 152, 156]
    WR = [56, 72, 88]

    def rdW(st_):
        L = []
        b = wbase(st_)
        for ct in range(4):
            L.append(f"ds_read_b128 {v(WR[st_%3]+4*ct,4)}, {v(vOW[b >> 16])} offset:{(b & 0xffff) + 1024*ct}")
        return L

    def chk(F, lab):
        a(f"""
        v_max3_u32 v9, {v(F)}, {v(F+1)}, {v(F+2)}
        v_max_u32 v9, v9, {v(F+3)}
        v_cmp_eq_u32 vcc, -1, v9
        s_nop 0
        s_cbranch_vccnz {lab}
        """)

    for ln in rdW(0) + rdW(1):
        a(ln)
    a(f"s_mov_b32 {s(sCNT)}, {SPIN}\ns_waitcnt vmcnt(1)")
    a.label("L_chkB")
    a(f"v_max3_u32 v9, {v(OBF)}, {v(OBF+1)}, {v(OBF+2)}")
    a(f"v_max_u32 v9, v9, {v(OBF+3)}")
    for i in range(4, 32, 2):
        a(f"v_max3_u32 v9, v9, {v(OBF+i)}, {v(OBF+i+1)}")
    a("v_cmp_eq_u32 vcc, -1, v9\ns_nop 0\ns_cbranch_vccnz L_reB")
    a.label("L_okB")
    sMK = sT5
    a(f"s_mov_b32 {s(sMK)}, 0")
    nld = 0
    for st_ in range(16):
        F = (OBF if st_ < 8 else OAF) + 4 * (st_ % 8)
        if st_ >= 8:
            a.label(f"L_try{st_}")
            a(f"s_waitcnt vmcnt({15-st_})")
            chk(F, f"L_re{st_}")
            a.label(f"L_go{st_}")
        a(f"s_waitcnt lgkmcnt({4 if st_ < 15 else 0})")
        R_ = rdW(st_ + 2) if st_ + 2 < 16 else []
        for ct in range(4):
            a(mf16(acc[ct], WR[st_ % 3] + 4 * ct, F, '0' if st_ == 0 else acc[ct]))
            for ln in R_[ct * len(R_) // 4:(ct + 1) * len(R_) // 4]:
                a(ln)
        if st_ >= 8:
            a.label(f"L_nx{st_}")
        if st_ == 1:
            a(f"""
            s_lshl1_add_u32 {s(sT0)}, {s(sH)}, {s(sTH)}
            s_lshl_b32 {s(sT0)}, {s(sT0)}, 12
            v_bfe_u32 v9, v0, 5, 1
            v_xor_b32 v9, v9, v0
            v_and_b32 v9, 7, v9
            v_lshl_add_u32 v9, v9, 4, {s(sT0)}
            v_and_b32 v10, 31, v0
            v_lshl_add_u32 {v(vRW[0])}, v10, 7, v9
            """)
        if st_ == 2:
            a(f"""
            v_xor_b32 {v(vRW[1])}, 32, {v(vRW[0])}
            v_xor_b32 {v(vRW[2])}, 64, {v(vRW[0])}
            v_xor_b32 {v(vRW[3])}, 0x60, {v(vRW[0])}
            v_bfe_u32 v9, v0, 3, 3
            v_and_b32 v10, 7, v0
            v_xor_b32 v11, v9, v10
            """)
        if st_ == 3:
            a(f"""
            s_lshl3_add_u32 {s(sT0)}, {s(sH)}, {s(sTH)}
            s_lshl_b32 {s(sT0)}, {s(sT0)}, 10
            v_lshlrev_b32 v10, 4, v10
            v_lshl_add_u32 {v(vOUT)}, v9, 10, v10
            v_lshl_add_u32 v11, v11, 4, {s(sT0)}
            v_lshl_add_u32 {v(vRR)}, v9, 7, v11
            """)
        if st_ == o.get('midb', 7):
            a("s_barrier")
        if st_ in o['oa']:
            load_o(OAF, WS_OA, nld, nld + o['oa'][st_])
            nld += o['oa'][st_]
        if st_ == 7:
            stamp("Bpart")
    if o['defer']:
        a(f"s_cmp_lg_u32 {s(sMK)}, 0\ns_cbranch_scc1 L_def")
        a.label("L_defd")
    stamp("outmm")
    a(f"""
    s_lshl_b32 {s(sT0)}, {s(sOB_)}, 16
    s_lshl1_add_u32 {s(sT1)}, {s(sH)}, {s(sTH)}
    s_lshl_b32 {s(sT1)}, {s(sT1)}, 13
    s_add_u32 {s(sT0)}, {s(sT0)}, {s(sT1)}
    s_lshl_b32 {s(sT1)}, {s(sOC)}, 7
    ds_write_b128 {v(vRW[0])}, {v(acc[0],4)}
    ds_write_b128 {v(vRW[1])}, {v(acc[1],4)}
    ds_write_b128 {v(vRW[2])}, {v(acc[2],4)}
    ds_write_b128 {v(vRW[3])}, {v(acc[3],4)}
    s_add_u32 {s(sT0)}, {s(sT0)}, {s(sT1)}
    s_waitcnt lgkmcnt(0)
    s_barrier
    ds_read_b128 v[24:27], {v(vRR)}
    ds_read_b128 v[32:35], {v(vRR)} offset:4096
    ds_read_b128 v[28:31], {v(vRR)} offset:2048
    ds_read_b128 v[36:39], {v(vRR)} offset:6144
    s_waitcnt lgkmcnt(2)
    v_pk_add_f32 v[24:25], v[24:25], v[32:33]
    v_pk_add_f32 v[26:27], v[26:27], v[34:35]
    v_cvt_pk_bf16_f32 v40, v24, v25
    v_cvt_pk_bf16_f32 v41, v26, v27
    s_waitcnt lgkmcnt(0)
    v_pk_add_f32 v[28:29], v[28:29], v[36:37]
    v_pk_add_f32 v[30:31], v[30:31], v[38:39]
    v_cvt_pk_bf16_f32 v42, v28, v29
    v_cvt_pk_bf16_f32 v43, v30, v31
    buffer_store_dwordx4 v[40:43], {v(vOUT)}, {s(rOUT,4)}, {s(sT0)} offen {o['outmod']}
    """)
    if diag:
        a("s_waitcnt vmcnt(0)")
        stamp("end")
        a(f"v_writelane_b32 {v(vST)}, {s(sCNT)}, 63")
        dump()
    if o.get('probe') and not o['probe'].startswith('H'):
        pad()
    a.label("L_end")
    a("s_endpgm")

    a.label("L_reB")
    load_o(OBF, WS_OB)
    a(f"""
    s_sub_u32 {s(sCNT)}, {s(sCNT)}, 1
    s_cmp_eq_u32 {s(sCNT)}, 0
    s_waitcnt vmcnt(0)
    s_cbranch_scc0 L_chkB
    s_branch L_okB
    """)
    if o['defer']:
        for st_ in range(8, 16):
            a.label(f"L_re{st_}")
            a(f"s_bitset1_b32 {s(sMK)}, {st_}")
            load_o(OAF, WS_OA, st_ - 8, st_ - 7)
            for ln in (rdW(st_ + 2) if st_ + 2 < 16 else []):
                a(ln)
            a(f"s_branch L_nx{st_}")
        a.label("L_def")
        a(f"s_sub_u32 {s(sCNT)}, {s(sCNT)}, 1\ns_waitcnt vmcnt(0) lgkmcnt(0)")
        for st_ in range(8, 16):
            F = OAF + 4 * (st_ - 8)
            a(f"s_bitcmp0_b32 {s(sMK)}, {st_}\ns_cbranch_scc1 L_dn{st_}")
            for ln in rdW(st_):
                a(ln)
            a(f"s_cmp_eq_u32 {s(sCNT)}, 0\ns_cbranch_scc1 L_dg{st_}")
            chk(F, f"L_dr{st_}")
            a.label(f"L_dg{st_}")
            a(f"s_bitset0_b32 {s(sMK)}, {st_}\ns_waitcnt lgkmcnt(0)")
            for ct in range(4):
                a(mf16(acc[ct], WR[st_ % 3] + 4 * ct, F, acc[ct]))
            a(f"s_branch L_dn{st_}")
            a.label(f"L_dr{st_}")
            load_o(OAF, WS_OA, st_ - 8, st_ - 7)
            a.label(f"L_dn{st_}")
        a(f"s_cmp_lg_u32 {s(sMK)}, 0\ns_cbranch_scc1 L_def\ns_branch L_defd")
    for st_ in range(8, 16) if not o['defer'] else []:
        a.label(f"L_re{st_}")
        a(f"""
        s_cmp_eq_u32 {s(sCNT)}, 0
        s_cbranch_scc1 L_go{st_}
        s_sub_u32 {s(sCNT)}, {s(sCNT)}, 1
        s_waitcnt vmcnt(0)
        """)
        load_o(OAF, WS_OA, st_ - 8, 8)
        a(f"s_branch L_try{st_}")
    for name, thr, off in slow:
        a.label(f"L_spin_{name}")
        if diag:
            a(f"s_mov_b32 {s(sT2)}, 1\nv_writelane_b32 {v(vST)}, {s(sT2)}, {37 + ['kv', 's2', 'w', 'kv2'].index(name)}")
        a(f"s_mov_b32 {s(sCNT)}, {SPIN*16}")
        a.label(f"L_spin2_{name}")
        a(f"""
        ds_read_b32 {v(vF)}, {v(vCA)} offset:{off}
        s_sub_u32 {s(sCNT)}, {s(sCNT)}, 1
        s_cmp_eq_u32 {s(sCNT)}, 0
        s_cbranch_scc1 L_ok_{name}
        s_waitcnt lgkmcnt(0)
        v_readfirstlane_b32 {s(sT2)}, {v(vF)}
        s_nop 0
        s_cmp_lt_u32 {s(sT2)}, {thr}
        s_cbranch_scc1 L_spin2_{name}
        s_branch L_ok_{name}
        """)

    a.label("L_fallback")
    a.c("true row max, then the same accumulation, K/V read from the global image")
    a(f"""
    v_mov_b32 v10, 0xff800000
    v_mov_b32 v11, 0xff800000
    s_mov_b32 {s(sT0)}, 0
    """)
    a.label("L_fb1")
    a(f"""
    buffer_load_dwordx4 {v(vK[0],4)}, {v(vL16)}, {s(rWS,4)}, {s(sT0)} offen sc1
    s_waitcnt vmcnt(0)
    {mf32(vS[0], vK[0], vQ, '0')}
    s_nop 11
    """)
    rowmax(vS[0], 10, False)
    a(f"""
    s_add_u32 {s(sT0)}, {s(sT0)}, 2048
    s_cmp_lt_u32 {s(sT0)}, 131072
    s_cbranch_scc1 L_fb1
    """)
    finish_max(10, 0.0)
    for i in range(0, 16, 2):
        a(f"v_mov_b64 {v(vO+i,2)}, 0")
    a(f"s_mov_b32 {s(sT0)}, 0")
    a.label("L_fb2")
    a(f"""
    buffer_load_dwordx4 {v(vK[0],4)}, {v(vL16)}, {s(rWS,4)}, {s(sT0)} offen sc1
    s_mov_b64 exec, {s(sVM,2)}
    buffer_load_dwordx4 {v(vVa[0],4)}, {v(vL16)}, {s(rWS,4)}, {s(sT0)} offen offset:1024 sc1
    buffer_load_dwordx4 {v(vVb[0],4)}, {v(vL16)}, {s(rWS,4)}, {s(sT0)} offen offset:1280 sc1
    s_mov_b64 exec, -1
    s_waitcnt vmcnt(0)
    {mf32(vS[0], vK[0], vQ, vNM)}
    s_nop 11
    """)
    for i in range(16):
        a(ex(vS[0] + i))
    a(f"""
    s_nop 1
    {smf(vVa[0], vS[0])}
    {smf(vVb[0], vS[0]+8)}
    s_add_u32 {s(sT0)}, {s(sT0)}, 2048
    s_cmp_lt_u32 {s(sT0)}, 131072
    s_nop 7
    s_cbranch_scc1 L_fb2
    s_nop 15
    v_rcp_f32 v10, {v(vO+8)}
    s_add_u32 {s(sT0)}, {s(sOOFF)}, {WS_OA}
    v_mul_f32 v10, v10, v8
    s_branch L_norm
    """)

    a(".p2align 6")
    a.c("@H0")
    a.label("L_helper")
    hX0, hX1 = 16, 17
    hW = [18, 19, 20, 21]
    a(f"""
    s_sub_u32 {s(sI)}, {s(sW)}, 8
    s_lshl{1 if nb != 1 else 2}_add_u32 {s(sCH)}, {s(sT3 if nb < 3 else sT2)}, {s(sT2 if nb < 3 else sT3)}
    {f's_add_u32 {s(sCH)}, {s(sT3)}, {s(sT2)}' if o.get('G', 4) < 8 else ''}
    s_and_b32 {s(sCH)}, {s(sCH)}, {o.get('rotmask', 7) & (o.get('G', 4) - 1)}
    s_lshl2_add_u32 {s(sT8)}, {s(sTB)}, {s(sI)}
    s_lshl_b32 {s(sT8)}, {s(sT8)}, 14
    v_add_u32 {v(hX0)}, {s(sT8)}, v10
    v_xor_b32 {v(hX1)}, 64, {v(hX0)}
    v_add_u32 {v(hX1)}, 7168, {v(hX1)}
    s_max_u32 {s(sT0)}, {s(sI)}, 1
    s_sub_u32 {s(sT0)}, {s(sT0)}, 1
    s_lshl_b32 {s(sT1)}, {s(sI)}, 2
    s_lshr_b32 {s(sT1)}, {(xq << 4) + (xk_ << 8) + (xk_ << 12)}, {s(sT1)}
    s_and_b32 {s(sT1)}, {s(sT1)}, 7
    s_xor_b32 {s(sT1)}, {s(sT1)}, {s(sHG)}
    s_lshl3_add_u32 {s(sT0)}, {s(sT0)}, {s(sT1)}
    s_lshl_b32 {s(sT0)}, {s(sT0)}, 7
    s_lshl_b32 {s(sT9)}, {s(sI)}, 11
    s_lshl_b32 {s(sT10)}, {s(sI)}, 13
    s_mov_b32 {s(rW1+3)}, 0x20000
    s_cmp_eq_u32 {s(sI)}, 0
    s_cselect_b32 {s(sSTR)}, 1, 3
    s_lshl_b32 {s(rW1+2)}, {s(sSTR)}, 19
    s_lshl_b32 {s(sWSTEP)}, {s(sSTR)}, 15
    s_lshl_b32 {s(sSTR)}, {s(sSTR)}, 10
    v_bfe_u32 v9, v6, 4, 1
    v_lshlrev_b32 v9, 1, v9
    v_xor_b32 v9, v9, v11
    v_lshl_add_u32 v9, v9, 4, {s(sT0)}
    v_mad_u32_u24 {v(hW[0])}, v12, {s(sSTR)}, v9
    s_lshl_b32 {s(sT1)}, {s(sSTR)}, 3
    s_sub_u32 {s(sT1)}, {s(sT1)}, 1024
    v_xor_b32 {v(hW[1])}, 64, {v(hW[0])}
    v_add_u32 {v(hW[1])}, {s(sT1)}, {v(hW[1])}
    s_lshl_b32 {s(sT1)}, {s(sT1)}, 1
    v_add_u32 {v(hW[2])}, {s(sT1)}, {v(hW[0])}
    v_add_u32 {v(hW[3])}, {s(sT1)}, {v(hW[1])}
    {f's_lshr_b32 {s(sT1)}, {s(sHG)}, 1' if not o.get('newshare') else f's_and_b32 {s(sT1)}, {s(sHG)}, 3'}
    s_cmp_eq_u32 {s(sI)}, {s(sT1)}
    s_cselect_b64 vcc, 1, 0
    s_cmp_eq_u32 {s(sI)}, 0
    s_waitcnt lgkmcnt(0)
    s_cselect_b32 {s(rW1)}, {s(pWQ)}, {s(pWQKV)}
    s_cselect_b32 {s(rW1+1)}, {s(pWQ+1)}, {s(pWQKV+1)}
    """)
    srd(rX, pX)
    if o.get('probe'):
        a("s_mov_b32 s14, s88")

    def dma_chunk(it):
        sl = slot(it)
        a(f"""
        s_lshl_b32 {s(sOX)}, {s(sCH)}, 7
        s_add_u32 m0, {s(sT9)}, {sl}
        s_lshl_b32 {s(sOW)}, {s(sCH)}, 1
        s_cbranch_vccnz L_sx{it}
        buffer_load_dwordx4 {v(hX0)}, {s(rX,4)}, {s(sOX)} offen {o['dm']} lds
        buffer_load_dwordx4 {v(hX1)}, {s(rX,4)}, {s(sOX)} offen offset:1024 {o['dm']} lds
        L_sx{it}:
        s_add_u32 m0, {s(sT10)}, {sl+8192}
        s_mul_i32 {s(sOW)}, {s(sOW)}, {s(sWSTEP)}
        """)
        for i in range(4):
            a(f"buffer_load_dwordx4 {v(hW[i])}, {s(rW1,4)}, {s(sOW)} offen offset:{1024*i} {o['dm']} lds")
        a(f"""
        s_add_u32 m0, {s(sT10)}, {sl+8192+4096}
        s_add_u32 {s(sOW)}, {s(sOW)}, {s(sWSTEP)}
        """)
        for i in range(4):
            a(f"buffer_load_dwordx4 {v(hW[i])}, {s(rW1,4)}, {s(sOW)} offen offset:{1024*i} {o['dm']} lds")
        G_ = o.get('G', 4)
        a(f"s_add_u32 {s(sCH)}, {s(sCH)}, 1\ns_and_b32 {s(sCH)}, {s(sCH)}, {G_ - 1}")
        if G_ < 8:
            a(f"s_or_b32 {s(sCH)}, {s(sCH)}, {((it + 1) // G_ * G_) & 7}")

    stamp("Hstart")
    dma_chunk(0)
    a(f"""
    v_mov_b32 {v(vCA)}, {L_CNT}
    v_mov_b64 v[28:29], 0
    v_mov_b64 v[30:31], 0
    ds_write_b128 {v(vCA)}, v[28:31]
    ds_write_b128 {v(vCA)}, v[28:31] offset:16
    s_xor_b32 {s(sHK)}, {s(sHG)}, {xk_}
    s_xor_b32 {s(sHQ)}, {s(sHG)}, {xq}
    """)
    srd(rWS, pWS)
    srdc(rWS, WSN)
    srd(rDBG, pDBG)
    srdc(rDBG, 256)
    a(f"""
    s_bitcmp1_b32 s2, 4
    s_cselect_b32 {s(rWO)}, {s(pWO)}, {s(pBWO)}
    s_cselect_b32 {s(rWO+1)}, {s(pWO+1)}, {s(pBWO+1)}
    """)
    srdc(rWO, 524288)
    a.c("@H1")
    stamp("Hiss0")
    dma_chunk(1)
    a.c("@H2")
    stamp("Hiss1")
    hPA, hPV = 24, 25
    hA, hB, hL4, hL1, hKF, hTD, hTR, hP3 = 26, 27, 104, 105, 106, 107, 108, 109
    a(f"""
    v_lshrrev_b32 {v(hPA)}, 1, v6
    v_lshlrev_b32 {v(hPA)}, 8, {v(hPA)}
    v_and_b32 v22, 1, v6
    v_lshl_add_u32 {v(hPA)}, v22, 4, {v(hPA)}
    v_add_u32 {v(hPA)}, {WS_F}, {v(hPA)}
    s_mul_i32 {s(sT0)}, {s(sI)}, 1088
    s_add_u32 {s(sT0)}, {s(sT0)}, {L_SCR}
    v_add_u32 {v(hA)}, {s(sT0)}, {v(vL16)}
    s_lshl_b32 {s(sT0)}, {s(sI)}, 10
    s_add_u32 {s(sT0)}, {s(sT0)}, {L_PQ}
    v_add_u32 {v(hB)}, {s(sT0)}, {v(vL16)}
    v_and_b32 v22, 31, v6
    v_lshlrev_b32 {v(hL4)}, 2, v22
    v_lshrrev_b32 v23, 5, v6
    v_mul_u32_u24 {v(hL1)}, {16*4352}, v23
    v_lshl_add_u32 {v(hL1)}, v22, 3, {v(hL1)}
    v_min_u32 v22, 16, v22
    v_mad_u32_u24 v22, v23, 17, v22
    v_lshlrev_b32 {v(hKF)}, 4, v22
    v_lshlrev_b32 {v(hTD)}, 4, v11
    v_lshl_add_u32 {v(hTD)}, v12, 10, {v(hTD)}
    v_bfe_u32 v22, v6, 2, 3
    v_lshl_add_u32 v22, v23, 4, v22
    v_and_b32 v23, 3, v6
    v_lshlrev_b32 v23, 3, v23
    v_lshl_add_u32 v22, v22, 7, v23
    v_add_u32 {v(hTR)}, {L_TS}, v22
    s_lshl_b32 {s(sT0)}, {s(sHQ)}, 7
    s_add_u32 {s(sT0)}, {s(sT0)}, {WS_C3}
    v_mov_b32 {v(hP3)}, {s(sT0)}
    v_mov_b32 v10, 1
    v_mov_b32 v14, 16
    s_waitcnt vmcnt(10) lgkmcnt(0)
    s_cbranch_vccz L_w0
    s_waitcnt vmcnt(8)
    L_w0:
    v_mov_b64 v[28:29], -1
    v_mov_b64 v[30:31], -1
    """)
    stamp("Hpre0")
    a(f"""
    s_barrier
    """)
    lag = o.get('lag', 0)
    if lag:
        a(f"s_cmp_ge_u32 {s(sI)}, {4 - lag}\ns_cbranch_scc1 L_lag")
    for it in range(7):
        if it + 2 <= 7:
            dma_chunk(it + 2)
            a(f"s_waitcnt vmcnt(10)\ns_cbranch_vccz L_w{it+1}\ns_waitcnt vmcnt(8)\nL_w{it+1}:")
        else:
            a(f"buffer_load_dwordx4 v[100:103], {v(hPA)}, {s(rWS,4)}, 0 offen sc1")
            a("s_waitcnt vmcnt(1)")
        a("s_barrier")
    if lag:
        a("s_branch L_lagd")
        a.label("L_lag")
        a("s_setprio 1")
        for it in range(7):
            if it >= 1:
                dma_chunk(it + 1)
            if it == 6:
                a(f"buffer_load_dwordx4 v[100:103], {v(hPA)}, {s(rWS,4)}, 0 offen sc1")
            a(f"s_waitcnt vmcnt({1 if it == 6 else 0})\ns_barrier")
        a.label("L_lagd")
    a(f"s_setprio {o['hprio']}")

    def gpoll(name, addr, off, thr, pre=False, sleep=0, r=rDBG):
        a(f"s_mov_b32 {s(sCNT)}, {SPIN}")
        if pre:
            a(f"s_branch L_gc_{name}")
        a.label(f"L_gp_{name}")
        if sleep:
            a(f"s_sleep {sleep}")
        a(f"""
        buffer_load_dword{'x4 v[100:103]' if thr == 1 else ' ' + v(hPV)}, {v(addr)}, {s(r,4)}, 0 offen offset:{off} sc1
        s_sub_u32 {s(sCNT)}, {s(sCNT)}, 1
        s_cmp_eq_u32 {s(sCNT)}, 0
        s_cbranch_scc1 L_gd_{name}
        """)
        a.label(f"L_gc_{name}")
        a(f"""
        s_waitcnt vmcnt(0)
        {f'v_min3_u32 {v(hPV)}, v100, v101, v102' if thr == 1 else ''}
        {f'v_min_u32 {v(hPV)}, {v(hPV)}, v103' if thr == 1 else ''}
        v_cmp_gt_u32 vcc, {thr}, {v(hPV)}
        s_nop 0
        s_cbranch_vccnz L_gp_{name}
        """)
        a.label(f"L_gd_{name}")

    def lpoll(name, off, thr):
        a(f"s_mov_b32 {s(sCNT)}, {SPIN*4}")
        a.label(f"L_lp_{name}")
        a(f"""
        s_sleep {o.get('lsl', 16)}
        ds_read_b32 v9, {v(vCA)} offset:{off}
        s_sub_u32 {s(sCNT)}, {s(sCNT)}, 1
        s_cmp_eq_u32 {s(sCNT)}, 0
        s_cbranch_scc1 L_lp_{name}d
        s_waitcnt lgkmcnt(0)
        v_readfirstlane_b32 {s(sT1)}, v9
        s_nop 0
        s_cmp_lt_u32 {s(sT1)}, {thr}
        s_cbranch_scc1 L_lp_{name}
        """)
        a.label(f"L_lp_{name}d")

    gpoll("s1", hPA, 0, 1, pre=True, sleep=2, r=rWS)
    stamp("Hs1")

    def kv_group(G):
        a(f"s_add_u32 {s(sT0)}, {s(sT8)}, {16384*G}\ns_mov_b32 m0, {s(sT0)}\ns_nop 0")
        for i in range(4):
            a(f"buffer_load_dwordx4 {v(vL16)}, {s(rWS,4)}, {s(sT0)} offen offset:{1024*i} sc1 lds")

    a(f"s_lshl_b32 {s(sT8)}, {s(sI)}, 12")
    npre = o.get('npre', 2)
    for G in range(npre):
        kv_group(G)
    a(f"""
    s_waitcnt vmcnt({4*(npre-2)})
    s_barrier
    """)
    stamp("HX1")
    hPQ = [32, 36]
    hS = [40, 44, 48, 52]
    hG = [56, 57]
    a(f"""
    ds_read_b128 {v(hS[0],4)}, {v(hA)}
    ds_read_b128 {v(hS[1],4)}, {v(hA)} offset:4352
    ds_read_b128 {v(hS[2],4)}, {v(hA)} offset:1024
    ds_read_b128 {v(hS[3],4)}, {v(hA)} offset:5376
    ds_read_b128 {v(hPQ[0],4)}, {v(hB)}
    ds_read_b128 {v(hPQ[1],4)}, {v(hB)} offset:4096
    """)
    for G in range(npre, 8):
        kv_group(G)
        if G == 5:
            a(f"s_mov_b64 exec, 1\ns_waitcnt vmcnt(8)\nds_add_u32 {v(vCA)}, v10 offset:20\ns_mov_b64 exec, -1")
    a(f"""
    s_lshl_b32 {s(sT0)}, {s(sTB)}, 8
    s_add_u32 {s(sT0)}, {s(sT0)}, {WS_G}
    buffer_load_dword {v(hG[0])}, {v(hL4)}, {s(rWS,4)}, {s(sT0)} offen sc1
    buffer_load_dword {v(hG[1])}, {v(hL4)}, {s(rWS,4)}, {s(sT0)} offen offset:128 sc1
    s_lshl_b32 {s(sT0)}, {s(sTB)}, 6
    s_lshl2_add_u32 {s(sT1)}, {s(sHG)}, {s(sI)}
    s_add_u32 {s(sT0)}, {s(sT0)}, {s(sT1)}
    s_lshl_b32 {s(sOOFF)}, {s(sT0)}, 10
    """)
    for base in (WS_OA, WS_OA + 32768, WS_OB, WS_OB + 32768):
        if base == WS_OB:
            a(f"s_xor_b32 {s(sOOFF)}, {s(sOOFF)}, {4096*xq}")
        a(f"s_add_u32 {s(sT0)}, {s(sOOFF)}, {base}")
        a(f"buffer_store_dwordx4 v[28:31], {v(vL16)}, {s(rWS,4)}, {s(sT0)} offen sc1")
    a(f"""
    s_lshl_b32 {s(sT0)}, {s(sHK)}, 5
    s_add_u32 {s(sT0)}, {s(sT0)}, {s(sTB)}
    s_lshl2_add_u32 {s(sT0)}, {s(sT0)}, {s(sI)}
    s_mul_i32 {s(sT0)}, {s(sT0)}, 1088
    s_add_u32 {s(sT0)}, {s(sT0)}, {WS_KVP}
    s_waitcnt lgkmcnt(0)
    v_pk_add_f32 {v(hS[0],2)}, {v(hS[0],2)}, {v(hS[1],2)}
    v_pk_add_f32 {v(hS[0]+2,2)}, {v(hS[0]+2,2)}, {v(hS[1]+2,2)}
    v_pk_add_f32 {v(hS[2],2)}, {v(hS[2],2)}, {v(hS[3],2)}
    v_pk_add_f32 {v(hS[2]+2,2)}, {v(hS[2]+2,2)}, {v(hS[3]+2,2)}
    buffer_store_dwordx4 {v(hS[0],4)}, {v(vL16)}, {s(rWS,4)}, {s(sT0)} offen sc1
    s_mov_b64 exec, 15
    buffer_store_dwordx4 {v(hS[2],4)}, {v(vL16)}, {s(rWS,4)}, {s(sT0)} offen offset:1024 sc1
    s_mov_b64 exec, -1
    s_cmp_eq_u32 {s(sI)}, 1
    s_cbranch_scc0 L_notr
    s_and_b32 {s(sT0)}, s2, 1
    s_lshl_b32 {s(sT0)}, {s(sT0)}, 3
    s_bfe_u32 {s(sT1)}, s2, 0x30001
    s_add_u32 {s(sT0)}, {s(sT0)}, {s(sT1)}
    s_lshl_b32 {s(sT0)}, {s(sT0)}, 8
    s_lshr_b32 {s(sT1)}, s2, 5
    s_add_u32 {s(sT0)}, {s(sT0)}, {s(sT1)}
    s_lshl_b32 {s(sT0)}, {s(sT0)}, 7
    """)
    for q in range(4):
        a(f"s_mov_b32 m0, {L_TS + 1024*q}")
        a(f"s_add_u32 {s(sT0)}, {s(sT0)}, {8192 if q else 0}")
        a(f"buffer_load_dwordx4 {v(hTD)}, {s(rWO,4)}, {s(sT0)} offen lds")
    a(f"s_lshl_b32 {s(sT0)}, s2, 12\ns_add_u32 {s(sT0)}, {s(sT0)}, {WS_WT}\ns_waitcnt vmcnt(0)")
    for ct in range(4):
        for u in range(2):
            a(f"ds_read_b64_tr_b16 {v(64+4*ct+2*u,2)}, {v(hTR)} offset:{32*ct + 1024*u}")
    a("s_waitcnt lgkmcnt(0)")
    for ct in range(4):
        a(f"buffer_store_dwordx4 {v(64+4*ct,4)}, {v(vL16)}, {s(rWS,4)}, {s(sT0)} offen offset:{1024*ct} sc1")
    a.label("L_notr")
    a(f"""
    s_mov_b64 exec, 1
    s_waitcnt vmcnt(0)
    ds_add_rtn_u32 v12, {v(vCA)}, v10
    """)
    flagaddr()
    a(f"""
    s_waitcnt lgkmcnt(0)
    v_readfirstlane_b32 {s(sT1)}, v12
    s_nop 0
    s_cmp_eq_u32 {s(sT1)}, 3
    s_cbranch_scc0 L_nosig2
    buffer_store_dword v10, off, {s(rWS,4)}, {s(sT0)} offset:128 sc1
    """)
    a.label("L_nosig2")
    a("s_mov_b64 exec, -1")
    stamp("Hkv")
    a(f"""
    s_cmp_eq_u32 {s(sI)}, 0
    s_cbranch_scc0 L_nol1
    s_sleep {o.get('sl2a', 48)}
    """)
    gpoll("s2", hPA, 128, 1, sleep=o.get('sl2', 16), r=rWS)
    stamp("Hs2")
    PL = 64
    a(f"""
    s_mov_b64 exec, 1
    ds_add_u32 {v(vCA)}, v14
    s_mov_b32 exec_lo, 0x1ffff
    s_mov_b32 exec_hi, 0x1ffff
    s_mul_i32 {s(sT0)}, {s(sHK)}, {32*4352}
    s_mul_i32 {s(sT1)}, {s(sTB)}, 136
    s_add_u32 {s(sT0)}, {s(sT0)}, {s(sT1)}
    s_add_u32 {s(sT0)}, {s(sT0)}, {WS_KVP}
    """)
    for p in range(16):
        a(f"buffer_load_dwordx2 {v(PL+2*p,2)}, {v(hL1)}, {s(rWS,4)}, {s(sT0)} offen sc1")
        if p < 15:
            a(f"s_add_u32 {s(sT0)}, {s(sT0)}, 4352")
    a(f"""
    s_mul_i32 {s(sT0)}, {s(sHK)}, 2176
    s_mul_i32 {s(sT1)}, {s(sTB)}, 68
    s_add_u32 {s(sT0)}, {s(sT0)}, {s(sT1)}
    s_add_u32 {s(sT0)}, {s(sT0)}, {WS_KVF}
    s_mov_b64 exec, -1
    s_waitcnt vmcnt(0)
    """)
    for st_ in (2, 4, 8, 16):
        for i in range(0, 32, 2 * st_):
            a(f"v_pk_add_f32 {v(PL+i,2)}, {v(PL+i,2)}, {v(PL+i+st_,2)}")
    a(f"""
    v_mov_b64 {v(PL+2,2)}, {v(PL,2)}
    s_nop 1
    v_permlane32_swap_b32 {v(PL)}, {v(PL+2)}
    v_permlane32_swap_b32 {v(PL+1)}, {v(PL+3)}
    v_pk_add_f32 {v(PL,2)}, {v(PL,2)}, {v(PL+2,2)}
    v_cvt_pk_bf16_f32 {v(PL)}, {v(PL)}, {v(PL+1)}
    s_mov_b64 exec, 0x1ffff
    buffer_store_dword {v(PL)}, {v(hL4)}, {s(rWS,4)}, {s(sT0)} offen sc1
    s_mov_b64 exec, 1
    s_lshl_b32 {s(sT0)}, {s(sHK)}, 7
    s_add_u32 {s(sT0)}, {s(sT0)}, {WS_C3}
    s_waitcnt vmcnt(0)
    buffer_atomic_add v10, off, {s(rWS,4)}, {s(sT0)} sc1
    s_mov_b64 exec, -1
    s_sleep {o.get('sl3a', 32)}
    """)
    gpoll("s3", hP3, 0, 32, sleep=o.get('sl3', 16), r=rWS)
    a(f"s_mov_b64 exec, 1\nds_add_u32 {v(vCA)}, v14\ns_mov_b64 exec, -1\ns_branch L_lp_s3d")
    a.label("L_nol1")
    lpoll("s3", 0, 32)
    stamp("Hs3")
    KF = 60
    DB = [64, 80]
    a(f"""
    s_lshl2_add_u32 {s(sT0)}, {s(sHQ)}, {s(sI)}
    s_mul_i32 {s(sT0)}, {s(sT0)}, 544
    s_add_u32 {s(sT0)}, {s(sT0)}, {WS_KVF}
    buffer_load_dwordx4 {v(KF,4)}, {v(hKF)}, {s(rWS,4)}, {s(sT0)} offen sc1
    s_lshl_b32 {s(sT10)}, {s(sOC)}, 17
    s_add_u32 {s(sT10)}, {s(sT10)}, {s(sT9)}
    s_waitcnt vmcnt(0)
    {mf32(DB[0], KF, hPQ[0], '0')}
    {mf32(DB[1], KF, hPQ[1], '0')}
    """)

    def dma_w(st_):
        a(f"""
        s_add_u32 m0, {s(sT9)}, {wbase(st_)}
        s_add_u32 {s(sT0)}, {s(sT10)}, {WS_WT + 8192*st_}
        buffer_load_dwordx4 {v(vL16)}, {s(rWS,4)}, {s(sT0)} offen sc1 lds
        buffer_load_dwordx4 {v(vL16)}, {s(rWS,4)}, {s(sT0)} offen offset:1024 sc1 lds
        """)

    for st_ in (13, 14, 15):
        dma_w(st_)
    for th in range(2):
        D = DB[th]
        a(f"""
        v_add_f32 v12, {H(f2u(EPS))}, {v(D+8)}
        v_rcp_f32 v12, v12
        v_sub_f32 v9, 1.0, {v(hG[th])}
        v_mul_f32 v12, v12, v9
        """)
        for i in range(0, 8, 2):
            a(f"v_pk_mul_f32 {v(D+i,2)}, {v(D+i,2)}, v[12:13] op_sel_hi:[1,0]")
        for i in range(4):
            a(f"v_cvt_pk_bf16_f32 {v(D+8+i)}, {v(D+2*i)}, {v(D+2*i+1)}")
        a(f"""
        s_add_u32 {s(sT0)}, {s(sOOFF)}, {WS_OB + 32768*th}
        buffer_store_dwordx4 {v(D+8,4)}, {v(vL16)}, {s(rWS,4)}, {s(sT0)} offen sc1
        """)
    stamp("HoB")
    for n_, (lo, hi) in enumerate([(0, 7), (7, 11), (11, 13)]):
        lpoll(f"prog{n_}", 4 + 4 * n_, 8)
        if n_ == 2:
            stamp("Hprog")
        for st_ in range(lo, hi):
            dma_w(st_)
    a("s_waitcnt vmcnt(0)")
    stamp("Hw")
    if o['nox5']:
        a(f"s_mov_b64 exec, 1\nds_add_u32 {v(vCA)}, v10 offset:16\ns_mov_b64 exec, -1")
    else:
        a("s_barrier")
    dump()
    if o.get('probe', '').startswith('H'):
        a("s_barrier\ns_barrier")
        pad()
    a("s_endpgm")
    a.label("L_codeend")
    if o.get('front'):
        L = a.lines
        i0, i1 = L.index("; @H0"), L.index("; @H%d" % o['front'])
        part = L[i0:i1]
        L = L[:i0] + ["L_hcont:"] + L[i1:]
        k = L.index("; @INS")
        a.lines = L[:k] + ["s_branch L_ccont"] + part + ["s_branch L_hcont", "L_ccont:"] + L[k:]
    a.lines = [ln for ln in a.lines if not ln.startswith("; @")]
    return a


HEADER = open('cdna_kernels/' + NAME + '.s.ref').read().split('; Override launch geometry')[0]


def wrap(a):
    k = NAME + '_kernel'
    return (HEADER + f"; @launch grid=(256,1,1) block=(768,1,1) lds={LDS_BYTES}\n"
            + f""".amdgcn_target "amdgcn-amd-amdhsa--gfx950"
.text
.globl {k}
.p2align 8
.type {k},@function
{k}:
""" + a.text() + f""".section .rodata,"a"
.p2align 6
.amdhsa_kernel {k}
  .amdhsa_next_free_vgpr {NVGPR}
  .amdhsa_next_free_sgpr 102
  .amdhsa_accum_offset {NVGPR}
  .amdhsa_group_segment_fixed_size 0
  .amdhsa_kernarg_size 96
  .amdhsa_user_sgpr_count 2
  .amdhsa_user_sgpr_kernarg_segment_ptr 1
  .amdhsa_system_sgpr_workgroup_id_x 1
.end_amdhsa_kernel
""")


if __name__ == '__main__':
    import argparse, json
    ap = argparse.ArgumentParser()
    ap.add_argument('out')
    ap.add_argument('--diag', action='store_true')
    ap.add_argument('--opts', default='{}')
    args = ap.parse_args()
    a = gen(args.diag, json.loads(args.opts))
    bad = check(a.lines)
    for b in bad:
        print("HAZARD need", b[0], "have", b[1], "|", b[2], "->", b[3])
    open(args.out, 'w').write(wrap(a))
    print("written", args.out, len(a.lines), "lines")
```
